```python
import torch

def _softmax(x, axis=-1):
    return torch.softmax(x, dim=axis)
def _gelu(x):
    return torch.nn.functional.gelu(x, approximate="tanh")
def _silu(x):
    return torch.nn.functional.silu(x)
def _sigmoid(x):
    return torch.sigmoid(x)
def _layernorm(x, axis=-1, eps=1e-5):
    m = x.mean(dim=axis, keepdim=True)
    v = x.var(dim=axis, keepdim=True, unbiased=False)
    return (x - m) / torch.sqrt(v + eps)
def _scatter_add(tgt, idx, src, axis=0):
    return tgt.clone().index_add_(axis, idx, src)
def _segment_sum(src, seg, n):
    out = torch.zeros((n,) + src.shape[1:], dtype=src.dtype)
    return out.index_add_(0, seg, src)
def _pad(x, pw):
    flat = tuple(v for pair in reversed(pw) for v in pair)
    return torch.nn.functional.pad(x, flat)

kernel_name = 'sequential_preLN__ssm_conv_s4d__geglu_ffn__prompt'

def setup_inputs():

    _w = (lambda a: (lambda t: t.to(torch.bfloat16) if t.is_floating_point() else t)(torch.as_tensor(a)))
    def _A_setup():
        Bsz, L, D, N = 1, 2048, 640, 192
        return {
            "u": _w((lambda *s: torch.randn(*s, dtype=torch.bfloat16) * 0.05)(Bsz, L, D)),
            "log_A_real": _w((lambda *s: torch.randn(*s, dtype=torch.bfloat16) * 6.4)(D, N) * 0.5),
            "A_imag": _w((lambda *s: torch.randn(*s, dtype=torch.bfloat16) * 0.05)(D, N) * 3.14),
            "C_real": _w((lambda *s: torch.randn(*s, dtype=torch.bfloat16) * 0.05)(D, N) / N ** 0.5),
            "C_imag": _w((lambda *s: torch.randn(*s, dtype=torch.bfloat16) * 0.05)(D, N) / N ** 0.5),
            "log_dt": _w((lambda *s: torch.randn(*s, dtype=torch.bfloat16) * 0.05)(D) * 0.5 - 4.0),
            "D_skip": _w((lambda *s: torch.randn(*s, dtype=torch.bfloat16) * 0.05)(D)),
        }
    _A_in = _A_setup()

    def _B_setup():
        B, S, D, F = 1, 2048, 640, 1536
        return {
            "x": _w((lambda *s: torch.randn(*s, dtype=torch.bfloat16) * 0.05)(B, S, D)),
            "w_gate": _w((lambda *s: torch.randn(*s, dtype=torch.bfloat16) * 0.05)(D, F)),
            "w_up": _w((lambda *s: torch.randn(*s, dtype=torch.bfloat16) * 0.05)(D, F)),
            "w_down": _w((lambda *s: torch.randn(*s, dtype=torch.bfloat16) * 0.05)(F, D)),
        }
    _B_in = _B_setup()

    return {
        "A_u": _A_in["u"],
        "A_log_A_real": _A_in["log_A_real"],
        "A_A_imag": _A_in["A_imag"],
        "A_C_real": _A_in["C_real"],
        "A_C_imag": _A_in["C_imag"],
        "A_log_dt": _A_in["log_dt"],
        "A_D_skip": _A_in["D_skip"],
        "B_x": _B_in["x"],
        "B_w_gate": _B_in["w_gate"],
        "B_w_up": _B_in["w_up"],
        "B_w_down": _B_in["w_down"],
    }

def reference(A_u, A_log_A_real, A_A_imag, A_C_real, A_C_imag, A_log_dt, A_D_skip, B_x, B_w_gate, B_w_up, B_w_down):
    def _A_ref(u, log_A_real, A_imag, C_real, C_imag, log_dt, D_skip):
        L = u.shape[1]
        dt = torch.exp(log_dt)
        A = -torch.exp(log_A_real) + 1j * A_imag
        C = (C_real + 1j * C_imag) * dt[:, None]
        pos = (lambda x, dt: x.to(dt))(torch.arange(L), log_dt.dtype)
        P = torch.exp((A * dt[:, None])[:, :, None] * pos[None, None, :])
        K = 2.0 * torch.einsum("dn,dnl->dl", C, P).real
        L2 = 2 * L
        u_t = (lambda x, *d: x.permute(*d))(u, 0, 2, 1)
        Kf = (lambda x, *a, **k: torch.fft.rfft(x.float(), *a, **k))(K, L2)
        Uf = (lambda x, *a, **k: torch.fft.rfft(x.float(), *a, **k))(u_t, L2)
        y = (lambda x, *a, **k: torch.fft.irfft(x, *a, **k).to(torch.bfloat16))(Uf * Kf[None, :, :], L2)[:, :, :L]
        y = (lambda x, *d: x.permute(*d))(y, 0, 2, 1)
        return y + u * D_skip[None, None, :]

    def _B_ref(x, w_gate, w_up, w_down):
        return (_gelu(x @ w_gate) * (x @ w_up)) @ w_down

    x = A_u
    h = x + _A_ref(_layernorm(x, axis=-1), A_log_A_real, A_A_imag, A_C_real, A_C_imag, A_log_dt, A_D_skip)
    h2 = h + _B_ref(_layernorm(h, axis=-1), B_w_gate, B_w_up, B_w_down)
    return h2
```

```python
from lib import *
import struct
fh = lambda x: hex(struct.unpack("<I", struct.pack("<f", x))[0])
KW = 17408
LW = 21568
LRS = 1344; LXO = 8 * LRS + 32
def cmul(d, x, w):
    return [f"v_pk_mul_f32 {vr(d,2)}, {vr(x,2)}, {vr(w,2)} op_sel_hi:[1,0]",
            f"v_pk_fma_f32 {vr(d,2)}, {vr(x,2)}, {vr(w,2)}, {vr(d,2)} op_sel:[1,1,0] op_sel_hi:[0,1,1] neg_lo:[1,0,0]"]
def gen_kgen(a, st, chreg="s29"):
    vL, vT0, vT1, vT2 = 1, 2, 3, 4
    vA, vB, vO8, vO16, vO32, vDt, vOne = 5, 6, 7, 8, 9, 10, 182
    PAR = 12
    WA = 24
    ACC = 40; FA = 56; FB = 88
    W1, W8, W256 = 120, 122, 124
    E = [126, 128]; P = 130
    a(f"s_load_dwordx8 s[36:43], s[0:1], {KA['logA']}\ns_load_dwordx2 s[44:45], s[0:1], {KA['logdt']}")
    for i in range(12): a(f"v_mov_b32 v{PAR+i}, 0")
    a(f"v_lshlrev_b32 v{vT0}, 1, v{vL}\ns_mul_i32 s30, s29, 384\ns_and_b32 s31, s29, 0xfffffffe\ns_lshl_b32 s31, s31, 1")
    a("s_waitcnt lgkmcnt(0)")
    a("s_load_dword s34, s[44:45], s31")
    for i in range(4): a.srd(8 + 4 * i, 36 + 2 * i, 0, 640 * 384)
    for p in range(3):
        for i in range(4):
            a(f"buffer_load_short_d16_hi v{PAR+4*p+i}, v{vT0}, s[{8+4*i}:{11+4*i}], s30 offen offset:{128*p}")
    a.srd(24, 4, KX_OFF, 640 * 4096)
    a(f"s_mul_i32 s32, s28, {KW}\nv_lshl_add_u32 v{WA}, v{vL}, 2, s32")
    for k in range(1, 16): a(f"v_add_u32 v{WA+k}, {272*k}, v{WA}")
    a(f"v_and_b32 v{vT1}, 31, v{vL}\nv_lshrrev_b32 v{vT2}, 5, v{vL}")
    a(f"v_lshl_add_u32 v{vA}, v{vT2}, 4, s32\nv_mad_u32_u24 v{vB}, v{vT1}, s33, v{vA}".replace("s33", "s33"))
    a.l.insert(len(a.l) - 2, "    s_movk_i32 s33, 272")
    tab = {9: 1, 12: 1, 13: 2, 19: 1, 23: 1}
    lo = sum(tab.get(r, 0) << (2 * r) for r in range(16)); hi = sum(tab.get(r + 16, 0) << (2 * r) for r in range(16))
    a(f"s_mov_b32 s46, {hex(lo)}\ns_mov_b32 s47, {hex(hi)}\nv_lshlrev_b32 v{vT0}, 1, v{vT1}\nv_lshrrev_b64 {vr(P,2)}, v{vT0}, s[46:47]")
    a(f"v_and_b32 v{P}, 3, v{P}\nv_sub_u32 v{P}, v{vT1}, v{P}\nv_mad_u32_u24 v{vA}, v{P}, s33, v{vA}")
    a(f"v_lshlrev_b32 v{vT0}, 4, v{vT1}\nv_lshl_add_u32 v{vO8}, v{vT2}, 3, v{vT0}\nv_lshl_add_u32 v{vO16}, v{vT2}, 9, v{vT0}\nv_lshl_add_u32 v{vO32}, v{vT2}, 10, v{vT0}")
    a(f"v_and_b32 v{vT0}, 1, v{vL}\nv_cmp_eq_u32 vcc, 1, v{vT0}\nv_mov_b32 v{vOne}, 0x3f80\ns_lshl_b32 s35, s29, 12")
    a("s_waitcnt lgkmcnt(0)")
    a("s_and_b32 s31, s29, 1\ns_lshl_b32 s31, s31, 4\ns_lshr_b32 s34, s34, s31\ns_lshl_b32 s34, s34, 16")
    LOG2E = 1.4426950408889634
    a(f"v_mov_b32 v{vDt}, {fh(LOG2E)}\nv_mul_f32 v{vDt}, s34, v{vDt}\nv_exp_f32 v{vDt}, v{vDt}\ns_nop 0\nv_cvt_pk_bf16_f32 v{vDt}, 0, v{vDt}\nv_add_f32 v{vDt+1}, v{vDt}, v{vDt}")
    import math
    c = 1 / (2 * math.pi); chi = struct.unpack("<f", struct.pack("<f", c))[0]; clo = c - chi
    a(f"s_mov_b32 s48, {fh(chi)}\ns_mov_b32 s49, {fh(clo)}\ns_mov_b32 s50, {fh(LOG2E)}\ns_mov_b32 s51, 0x41000000\ns_mov_b32 s52, 0x43800000")
    st.mark()
    pend = []
    for p in range(3):
        q = PAR + 4 * p
        o = []
        t = P
        o += [f"s_waitcnt vmcnt({8-4*p})"]
        o += [f"v_mul_f32 v{q}, s50, v{q}", f"v_exp_f32 v{q}, v{q}", f"v_mul_f32 v{q+1}, v{q+1}, v{vDt}",
              f"v_mul_f32 v{t}, s48, v{q+1}", f"v_fma_f32 v{t+1}, v{q+1}, s48, -v{t}", f"v_cvt_pk_bf16_f32 v{q}, 0, v{q}",
              f"v_fma_f32 v{t+1}, v{q+1}, s49, v{t+1}", f"v_mul_f32 v{q}, v{q}, v{vDt}", f"v_fract_f32 v{t+2}, v{t}",
              f"v_mul_f32 v{q}, s50, v{q}",
              f"v_mul_f32 v{t+3}, s51, v{t+2}", f"v_mul_f32 v{t+4}, s52, v{t+2}", f"v_add_f32 v{t+2}, v{t+2}, v{t+1}",
              f"v_fract_f32 v{t+3}, v{t+3}", f"v_fract_f32 v{t+4}, v{t+4}",
              f"v_fma_f32 v{t+3}, v{t+1}, s51, v{t+3}", f"v_fma_f32 v{t+4}, v{t+1}, s52, v{t+4}",
              f"v_mul_f32 v{t+6}, s51, v{q}", f"v_mul_f32 v{t+8}, s52, v{q}",
              f"v_cos_f32 v{W8}, v{t+3}", f"v_sin_f32 v{W8+1}, v{t+3}", f"v_exp_f32 v{t+6}, -v{t+6}",
              f"v_cos_f32 v{W1}, v{t+2}", f"v_sin_f32 v{W1+1}, v{t+2}", f"v_exp_f32 v{t+10}, -v{q}",
              f"v_cos_f32 v{W256}, v{t+4}", f"v_sin_f32 v{W256+1}, v{t+4}", f"v_exp_f32 v{t+8}, -v{t+8}",
              f"v_pk_mul_f32 {vr(E[0],2)}, {vr(q+2,2)}, {vr(vDt,2)} op_sel:[0,1] op_sel_hi:[1,1]",
              f"v_pk_mul_f32 {vr(W8,2)}, {vr(W8,2)}, {vr(t+6,2)} op_sel_hi:[1,0]",
              f"v_pk_mul_f32 {vr(W1,2)}, {vr(W1,2)}, {vr(t+10,2)} op_sel_hi:[1,0]",
              f"v_pk_mul_f32 {vr(W256,2)}, {vr(W256,2)}, {vr(t+8,2)} op_sel_hi:[1,0]"]
        R = {1: W1, 8: W256}
        n = [P]
        def new():
            r = n[0]; n[0] += 2; return r
        X = {}
        plan = {2: (1, W1), 3: (2, W1), 4: (3, W1), 5: (4, W1), 6: (5, W1), 7: (6, W1),
                10: (2, W256), 11: (4, W256), 14: (6, W256), 15: ("w8", W256),
                16: (8, W256), 17: (11, W256), 18: (15, W256), 20: (16, W256), 21: (17, W256), 22: (18, W256),
                24: (20, W256), 25: (22, W256), 26: (24, W256), 27: (25, W256), 28: (26, W256), 29: (27, W256), 30: (28, W256), 31: (29, W256)}
        R["w8"] = W8
        PK = [P + 48, P + 50]
        for j in range(32):
            e = E[j & 1]; pk = PK[j & 1]
            xm = []
            if j in plan:
                R[j] = new(); xm = cmul(R[j], R[plan[j][0]], plan[j][1])
            em = cmul(E[(j + 1) & 1], e, W8) if j < 31 else []
            seq = []
            if xm: seq.append(xm[0])
            if em: seq.append(em[0])
            if xm: seq.append(xm[1])
            seq.append(f"v_cvt_pk_bf16_f32 v{pk}, v{e}, v{e+1}")
            if em: seq.append(em[1])
            off = 17 * (j >> 4)
            if j == 0: seq.append(f"ds_write2st64_b32 v{WA}, v{pk}, v{vOne} offset0:0 offset1:34")
            elif j in R:
                seq.append(f"v_cvt_pk_bf16_f32 v{pk+1}, v{R[j]}, -v{R[j]+1}")
                seq.append(f"ds_write2st64_b32 v{WA+(j&15)}, v{pk}, v{pk+1} offset0:{off} offset1:{off+34}")
            else: seq.append(f"ds_write_b32 v{WA+(j&15)}, v{pk} offset:{off*256}")
            o += seq
        assert n[0] <= P + 48
        k = 0
        for i, x in enumerate(o):
            a(x)
            if pend and i >= 6 and (i - 6) % 8 == 0: a(pend.pop(0))
        for s in range(8):
            a(f"ds_read_b128 {vr(FA+4*s,4)}, v{vA} offset:{8704+32*s}\nds_read_b128 {vr(FB+4*s,4)}, v{vB} offset:{32*s}")
        d = vr(ACC, 16)
        pend = [(f"s_waitcnt lgkmcnt({14-2*s})\n" if (p == 2 or s == 0) else "").replace("(14)", "(14)" if p == 2 else "(0)") +
                f"v_mfma_f32_32x32x16_bf16 {d}, {vr(FA+4*s,4)}, {vr(FB+4*s,4)}, {d if (p or s) else 0}" for s in range(8)]
    st.mark()
    for x in pend: a(x)
    a("s_nop 7\ns_nop 7\ns_nop 1")
    c = ACC; o = FA
    cv = lambda d, x, y: a(f"v_cvt_pk_bf16_f32 v{d}, v{x}, v{y}")
    cv(o, c, c + 1); cv(o + 1, c + 2, c + 3); cv(o + 2, c + 4, c + 5); cv(o + 3, c + 6, c + 7)
    a(f"buffer_store_dwordx2 {vr(o,2)}, v{vO8}, s[24:27], s35 offen\nbuffer_store_dwordx2 {vr(o+2,2)}, v{vO8}, s[24:27], s35 offen offset:512")
    cv(o + 4, c + 8, c + 8); cv(o + 5, c + 8, c + 9); cv(o + 6, c + 9, c + 9); cv(o + 7, c + 10, c + 10)
    a(f"buffer_store_dwordx4 {vr(o+4,4)}, v{vO16}, s[24:27], s35 offen offset:1024")
    for h in range(2):
        x = c + 12 + 2 * h; b = o + 8 + 4 * h
        a(f"v_cndmask_b32 v{vT0}, v{x}, v{x+1}, vcc")
        cv(b, x, x); cv(b + 1, x, x); cv(b + 2, vT0, x + 1); cv(b + 3, x + 1, x + 1)
        a(f"buffer_store_dwordx4 {vr(b,4)}, v{vO32}, s[24:27], s35 offen offset:{2048+512*h}")
    st.mark()

def gen_ln(a, st):
    vL, vT0, vT1, vT2, vW, vR, vO = 1, 2, 3, 4, 5, 6, 7
    S = 8; M = 16; RAW = 20; XF = 60
    a(f"s_load_dwordx2 s[6:7], s[0:1], {KA['u']}")
    a(f"v_lshrrev_b32 v{vT0}, 3, v{vL}\nv_and_b32 v{vT1}, 7, v{vL}\nv_lshlrev_b32 v{vT1}, 4, v{vT1}")
    a(f"s_movk_i32 s33, 1280\nv_mad_u32_u24 v{vT2}, v{vT0}, s33, v{vT1}\ns_mul_i32 s30, s29, 10240")
    a("s_waitcnt lgkmcnt(0)")
    a.srd(8, 6, 0, 2048 * 1280)
    for i in range(10): a(f"buffer_load_dwordx4 {vr(RAW+4*i,4)}, v{vT2}, s[8:11], s30 offen offset:{128*i}")
    a.srd(12, 4, UX_OFF, 256 * UX_STRIDE)
    a(f"s_mul_i32 s32, s28, {LW}\ns_movk_i32 s33, {LRS}\nv_add_u32 v{vT1}, s32, v{vT1}\nv_mad_u32_u24 v{vW}, v{vT0}, s33, v{vT1}")
    a(f"v_bfe_u32 v{vT0}, v{vL}, 2, 2\nv_mov_b32 v{vT1}, s32\nv_mad_u32_u24 v{vR}, v{vT0}, s33, v{vT1}")
    a(f"v_and_b32 v{vT0}, 1, v{vL}\nv_mul_u32_u24 v{vT0}, {LXO}, v{vT0}\nv_add_u32 v{vR}, v{vR}, v{vT0}")
    a(f"v_lshrrev_b32 v{vT0}, 4, v{vL}\nv_lshl_add_u32 v{vR}, v{vT0}, 4, v{vR}\nv_bfe_u32 v{vT0}, v{vL}, 1, 1\nv_lshl_add_u32 v{vR}, v{vT0}, 3, v{vR}")
    a(f"v_lshlrev_b32 v{vO}, 4, v{vL}\ns_mul_i32 s31, s29, {UX_STRIDE}")
    st.mark()
    for i in range(10):
        a(f"s_waitcnt vmcnt({9-i})")
        a(f"ds_write_b128 v{vW}, {vr(RAW+4*i,4)} offset:{LXO+128*i}")
        for k in range(4):
            a(f"v_lshlrev_b32 v{XF+8*i+2*k}, 16, v{RAW+4*i+k}\nv_and_b32 v{XF+8*i+2*k+1}, 0xffff0000, v{RAW+4*i+k}")
        for k in range(4):
            if i == 1: a(f"v_pk_add_f32 {vr(S+2*k,2)}, {vr(XF+2*k,2)}, {vr(XF+8+2*k,2)}")
            elif i > 1: a(f"v_pk_add_f32 {vr(S+2*k,2)}, {vr(S+2*k,2)}, {vr(XF+8*i+2*k,2)}")
    def red():
        a(f"v_pk_add_f32 {vr(S,2)}, {vr(S,2)}, {vr(S+2,2)}\nv_pk_add_f32 {vr(S+4,2)}, {vr(S+4,2)}, {vr(S+6,2)}\nv_pk_add_f32 {vr(S,2)}, {vr(S,2)}, {vr(S+4,2)}\nv_add_f32 v{S}, v{S}, v{S+1}")
        for m in ("quad_perm:[1,0,3,2]", "quad_perm:[2,3,0,1]", "row_half_mirror"):
            a(f"s_nop 1\nv_add_f32_dpp v{S}, v{S}, v{S} {m} row_mask:0xf bank_mask:0xf")
        a(f"v_mul_f32 v{S}, 0x3acccccd, v{S}")
    red()
    a(f"v_cvt_pk_bf16_f32 v{M}, 0, v{S}\nv_sub_f32 v{M+1}, v{S}, v{M}")
    for i in range(40):
        x = vr(XF + 2 * i, 2); s = vr(S + 2 * (i & 3), 2)
        a(f"v_pk_add_f32 {x}, {x}, {vr(M,2)} op_sel_hi:[1,0] neg_lo:[0,1] neg_hi:[0,1]")
        if i >= 1:
            k = i - 1; y = vr(XF + 2 * k, 2); s = vr(S + 2 * (k & 3), 2)
            a(f"v_pk_mul_f32 {s}, {y}, {y}" if k < 4 else f"v_pk_fma_f32 {s}, {y}, {y}, {s}")
    y = vr(XF + 78, 2); s = vr(S + 6, 2); a(f"v_pk_fma_f32 {s}, {y}, {y}, {s}")
    red()
    a(f"v_fma_f32 v{S}, -v{M+1}, v{M+1}, v{S}\nv_max_f32 v{S}, 0, v{S}\nv_cvt_pk_bf16_f32 v{S}, 0, v{S}\nv_add_f32 v{S}, 0x3727c5ac, v{S}")
    a(f"v_cvt_pk_bf16_f32 v{S}, 0, v{S}\nv_sqrt_f32 v{S}, v{S}")
    for k in range(8): a(f"v_cvt_pk_bf16_f32 v{XF+k}, 0, v{XF+k}")
    a(f"v_cvt_pk_bf16_f32 v{S}, 0, v{S}\nv_rcp_f32 v{S}, v{S}")
    for i in range(10):
        if i < 9:
            for k in range(8): a(f"v_cvt_pk_bf16_f32 v{XF+8*i+8+k}, 0, v{XF+8*i+8+k}")
        for k in range(4):
            x = vr(XF + 8 * i + 2 * k, 2); a(f"v_pk_mul_f32 {x}, {x}, {vr(S,2)} op_sel_hi:[1,0]")
        for k in range(4): a(f"v_cvt_pk_bf16_f32 v{RAW+4*i+k}, v{XF+8*i+2*k}, v{XF+8*i+2*k+1}")
        a(f"ds_write_b128 v{vW}, {vr(RAW+4*i,4)} offset:{128*i}")
    st.mark()
    for g in range(4):
        for k in range(5):
            q = 5 * g + k
            a(f"ds_read_b64_tr_b16 {vr(XF+4*q,2)}, v{vR} offset:{64*q}\nds_read_b64_tr_b16 {vr(XF+4*q+2,2)}, v{vR} offset:{64*q+4*LRS}")
        if g:
            for k in range(5):
                q = 5 * (g - 1) + k
                if k == 0: a("s_waitcnt lgkmcnt(10)")
                a(f"buffer_store_dwordx4 {vr(XF+4*q,4)}, v{vO}, s[12:15], s31 offen offset:{1024*(q&3)}")
                if q & 3 == 3: a("s_add_u32 s31, s31, 4096")
    a("s_waitcnt lgkmcnt(0)")
    for q in range(15, 20):
        a(f"buffer_store_dwordx4 {vr(XF+4*q,4)}, v{vO}, s[12:15], s31 offen offset:{1024*(q&3)}")
        if q & 3 == 3: a("s_add_u32 s31, s31, 4096")
    st.mark()

def gen_k1(name="k1_kernel", stamp=False):
    a = Asm(); st = Stamps(a, stamp, 1)
    a.l.append(kernel_head(name))
    a("s_cmp_ge_u32 s2, 224\ns_cbranch_scc1 K1_END")
    st.mark()
    a(f"s_load_dwordx2 s[4:5], s[0:1], {KA['ws']}")
    a("v_lshrrev_b32 v2, 6, v0\nv_and_b32 v1, 63, v0\ns_nop 0\nv_readfirstlane_b32 s28, v2")
    a("s_lshl_b32 s29, s2, 2\ns_add_u32 s29, s29, s28")
    a("s_cmp_ge_u32 s2, 160\ns_cbranch_scc1 K1_LN")
    n0 = st.n
    gen_kgen(a, st)
    a("s_branch K1_FIN\nK1_LN:")
    a("s_sub_u32 s29, s29, 640")
    st.n = n0
    gen_ln(a, st)
    a("K1_FIN:")
    st.flush(4, 2, 28, 2)
    a("K1_END:\ns_endpgm")
    return a.text(), kernel_desc(name, 184), f"; @launch kernel={name} grid=(224,1,1) block=(256,1,1) lds={4*LW}"
```

```python
L, D, NM, F = 2048, 640, 192, 1536
UX_STRIDE = 161 * 128
UX_OFF = 0x000000
KX_OFF = 0x600000
HT_OFF = 0x900000
W1_OFF = 0xC00000
W2_OFF = 0x1000000
CS_OFF = 0x1200000
HH_OFF = 0x1300000
ST_OFF = 0x2000000
KA = dict(u=0, logA=8, Aim=16, Cre=24, Cim=32, logdt=40, Dsk=48, wg=64, wu=72, wd=80, out=88, dbg=96, ws=104)

class Asm:
    def __init__(self):
        self.l = []
        self.nlab = 0
    def __call__(self, s):
        for x in s.split("\n"):
            self.l.append("    " + x.strip() if x.strip() and not x.strip().endswith(":") else x.strip())
    def label(self, base="L"):
        self.nlab += 1
        return f"{base}_{self.nlab}"
    def text(self):
        return "\n".join(self.l) + "\n"
    def srd(self, s, base, off, size):
        if off == 0:
            self(f"s_mov_b32 s{s}, s{base}\ns_mov_b32 s{s+1}, s{base+1}")
        else:
            self(f"s_add_u32 s{s}, s{base}, {hex(off)}\ns_addc_u32 s{s+1}, s{base+1}, 0")
        self(f"s_mov_b32 s{s+2}, {hex(size)}\ns_mov_b32 s{s+3}, 0x20000")
    def srd_add(self, s, reg):
        self(f"s_add_u32 s{s}, s{s}, s{reg}\ns_addc_u32 s{s+1}, s{s+1}, 0")

def vr(a, n=1):
    return f"v{a}" if n == 1 else f"v[{a}:{a+n-1}]"
def ar(a, n=1):
    return f"a{a}" if n == 1 else f"a[{a}:{a+n-1}]"
def sr(a, n=1):
    return f"s{a}" if n == 1 else f"s[{a}:{a+n-1}]"

def kernel_head(name):
    return f".globl {name}\n.p2align 8\n.type {name},@function\n{name}:\n"
def kernel_desc(name, vgpr, sgpr=96, agpr=0):
    acc = (vgpr + 3) // 4 * 4
    nfv = acc + agpr if agpr else vgpr
    return f""".p2align 6
.amdhsa_kernel {name}
  .amdhsa_next_free_vgpr {nfv}
  .amdhsa_next_free_sgpr {sgpr}
  .amdhsa_accum_offset {acc}
  .amdhsa_group_segment_fixed_size 0
  .amdhsa_kernarg_size 112
  .amdhsa_user_sgpr_count 2
  .amdhsa_user_sgpr_kernarg_segment_ptr 1
  .amdhsa_system_sgpr_workgroup_id_x 1
.end_amdhsa_kernel
"""

class Stamps:
    def __init__(self, a, on, kid):
        self.a, self.on, self.kid, self.n = a, on, kid, 0
    def mark(self, wait=False):
        if not self.on: return
        assert self.n < 8
        self.a(f"s_memrealtime s[{80+2*self.n}:{81+2*self.n}]")
        if wait: self.a("s_waitcnt lgkmcnt(0)")
        self.n += 1
    def flush(self, wsbase, wgreg, wavereg, vtmp):
        if not self.on: return
        a = self.a
        a("s_waitcnt vmcnt(0) lgkmcnt(0)")
        a(f"s_memrealtime s[{80+2*self.n}:{81+2*self.n}]")
        n = self.n + 1
        a.srd(72, wsbase, ST_OFF + self.kid * 1024 * 512, 1024 * 512)
        a(f"s_lshl_b32 s76, s{wgreg}, 4\ns_add_u32 s76, s76, s{wavereg}\ns_lshl_b32 s76, s76, 5")
        a("s_waitcnt lgkmcnt(0)")
        a(f"v_mov_b32 v{vtmp}, s76")
        for i in range(n):
            a(f"v_mov_b32 v{vtmp+1}, s{80+2*i}")
            a(f"buffer_store_dword v{vtmp+1}, v{vtmp}, s[72:75], 0 offen offset:{4*i}")
        a("s_waitcnt vmcnt(0)")

def interleave(mf, fill):
    out = []
    for i, m in enumerate(mf):
        out.append(m)
        if i < len(fill): out += fill[i]
    return out
```

```python
import sys
sys.path.insert(0, "gen")
from lib import *; from build import assemble
from k1 import gen_k1; from k2 import gen_k2; from k3 import gen_k3; from k4 import gen_k4
KN = "sequential_preLN__ssm_conv_s4d__geglu_ffn__prompt"
def empty(name="e_kernel"):
    return (kernel_head(name) + "    s_endpgm\n", kernel_desc(name, 8), f"; @launch kernel={name} grid=(256,1,1) block=(256,1,1) lds=0")
if __name__ == "__main__":
    parts = [gen_k1(name=KN + "_kernel"), gen_k2(), gen_k3(), gen_k4()]
    open(f"cdna_kernels/{KN}.s", "w").write(assemble(parts))
    open("v_e4.s", "w").write(assemble(parts + [empty()] * 4))
    open("v_k3x2.s", "w").write(assemble(parts[:3] + [parts[2]] + parts[3:]))
    open("full_st.s", "w").write(assemble([gen_k1(name=KN + "_kernel", stamp=True), gen_k2(stamp=True), gen_k3(stamp=True), gen_k4(stamp=True)]))
```

```python
import sys
from lib import *
def assemble(parts):
    head = "\n".join(p[2] for p in parts) + "\n"
    seen = set(); body = ""; desc = ""
    for p in parts:
        if p[1] in seen: continue
        seen.add(p[1]); body += p[0]; desc += p[1]
    return head + '.amdgcn_target "amdgcn-amd-amdhsa--gfx950"\n.text\n' + body + '.section .rodata,"a"\n' + desc
```

```python
from lib import *
import struct, math
fh = lambda x: hex(struct.unpack("<I", struct.pack("<f", x))[0])
FL_OFF = 0x1A00000
F_ST, F_W, F_1, F_2 = 0x1000, 0x8000, 0x10000, 0x14000
RW = 21792; K1O = 4640; UO = 9248; UBO = 4224; XO = 17696
WST = 87296
NOWN = 6
vL = 1; vT0, vT1, vT2, vT3 = 2, 3, 4, 5
vWd = [6, 7, 8]; vWa, vWb = 9, 10
LOG2E = 1.4426950408889634
TAG = "s59"

class St:
    def __init__(s, a, on): s.a, s.on = a, on
    def __call__(s, i):
        if s.on: s.a(f"s_memrealtime s[{76+2*i}:{77+2*i}]")
    def flush(s):
        if not s.on: return
        a = s.a
        a("s_waitcnt vmcnt(0) lgkmcnt(0)"); s(12)
        a.srd(8, 4, ST_OFF, 256 * 256)
        a("s_lshl_b32 s12, s2, 2\ns_add_u32 s12, s12, s28\ns_lshl_b32 s12, s12, 6\ns_waitcnt lgkmcnt(0)\nv_mov_b32 v2, s12")
        for i in range(13): a(f"v_mov_b32 v3, s{76+2*i}\nbuffer_store_dword v3, v2, s[8:11], 0 offen offset:{4*i}")

def poll(a, va, vd, pre=None):
    L = a.label("PL"); D = a.label("PD")
    if pre is not None:
        a(f"s_waitcnt vmcnt({pre})\nv_cmp_ne_u32 vcc, {TAG}, v{vd}\ns_cbranch_vccz {D}")
    a(f"s_movk_i32 s58, 0x7fff\n{L}:")
    a(f"buffer_load_dword v{vd}, v{va}, s[64:67], 0 offen sc1\ns_waitcnt vmcnt(0)\nv_cmp_ne_u32 vcc, {TAG}, v{vd}\ns_cbranch_vccz {D}")
    a(f"s_sub_u32 s58, s58, 1\ns_cbranch_scc0 {L}\n{D}:")
def setflag(a, soff):
    a(f"v_mov_b32 v{vT0}, 0\nv_mov_b32 v{vT1}, {TAG}\ns_mov_b64 exec, 1\nbuffer_store_dword v{vT1}, v{vT0}, s[64:67], {soff} offen sc1\ns_mov_b64 exec, -1")

def cmul(d, x, w):
    return [f"v_pk_mul_f32 {vr(d,2)}, {vr(x,2)}, {vr(w,2)} op_sel_hi:[1,0]",
            f"v_pk_fma_f32 {vr(d,2)}, {vr(x,2)}, {vr(w,2)}, {vr(d,2)} op_sel:[1,1,0] op_sel_hi:[0,1,1] neg_lo:[1,0,0]"]

def w1_voff(a):
    for i in range(3):
        if i: a(f"v_add_u32 v{vT0}, {64*i}, v{vL}")
        s = vT0 if i else vL
        a(f"v_mul_u32_u24 v{vT1}, 5462, v{s}\nv_lshrrev_b32 v{vT1}, 16, v{vT1}\nv_mul_u32_u24 v{vT1}, {3072-192}, v{vT1}")
        a(f"v_lshl_add_u32 v{vWd[i]}, v{vL}, 4, v{vT1}")
def w1f_setup(a, vF):
    a.srd(12, 4, W1_OFF, 16 * 245760)
    a("s_mul_i32 s57, s61, 245760\ns_mul_i32 s31, s28, 3072\ns_add_u32 s57, s57, s31\ns_add_u32 s56, s57, 245760\ns_mul_i32 s39, s3, 12288\ns_add_u32 s39, s39, s57")
    a(f"v_min_u32 v{vF}, 19, v{vL}\nv_lshlrev_b32 v{vF}, 10, v{vF}\ns_lshl_b32 s31, s61, 6\ns_add_u32 s31, s31, {F_W}\nv_add_u32 v{vF}, s31, v{vF}\nv_lshlrev_b32 v{vWa}, 4, v{vL}")
def w1f_loads(c0, c1):
    o = []
    for c in range(c0, c1):
        for t in range(3):
            o.append(f"buffer_load_dwordx4 {ar(12*c+4*t,4)}, v{vWa}, s[12:15], s39 offen offset:{1024*t} sc1" +
                     ("\ns_add_u32 s39, s39, 12288\ns_cmp_eq_u32 s39, s56\ns_cselect_b32 s39, s57, s39" if t == 2 else ""))
    return o
def w1_addr(a, sbase):
    a(f"v_lshrrev_b32 v{vT0}, 2, v{vL}\nv_mul_u32_u24 v{vT0}, 192, v{vT0}\nv_add_u32 v{vT0}, {sbase}, v{vT0}")
    a(f"v_and_b32 v{vT1}, 3, v{vL}\nv_lshl_add_u32 v{vWa}, v{vT1}, 3, v{vT0}")
    a(f"v_bfe_u32 v{vT1}, v{vL}, 1, 1\nv_mul_u32_u24 v{vT1}, {6144-16}, v{vT1}\nv_add3_u32 v{vWb}, v{vWa}, v{vT1}, 32")
def w1_frag(dst, off):
    return [f"ds_read_b64_tr_b16 {dst(4*t+2*h)}, v{vWb if t == 2 else vWa} offset:{off+3072*h+(6144 if t == 1 else 0)}" for t in range(3) for h in range(2)]
def gen_conv(a, st, P0):
    vA, vB, vK8, vK16, vK32, vKp, vUa, vKa, vXr, vTh, vSt, vFw, vD = 11, 12, 13, 14, 15, 16, 17, 18, 19, 20, 21, 22, 23
    XR, ST, ACC, FA, FB = 24, 40, 56, 72, 104
    W1, W8, W256, E, P, PK, PAR, vDt = 136, 138, 140, [142, 144], 146, 194, 210, 222
    a("s_lshl_b32 s30, s29, 2\ns_add_u32 s30, s30, s28")
    for i in range(12): a(f"v_mov_b32 v{PAR+i}, 0")
    a(f"v_lshlrev_b32 v{vT0}, 1, v{vL}\ns_mul_i32 s31, s30, 384\ns_and_b32 s32, s30, 0xfffffffe\ns_lshl_b32 s32, s32, 1")
    vG = 6
    a(f"v_mul_u32_u24 v{vG}, 10240, v0")
    a("s_waitcnt lgkmcnt(0)")
    a(f"s_add_u32 s64, s4, {FL_OFF}\ns_addc_u32 s65, s5, 0\ns_load_dword s59, s[64:65], 0\ns_load_dword s34, s[18:19], s32\ns_load_dword s35, s[20:21], s32")
    a.srd(24, 8, 0, 2048 * 1280)
    for i in range(4): a.srd(36 if i == 0 else 40 + 4 * i, 10 + 2 * i, 0, 640 * 384)
    PS = [36, 44, 48, 52]
    for p in range(3):
        for i in range(4):
            a(f"buffer_load_short_d16_hi v{PAR+4*p+i}, v{vT0}, s[{PS[i]}:{PS[i]+3}], s31 offen offset:{128*p}")
    a(f"s_lshr_b32 s31, s2, 3\ns_lshl_b32 s31, s31, 2\ns_add_u32 s31, s31, s28\ns_mul_i32 s31, s31, 26\nv_lshrrev_b32 v{vT0}, 1, v{vL}\nv_min_u32 v{vT0}, 25, v{vT0}\nv_add_u32 v{vT0}, s31, v{vT0}\nv_min_u32 v{vT0}, 2047, v{vT0}")
    a(f"v_mul_u32_u24 v{vT0}, 1280, v{vT0}\nv_and_b32 v{vT1}, 1, v{vL}\nv_mul_u32_u24 v{vT1}, 156, v{vT1}\nv_add_u32 v{vT0}, v{vT0}, v{vT1}\ns_and_b32 s31, s2, 7\ns_mul_i32 s31, s31, 160")
    a(f"buffer_load_dword v250, v{vT0}, s[24:27], s31 offen")
    gath = [("s_add_u32 s17, s17, 3840\n" if i in (3, 6) else "") + f"buffer_load_dwordx2 {vr(XR+2*i,2)}, v{vG}, s[24:27], s17 offen offset:{1280*(i%3)}" for i in range(8)]
    a("s_lshl_b32 s17, s29, 3")
    a(f"s_mov_b32 s66, 0x20000\ns_mov_b32 s67, 0x20000\ns_mul_i32 s32, s28, {RW}\ns_movk_i32 s33, 272")
    a.srd(8, 4, HT_OFF, 640 * 4096)
    a(f"v_and_b32 v{vT1}, 31, v{vL}\nv_lshrrev_b32 v{vT2}, 5, v{vL}")
    a(f"v_lshl_add_u32 v{vA}, v{vT2}, 4, s32\nv_mad_u32_u24 v{vB}, v{vT1}, s33, v{vA}")
    tab = {9: 1, 12: 1, 13: 2, 19: 1, 23: 1}
    lo = sum(tab.get(r, 0) << (2 * r) for r in range(16)); hi = sum(tab.get(r + 16, 0) << (2 * r) for r in range(16))
    a(f"s_mov_b32 s46, {hex(lo)}\ns_mov_b32 s47, {hex(hi)}\nv_lshlrev_b32 v{vT0}, 1, v{vT1}\nv_lshrrev_b64 {vr(P,2)}, v{vT0}, s[46:47]")
    a(f"v_and_b32 v{P}, 3, v{P}\nv_sub_u32 v{P}, v{vT1}, v{P}\nv_mad_u32_u24 v{vA}, v{P}, s33, v{vA}")
    a(f"s_add_u32 s33, s32, 512\nv_lshl_add_u32 v{vT0}, v{vT1}, 4, s33\nv_lshl_add_u32 v{vK16}, v{vT2}, 9, v{vT0}\nv_lshl_add_u32 v{vK32}, v{vT2}, 10, v{vT0}")
    a(f"v_mul_u32_u24 v{vT3}, 24, v{vT2}\nv_add3_u32 v{vKp}, v{vT0}, v{vT3}, 6\nv_lshlrev_b32 v{vT3}, 3, v{vT2}\nv_sub_u32 v{vK8}, v{vT0}, v{vT3}\nv_add_u32 v{vK8}, 8, v{vK8}")
    a(f"v_and_b32 v{vT0}, 15, v{vL}\nv_lshrrev_b32 v{vT1}, 4, v{vL}\nv_and_b32 v{vT2}, 1, v{vL}\nv_lshlrev_b32 v{vT1}, 4, v{vT1}")
    a(f"s_add_u32 s33, s32, {UO+UBO+8}\nv_lshl_add_u32 v{vUa}, v{vT0}, 2, s33\nv_mul_u32_u24 v{vT3}, {UBO+4}, v{vT2}\nv_sub_u32 v{vUa}, v{vUa}, v{vT3}\nv_add_u32 v{vUa}, v{vUa}, v{vT1}")
    a(f"v_lshrrev_b32 v{vT0}, 1, v{vT0}\nv_lshlrev_b32 v{vT0}, 6, v{vT0}")
    a(f"s_add_u32 s33, s32, {512+48-448}\nv_mul_u32_u24 v{vT3}, {K1O}, v{vT2}\nv_add3_u32 v{vKa}, v{vT0}, v{vT3}, s33\nv_sub_u32 v{vKa}, v{vKa}, v{vT1}")
    a(f"s_add_u32 s33, s32, {XO}\nv_lshl_add_u32 v{vT3}, v{vT2}, 3, s33\nv_add3_u32 v{vXr}, v{vT0}, v{vT1}, v{vT3}")
    a(f"v_lshlrev_b32 v{vTh}, 4, v0\nv_lshlrev_b32 v{vSt}, 6, v0\nv_add_u32 v{vSt}, {F_ST}, v{vSt}")
    a(f"v_cmp_eq_u32 s[68:69], 1, v{vT2}\nv_cmp_eq_u32 vcc, 0, v{vL}\ns_mov_b32 m0, s32")
    a("s_waitcnt lgkmcnt(0)\ns_barrier")
    a("s_add_u32 s59, s59, 1\ns_and_b32 s31, s30, 1\ns_lshl_b32 s31, s31, 4\ns_lshr_b32 s34, s34, s31\ns_lshl_b32 s34, s34, 16\ns_lshr_b32 s35, s35, s31\ns_lshl_b32 s35, s35, 16")
    a(f"v_mov_b32 v{vD}, s35\nv_cndmask_b32 v{vD}, 0, v{vD}, vcc\nv_mov_b32 v{vT0}, 0x3f80\nds_write_addtid_b32 v{vT0} offset:8704")
    a(f"v_mov_b32 v{vDt}, {fh(LOG2E)}\nv_mul_f32 v{vDt}, s34, v{vDt}\nv_exp_f32 v{vDt}, v{vDt}\ns_nop 0\nv_cvt_pk_bf16_f32 v{vDt}, 0, v{vDt}\nv_add_f32 v{vDt+1}, v{vDt}, v{vDt}")
    c = 1 / (2 * math.pi); chi = struct.unpack("<f", struct.pack("<f", c))[0]; clo = c - chi
    a(f"s_mov_b32 s12, {fh(chi)}\ns_mov_b32 s13, {fh(clo)}\ns_mov_b32 s14, {fh(LOG2E)}\ns_mov_b32 s15, 0x41000000\ns_mov_b32 s16, 0x43800000")
    st(1)
    def stat_loads():
        for k in range(4): a(f"buffer_load_dwordx4 {vr(ST+4*k,4)}, v{vSt}, s[64:67], 0 offen offset:{16*k} sc1")
    pend = []
    for p in range(3):
        q = PAR + 4 * p; t = P
        a("s_waitcnt vmcnt(9)")
        o = [f"v_mul_f32 v{q}, s14, v{q}", f"v_exp_f32 v{q}, v{q}", f"v_mul_f32 v{q+1}, v{q+1}, v{vDt}",
             f"v_mul_f32 v{t}, s12, v{q+1}", f"v_fma_f32 v{t+1}, v{q+1}, s12, -v{t}", f"v_cvt_pk_bf16_f32 v{q}, 0, v{q}",
             f"v_fma_f32 v{t+1}, v{q+1}, s13, v{t+1}", f"v_mul_f32 v{q}, v{q}, v{vDt}", f"v_fract_f32 v{t+2}, v{t}",
             f"v_mul_f32 v{q}, s14, v{q}",
             f"v_mul_f32 v{t+3}, s15, v{t+2}", f"v_mul_f32 v{t+4}, s16, v{t+2}", f"v_add_f32 v{t+2}, v{t+2}, v{t+1}",
             f"v_fract_f32 v{t+3}, v{t+3}", f"v_fract_f32 v{t+4}, v{t+4}",
             f"v_fma_f32 v{t+3}, v{t+1}, s15, v{t+3}", f"v_fma_f32 v{t+4}, v{t+1}, s16, v{t+4}",
             f"v_mul_f32 v{t+6}, s15, v{q}", f"v_mul_f32 v{t+8}, s16, v{q}",
             f"v_cos_f32 v{W8}, v{t+3}", f"v_sin_f32 v{W8+1}, v{t+3}", f"v_exp_f32 v{t+6}, -v{t+6}",
             f"v_cos_f32 v{W1}, v{t+2}", f"v_sin_f32 v{W1+1}, v{t+2}", f"v_exp_f32 v{t+10}, -v{q}",
             f"v_cos_f32 v{W256}, v{t+4}", f"v_sin_f32 v{W256+1}, v{t+4}", f"v_exp_f32 v{t+8}, -v{t+8}",
             f"v_mul_f32 v{E[0]}, v{q+2}, v{vDt+1}", f"v_mul_f32 v{E[0]+1}, v{q+3}, v{vDt+1}",
             f"v_mul_f32 v{W8}, v{W8}, v{t+6}", f"v_mul_f32 v{W8+1}, v{W8+1}, v{t+6}", f"v_mul_f32 v{W1}, v{W1}, v{t+10}", f"v_mul_f32 v{W1+1}, v{W1+1}, v{t+10}",
             f"v_mul_f32 v{W256}, v{W256}, v{t+8}", f"v_mul_f32 v{W256+1}, v{W256+1}, v{t+8}"]
        at = [1, 6, 12, 18, 21, 24, 27, 32]
        for i, x in enumerate(o):
            a(x)
            if pend and i in at: a(pend.pop(0))
        assert not pend
        R = {1: W1, 8: W256, "w8": W8}
        nxt = P
        plan = {2: (1, W1), 3: (2, W1), 4: (3, W1), 5: (4, W1), 6: (5, W1), 7: (6, W1),
                10: (2, W256), 11: (4, W256), 14: (6, W256), 15: ("w8", W256),
                16: (8, W256), 17: (11, W256), 18: (15, W256), 20: (16, W256), 21: (17, W256), 22: (18, W256),
                24: (20, W256), 25: (22, W256), 26: (24, W256), 27: (25, W256), 28: (26, W256), 29: (27, W256), 30: (28, W256), 31: (29, W256)}
        wr = []
        for j in range(32):
            e = E[j & 1]; pk = PK + 2 * (j & 7)
            xm = []
            if j in plan:
                R[j] = nxt; nxt += 2; xm = cmul(R[j], R[plan[j][0]], plan[j][1])
            em = cmul(E[(j + 1) & 1], e, W8) if j < 31 else []
            if xm: a(xm[0])
            if em: a(em[0])
            if xm: a(xm[1])
            a(f"v_cvt_pk_bf16_f32 v{pk}, v{e}, v{e+1}")
            if em: a(em[1])
            wr.append(f"ds_write_addtid_b32 v{pk} offset:{272*j}")
            if j in R:
                a(f"v_cvt_pk_bf16_f32 v{pk+1}, v{R[j]}, -v{R[j]+1}")
                wr.append(f"ds_write_addtid_b32 v{pk+1} offset:{8704+272*j}")
            if j & 7 == 7:
                for x in wr: a(x)
                wr = []
                if p < 2 and j in (7, 23): a(gath.pop(0)); a(gath.pop(0))
                if p == 2 and j == P0.get("stj", 15): stat_loads()
        for s in range(8):
            a(f"ds_read_b128 {vr(FA+4*s,4)}, v{vA} offset:{8704+32*s}\nds_read_b128 {vr(FB+4*s,4)}, v{vB} offset:{32*s}")
        d = vr(ACC, 16)
        pend = [f"s_waitcnt lgkmcnt({14-2*s})\nv_mfma_f32_32x32x16_bf16 {d}, {vr(FA+4*s,4)}, {vr(FB+4*s,4)}, {d if (p or s) else 0}" for s in range(8)]
    st(3)
    XF = P; XP = PK
    a("s_waitcnt vmcnt(4)\ns_mov_b32 s12, 0x05040100\ns_mov_b32 s13, 0x07060302")
    fl = []
    for ch in range(4):
        for k, (r0, r1) in enumerate(((0, 2), (4, 6), (1, 3), (5, 7))):
            fl.append(f"v_perm_b32 v{XP+4*ch+k}, v{XR+2*r1+(ch>>1)}, v{XR+2*r0+(ch>>1)}, s{12+(ch&1)}")
    for i in range(16): fl += [f"v_lshlrev_b32 v{XF+2*i}, 16, v{XR+i}", f"v_and_b32 v{XF+2*i+1}, 0xffff0000, v{XR+i}"]
    for s in range(8):
        a(pend[s])
        for x in fl[6*s:6*s+6]: a(x)
    a(f"v_add_u32 v{vT3}, {XO}, v{vTh}\nv_mov_b32 v{FA}, 0\nv_mov_b32 v{FA+1}, 0\nv_lshl_add_u32 v{vT0}, v{vL}, 3, s32")
    a(f"v_bfe_u32 v{vT1}, v{vL}, 4, 1\nv_mul_u32_u24 v{vT1}, {UBO}, v{vT1}\nv_and_b32 v{vT2}, 15, v{vL}\nv_lshl_add_u32 v{vT1}, v{vT2}, 3, v{vT1}\nv_add_u32 v{vT1}, s32, v{vT1}")
    for ch in range(4): a(f"ds_write_b128 v{vT3}, {vr(XP+4*ch,4)} offset:{RW*ch}")
    a(f"ds_write_b64 v{vT0}, {vr(FA,2)}\nds_write_b64 v{vT0}, {vr(FA,2)} offset:{K1O}\nds_write_b64 v{vT1}, {vr(FA,2)} offset:{UO}")
    c = ACC; o = FB
    cv = lambda d, x, y: a(f"v_cvt_pk_bf16_f32 v{d}, v{x}, {'v%d' % y if y is not None else 0}")
    a(f"v_add_f32 v{c}, v{c}, v{vD}")
    for i in range(2): a(f"v_cndmask_b32 v{vT0+i}, v{c+12+2*i}, v{c+13+2*i}, s[68:69]")
    cv(o, c+3, c+2); cv(o+1, c+1, c); cv(o+2, c+7, c+6); cv(o+3, c+5, c+4)
    cv(o+4, c+2, c+1); cv(o+5, c, None); cv(o+6, c+6, c+5); cv(o+7, c+4, c+4)
    cv(o+8, c+10, c+10); cv(o+9, c+9, c+9); cv(o+10, c+9, c+8); cv(o+11, c+8, c+8)
    cv(o+12, c+10, c+9); cv(o+13, c+9, c+9); cv(o+14, c+8, c+8); cv(o+15, c+8, c+8)
    for i in range(2):
        x = c + 12 + 2 * i; y = x + 1; b = o + 16 + 8 * i
        cv(b, y, y); cv(b+1, y, vT0+i); cv(b+2, x, x); cv(b+3, x, x)
        cv(b+4, y, y); cv(b+5, vT0+i, x); cv(b+6, x, x); cv(b+7, x, x)
    a(f"ds_write_b64 v{vK8}, {vr(o,2)} offset:{K1O}\nds_write_b64 v{vK8}, {vr(o+2,2)} offset:{K1O+512}")
    a(f"ds_write_b64 v{vK8}, {vr(o+4,2)}\nds_write_b64 v{vK8}, {vr(o+6,2)} offset:512\nds_write_b16 v{vKp}, v{o}")
    a(f"ds_write_b128 v{vK16}, {vr(o+8,4)} offset:{K1O+1024}\nds_write_b128 v{vK16}, {vr(o+12,4)} offset:1024")
    for i in range(2):
        a(f"ds_write_b128 v{vK32}, {vr(o+16+8*i,4)} offset:{K1O+2048+512*i}\nds_write_b128 v{vK32}, {vr(o+20+8*i,4)} offset:{2048+512*i}")
    st(4)
    L = a.label("SL"); Dn = a.label("SD")
    a(f"s_movk_i32 s58, 0x7fff\n{L}:\ns_waitcnt vmcnt(0)")
    for k in range(8): a(f"v_xor_b32 v{ST+2*k+1}, {TAG}, v{ST+2*k+1}")
    a(f"v_or3_b32 v{vT0}, v{ST+1}, v{ST+3}, v{ST+5}\nv_or3_b32 v{vT1}, v{ST+7}, v{ST+9}, v{ST+11}\nv_or3_b32 v{vT0}, v{vT0}, v{ST+13}, v{ST+15}\nv_or_b32 v{vT0}, v{vT0}, v{vT1}")
    a(f"v_cmp_ne_u32 vcc, 0, v{vT0}\ns_cbranch_vccz {Dn}")
    stat_loads()
    a(f"s_sub_u32 s58, s58, 1\ns_cbranch_scc0 {L}\ns_waitcnt vmcnt(0)\n{Dn}:")
    st(5)
    for i in range(8): a(f"v_and_b32 v{ST+2*i+1}, 0xffff0000, v{ST+2*i}\nv_lshlrev_b32 v{ST+2*i}, 16, v{ST+2*i}")
    for i in range(8):
        for k in range(2): a(f"v_pk_add_f32 {vr(XF+4*i+2*k,2)}, {vr(XF+4*i+2*k,2)}, {vr(ST+2*i,2)} op_sel_hi:[1,0] neg_lo:[0,1] neg_hi:[0,1]")
        a(f"v_rcp_f32 v{ST+2*i+1}, v{ST+2*i+1}")
    for i in range(32): a(f"v_cvt_pk_bf16_f32 v{XF+i}, 0, v{XF+i}")
    for i in range(8):
        for k in range(2): a(f"v_pk_mul_f32 {vr(XF+4*i+2*k,2)}, {vr(XF+4*i+2*k,2)}, {vr(ST+2*i,2)} op_sel:[0,1] op_sel_hi:[1,1]")
    U = FA
    for ch in range(4):
        for k in range(4): cv(U + 6 * ch + k, XF + 8 * k + ch, XF + 8 * k + 4 + ch)
        for k in (1, 2): cv(U + 6 * ch + 3 + k, XF + 8 * k + ch, XF + 8 * k + 4 + ch)
    a(f"v_add_u32 v{vT0}, {UO+64}, v{vTh}")
    for ch in range(4): a(f"v_add_u32 v{XR+ch}, {UO+UBO+64+RW*ch}, v{vTh}")
    a("s_waitcnt lgkmcnt(0)\ns_barrier")
    for ch in range(4):
        a(f"ds_write_b128 v{vT0}, {vr(U+6*ch,4)} offset:{RW*ch}\nds_write_b64 v{XR+ch}, {vr(U+6*ch+4,2)} offset:8")
        a(f"ds_write2_b32 v{XR+ch}, v{U+6*ch}, v{U+6*ch+3} offset0:1 offset1:4")
    w1f_setup(a, vFw)
    a(f"s_lshl_b32 s33, s30, 12")
    a("s_waitcnt lgkmcnt(0)\ns_barrier")
    st(6)
    rw = P0.get("rw", 3); nin = P0.get("nin", 20)
    wl = w1f_loads(0, nin)
    CA = 24; FT = [56, 120]; FG = [88, 152]; X = 184; XU = 200
    def reads(r):
        p = r & 1; o = []
        for i in range(8):
            o.append(f"ds_read_b128 {vr(FG[p]+4*i,4)}, v{vKa} offset:{512*i+64*(7-r)}")
            for hh in range(2): o.append(f"ds_read_b64 {vr(FT[p]+4*i+2*hh,2)}, v{vUa} offset:{512*i+64*r+8*hh}")
        return o
    for x in reads(0): a(x)
    for r in range(8):
        p = r & 1
        mf = []
        for sg in range(8):
            for dl in range(8 - sg):
                d = vr(CA + 4 * (sg + dl), 4)
                mf.append(f"v_mfma_f32_16x16x32_bf16 {d}, {vr(FT[p]+4*sg,4)}, {vr(FG[p]+4*dl,4)}, {d if (r or sg) else 0}")
        fill = [[] for _ in range(36)]
        if r < 7:
            for i, x in enumerate(reads(r + 1)): fill[i].append(x)
        if r == rw - 2: fill[25].append(f"buffer_load_dword v{vD}, v{vFw}, s[64:67], 0 offen sc1")
        if r == rw - 1: fill[34] += ["s_waitcnt vmcnt(0)", f"v_cmp_ne_u32 s[70:71], {TAG}, v{vD}"]
        if r >= rw:
            n = -(-len(wl) // (8 - r))
            for k in range(n): fill[(36 * k + 18) // n].append(wl.pop(0))
        if r == 6:
            for q in range(8): fill[24 + q].append(f"ds_read_b64 {vr(X+2*q,2)}, v{vXr} offset:{512*q}")
        if r == 7:
            for i in range(16): fill[i] += [f"v_lshlrev_b32 v{XU+2*i}, 16, v{X+i}", f"v_and_b32 v{XU+2*i+1}, 0xffff0000, v{X+i}"]
            done = {q: sum(8 - s for s in range(q)) + 8 for q in range(8)}
            ep = []
            for q in range(4):
                for k in range(4): ep.append((done[q], f"v_add_f32 v{CA+4*q+k}, v{CA+4*q+k}, v{XU+4*q+k}"))
                for k in range(2): ep.append((done[q], f"v_cvt_pk_bf16_f32 v{X+2*q+k}, v{CA+4*q+2*k}, v{CA+4*q+2*k+1}"))
            for i in range(16, 36):
                for _ in range(2):
                    if ep and ep[0][0] <= i: fill[i].append(ep.pop(0)[1])
            assert not ep
        a("s_waitcnt lgkmcnt(0)")
        for x in interleave(mf, fill): a(x)
    assert not wl
    st(7)
    for Q in range(2): a(f"buffer_store_dwordx4 {vr(X+4*Q,4)}, v{vWa}, s[8:11], s33 offen offset:{1024*Q} sc1")
    for q in range(4, 8):
        if q == 6: a("s_nop 0")
        for k in range(2): a(f"v_pk_add_f32 {vr(CA+4*q+2*k,2)}, {vr(CA+4*q+2*k,2)}, {vr(XU+4*q+2*k,2)}")
        for k in range(2): a(f"v_cvt_pk_bf16_f32 v{X+2*q+k}, v{CA+4*q+2*k}, v{CA+4*q+2*k+1}")
        if q & 1: a(f"buffer_store_dwordx4 {vr(X+2*q-2,4)}, v{vWa}, s[8:11], s33 offen offset:{512*(q-1)} sc1")
    a(f"s_lshl_b32 s31, s29, 6\ns_add_u32 s31, s31, {F_1}\ns_waitcnt vmcnt(0)")
    st(2)
    a("s_barrier\ns_cmp_lg_u32 s28, 0\ns_cbranch_scc1 M_NF")
    setflag(a, "s31")
    a("M_NF:\ns_cmp_eq_u64 s[70:71], 0\ns_cbranch_scc1 P_MID\ns_mul_i32 s39, s3, 12288\ns_add_u32 s39, s39, s57\ns_branch P_WALL")

def gen_help(a, st):
    vX, vFw = 11, 22
    S, M, RAW, XF = 24, 32, 36, 76
    a(f"v_lshrrev_b32 v{vT0}, 3, v{vL}\nv_and_b32 v{vT1}, 7, v{vL}\nv_lshlrev_b32 v{vT1}, 4, v{vT1}\ns_movk_i32 s33, 1280\nv_mad_u32_u24 v{vX}, v{vT0}, s33, v{vT1}")
    a("s_cmp_ge_u32 s29, 32\ns_cbranch_scc1 H_RB")
    a("s_lshl_b32 s34, s29, 2\ns_add_u32 s34, s34, s28\ns_lshl_b32 s30, s29, 1\ns_add_u32 s30, s30, s28\ns_sub_u32 s46, s30, 2")
    a("s_cmp_lt_u32 s28, 2\ns_cselect_b32 s30, s30, 256\ns_cselect_b32 s46, 128, s46\ns_branch H_RJ\nH_RB:")
    a("s_mul_i32 s31, s29, 3\ns_add_u32 s31, s31, s28\ns_add_u32 s34, s31, 32\ns_sub_u32 s30, s31, 33\ns_add_u32 s46, s29, 32")
    a("s_cmp_eq_u32 s28, 0\ns_cselect_b32 s30, 256, s30\ns_cmp_eq_u32 s28, 3\ns_cselect_b32 s34, 320, s34\ns_cselect_b32 s46, s46, 128\nH_RJ:")
    a(f"s_load_dwordx2 s[44:45], s[0:1], {KA['wd']}\ns_mul_i32 s31, s30, 10240\ns_mul_i32 s32, s28, {RW}")
    w1_voff(a)
    a("s_waitcnt lgkmcnt(0)")
    a(f"s_add_u32 s64, s4, {FL_OFF}\ns_addc_u32 s65, s5, 0\ns_load_dword s59, s[64:65], 0\ns_mov_b32 s66, 0x20000\ns_mov_b32 s67, 0x20000")
    a.srd(24, 8, 0, 2048 * 1280)
    a.srd(12, 40, 0, 640 * 3072); a.srd(16, 42, 0, 640 * 3072)
    a("s_cmp_ge_u32 s30, 256\ns_cbranch_scc1 H_NX")
    for i in range(10): a(f"buffer_load_dwordx4 {vr(RAW+4*i,4)}, v{vX}, s[24:27], s31 offen offset:{128*i}")
    a("H_NX:\ns_waitcnt lgkmcnt(0)\ns_barrier\ns_add_u32 s59, s59, 1\ns_cmp_ge_u32 s34, 320\ns_cbranch_scc1 H_NW")
    a(f"s_lshr_b32 s35, s34, 4\ns_and_b32 s36, s34, 15\ns_mul_i32 s37, s35, 98304\ns_mul_i32 s38, s36, 192\ns_add_u32 s37, s37, s38\ns_add_u32 s38, s37, {16*3072}")
    for g in range(4):
        a(f"s_add_u32 m0, s32, {3072*g}\ns_nop 0")
        for i in range(3): a(f"buffer_load_dwordx4 v{vWd[i]}, s[{12+4*(g>>1)}:{15+4*(g>>1)}], s{37+(g&1)} offen offset:{1024*i} lds")
    a("s_mul_i32 s36, s36, 245760\ns_mul_i32 s35, s35, 12288\ns_add_u32 s35, s35, s36\ns_branch H_J1\nH_NW:\ns_waitcnt vmcnt(0)\nH_J1:")
    st(1)
    a("s_cmp_ge_u32 s30, 256\ns_cbranch_scc1 H_NOST")
    for i in range(10):
        a(f"s_waitcnt vmcnt({12+9-i})")
        if i == 0: st(2)
        for k in range(4):
            a(f"v_lshlrev_b32 v{XF+8*i+2*k}, 16, v{RAW+4*i+k}\nv_and_b32 v{XF+8*i+2*k+1}, 0xffff0000, v{RAW+4*i+k}")
        for k in range(4):
            if i == 1: a(f"v_pk_add_f32 {vr(S+2*k,2)}, {vr(XF+2*k,2)}, {vr(XF+8+2*k,2)}")
            elif i > 1: a(f"v_pk_add_f32 {vr(S+2*k,2)}, {vr(S+2*k,2)}, {vr(XF+8*i+2*k,2)}")
    def red():
        a(f"v_pk_add_f32 {vr(S,2)}, {vr(S,2)}, {vr(S+2,2)}\nv_pk_add_f32 {vr(S+4,2)}, {vr(S+4,2)}, {vr(S+6,2)}\nv_pk_add_f32 {vr(S,2)}, {vr(S,2)}, {vr(S+4,2)}\nv_add_f32 v{S}, v{S}, v{S+1}")
        for m in ("quad_perm:[1,0,3,2]", "quad_perm:[2,3,0,1]", "row_half_mirror"):
            a(f"s_nop 1\nv_add_f32_dpp v{S}, v{S}, v{S} {m} row_mask:0xf bank_mask:0xf")
        a(f"v_mul_f32 v{S}, 0x3acccccd, v{S}")
    red()
    a(f"v_mov_b32 v{M}, v{S}")
    for i in range(41):
        if i < 40:
            x = vr(XF + 2 * i, 2); a(f"v_pk_add_f32 {x}, {x}, {vr(M,2)} op_sel_hi:[1,0] neg_lo:[0,1] neg_hi:[0,1]")
        if i >= 1:
            k = i - 1; y = vr(XF + 2 * k, 2); s = vr(S + 2 * (k & 3), 2)
            a(f"v_pk_mul_f32 {s}, {y}, {y}" if k < 4 else f"v_pk_fma_f32 {s}, {y}, {y}, {s}")
    red()
    a(f"v_cvt_pk_bf16_f32 v{S}, 0, v{S}\nv_add_f32 v{S}, 0x3727c5ac, v{S}\nv_cvt_pk_bf16_f32 v{S}, 0, v{S}\nv_sqrt_f32 v{S}, v{S}")
    a(f"v_mov_b32 v{S+3}, {TAG}\nv_cvt_pk_bf16_f32 v{S+2}, v{M}, v{S}\ns_lshl_b32 s31, s30, 6\ns_add_u32 s31, s31, {F_ST}")
    a(f"s_mov_b32 exec_lo, 0x01010101\ns_mov_b32 exec_hi, 0x01010101\nbuffer_store_dwordx2 {vr(S+2,2)}, v{vL}, s[64:67], s31 offen sc1\ns_mov_b64 exec, -1")
    a("H_NOST:")
    st(3)
    FR = 24
    a(f"v_lshlrev_b32 v{vX}, 4, v{vL}\ns_cmp_ge_u32 s34, 320\ns_cbranch_scc1 H_W2B")
    w1_addr(a, "s32")
    a.srd(12, 4, W1_OFF, 16 * 245760)
    a("s_waitcnt vmcnt(0)")
    for ww in range(4):
        for x in w1_frag(lambda k: vr(FR + 12 * ww + k, 2), 48 * ww): a(x)
        if ww == 1: a("s_waitcnt lgkmcnt(3)")
    for f in range(12):
        if f % 3 == 0: a(f"s_waitcnt lgkmcnt({min(12, 18-2*f)})")
        a(f"buffer_store_dwordx4 {vr(FR+4*f,4)}, v{vX}, s[12:15], s35 offen offset:{1024*(f&3)} sc1")
        if f & 3 == 3: a("s_add_u32 s35, s35, 4096")
    a(f"s_lshl_b32 s34, s34, 6\ns_add_u32 s34, s34, {F_W}\ns_waitcnt vmcnt(0)")
    setflag(a, "s34")
    a("H_W2B:")
    st(4)
    a("s_cmp_ge_u32 s46, 128\ns_cbranch_scc1 H_J2")
    a.srd(12, 44, 0, 1536 * 1280)
    a(f"s_lshr_b32 s36, s46, 3\ns_and_b32 s35, s46, 7\ns_mul_i32 s37, s36, {96*1280}\ns_mul_i32 s38, s35, 160\ns_add_u32 s37, s37, s38")
    vD = [12, 13, 14, 15, 16]
    for j in range(5):
        a(f"v_add_u32 v{vT0}, {64*j}, v{vL}\nv_mul_u32_u24 v{vT1}, 6554, v{vT0}\nv_lshrrev_b32 v{vT1}, 16, v{vT1}\nv_mul_u32_u24 v{vT1}, {1280-160}, v{vT1}\nv_lshl_add_u32 v{vD[j]}, v{vT0}, 4, v{vT1}")
    for g in range(3):
        for j in range(5): a(f"s_add_u32 m0, s32, {5120*g+1024*j}\ns_nop 0\nbuffer_load_dwordx4 v{vD[j]}, s[12:15], s37 offen lds")
        a(f"s_add_u32 s37, s37, {32*1280}")
    a("s_mul_i32 s35, s35, 245760\ns_mul_i32 s36, s36, 15360\ns_add_u32 s35, s35, s36")
    a.srd(12, 4, W2_OFF, 8 * 245760)
    vR = 12
    a(f"v_lshrrev_b32 v{vT0}, 4, v{vL}\nv_lshlrev_b32 v{vT0}, 3, v{vT0}\nv_bfe_u32 v{vT1}, v{vL}, 2, 2\nv_and_b32 v{vT2}, 3, v{vL}\nv_lshlrev_b32 v{vT2}, 3, v{vT2}\ns_movk_i32 s33, 160")
    for q in range(3):
        for h in range(2):
            tb = 0
            for kq in range(4):
                sl = 4 * q + kq; ww, i = sl // 3, sl % 3
                tb |= (24 * ww + (4 * i + 8 * h if i < 2 else 16 + 4 * h)) << (8 * kq)
            r = vR + 4 * q + 2 * h
            a(f"s_mov_b32 s36, {hex(tb)}\nv_bfe_u32 v{vT3}, s36, v{vT0}, 8\nv_add_u32 v{vT3}, v{vT3}, v{vT1}\nv_mad_u32_u24 v{vT3}, v{vT3}, s33, v{vT2}")
            a(f"v_add_u32 v{r+1}, s32, v{vT3}\nv_add_u32 v{r}, v{r+1}, v{vT2}")
    a("s_waitcnt vmcnt(0)")
    for q in range(3):
        for dt in range(5):
            for h in range(2):
                r = vR + 4 * q + 2 * h
                a(f"ds_read_b64_tr_b16 {vr(FR+20*q+4*dt+2*h,2)}, v{r if dt < 4 else r+1} offset:{64*(dt>>1)+8*(dt&1)}")
        a("s_waitcnt lgkmcnt(0)")
        for dt in range(5):
            f = 5 * q + dt
            a(f"buffer_store_dwordx4 {vr(FR+4*f,4)}, v{vX}, s[12:15], s35 offen offset:{1024*(f&3)} sc1")
            if f & 3 == 3: a("s_add_u32 s35, s35, 4096")
    a(f"s_lshl_b32 s34, s46, 6\ns_add_u32 s34, s34, {F_W+320*64}\ns_waitcnt vmcnt(0)")
    setflag(a, "s34")
    a("H_J2:")
    st(5)
    w1f_setup(a, vFw)
    a("s_barrier")
    st(6); st(7)

vH = [11, 12]; vB = 16; vO1, vO2, vPw, vPr, vPp, vF1, vL16 = 13, 14, 15, 24, 25, 26, 27
SUM, SQ, CS, ACC, FB, TMP = 28, 36, 44, 60, [156, 188], 220
def g1_setup(a, P):
    a.srd(8, 4, HT_OFF, 640 * 4096)
    a.srd(16, 4, HH_OFF, 128 * 49152)
    a(f"v_lshrrev_b32 v{vT0}, 4, v{vL}\nv_and_b32 v{vT1}, 15, v{vL}\nv_lshlrev_b32 v{vT2}, 1, v{vT0}\nv_xor_b32 v{vT2}, v{vT1}, v{vT2}")
    a(f"v_lshlrev_b32 v{vT2}, 4, v{vT2}\nv_lshl_add_u32 v{vH[0]}, v{vT0}, 12, v{vT2}\nv_xor_b32 v{vH[1]}, 128, v{vH[0]}\nv_add_u32 v{vH[1]}, {4*4096-1024}, v{vH[1]}")
    a(f"s_lshl_b32 s20, s28, 15\ns_lshl_b32 s25, s60, 8\ns_add_u32 s20, s20, s25\ns_lshl_b32 s26, s28, 11\ns_add_u32 s21, s20, {20*131072}\ns_lshl_b32 s24, s3, 17\ns_add_u32 s24, s24, s20")
    a.srd(48, 4, W2_OFF, 8 * 245760)
    a("s_and_b32 s55, s62, 3\ns_lshr_b32 s31, s63, 2\ns_add_u32 s55, s55, s31\ns_sub_u32 s31, s55, 3\ns_cselect_b32 s55, s55, s31")
    if P.get("norot2"): a("s_mov_b32 s55, 0")
    a(f"v_lshrrev_b32 v{vT2}, 3, v{vL}\nv_and_b32 v{vT3}, 7, v{vL}\nv_lshlrev_b32 v{vT3}, 4, v{vT3}\nv_lshl_add_u32 v6, v{vT2}, 12, v{vT3}")
    a("s_mul_i32 s46, s63, 80\ns_mul_i32 s47, s28, 24\ns_add_u32 s46, s46, s47\ns_lshl_b32 s46, s46, 12\ns_lshl_b32 s47, s62, 7\ns_add_u32 s46, s46, s47\ns_mul_i32 s47, s28, 3072")
    a("s_mul_i32 s54, s63, 245760\ns_mul_i32 s31, s28, 61440\ns_add_u32 s54, s54, s31\ns_add_u32 s53, s54, 61440\ns_mul_i32 s52, s55, 20480\ns_add_u32 s52, s52, s54")
    a(f"v_lshrrev_b32 v{vT2}, 2, v{vL}\nv_and_b32 v{vT3}, 7, v{vT2}\ns_lshl_b32 s27, s28, 1\nv_xor_b32 v{vT3}, s27, v{vT3}\nv_lshlrev_b32 v{vT3}, 5, v{vT3}")
    a(f"v_lshl_add_u32 v{vT3}, v{vT2}, 8, v{vT3}\nv_and_b32 v{vT2}, 3, v{vL}\nv_lshl_add_u32 v{vB}, v{vT2}, 3, v{vT3}")
    for i in range(1, 8): a(f"v_xor_b32 v{vB+i}, {32*i}, v{vB}")
    a(f"v_lshlrev_b32 v{vT1}, 4, v{vT1}\nv_lshrrev_b32 v{vT2}, 5, v{vL}\nv_and_b32 v{vT3}, 1, v{vT0}")
    a(f"s_mov_b32 s38, 49152\nv_mad_u32_u24 v{vO2}, v{vT2}, s38, v{vT1}\nv_lshl_add_u32 v{vO1}, v{vT3}, 8, v{vO2}")
    a(f"s_and_b32 s30, s28, 1\nv_xor_b32 v{vT3}, s30, v{vT3}\nv_mul_u32_u24 v{vT3}, 98304, v{vT3}\nv_add3_u32 v{vO2}, v{vO2}, v{vT3}, s38\nv_subrev_u32 v{vO2}, {49152-512}, v{vO2}")
    a("s_mul_i32 s30, s60, 393216\ns_mul_i32 s31, s61, 3072\ns_add_u32 s30, s30, s31\ns_mul_i32 s31, s28, 768\ns_add_u32 s30, s30, s31")
    for p in range(4): a(f"s_xor_b32 s31, s28, {p}\ns_mul_i32 s31, s31, 98304\ns_add_u32 s{32+p}, s30, s31")
    for q in range(2): a(f"s_lshr_b32 s31, s28, 1\ns_xor_b32 s31, s31, {q}\ns_mul_i32 s31, s31, 196608\ns_add_u32 s{36+q}, s30, s31")
    a(f"s_lshl_b32 s31, s28, 9\nv_add_u32 v{vPr}, s31, v{vT1}\nv_lshl_add_u32 v{vPp}, v{vT2}, 8, v{vPr}")
    a(f"v_lshrrev_b32 v{vT2}, 2, v{vL}\nv_xor_b32 v{vT2}, v{vT2}, v{vT0}\nv_and_b32 v{vT2}, 1, v{vT2}\nv_lshl_add_u32 v{vPw}, v{vT2}, 11, v{vPp}")
    a(f"v_lshrrev_b32 v{vT0}, 1, v{vL}\nv_and_b32 v{vT1}, 1, v{vL}\nv_lshl_add_u32 v{vT0}, v{vT0}, 3, v{vT1}\ns_lshl_b32 s31, s28, 7\ns_add_u32 s31, s31, {F_1}\nv_lshl_add_u32 v{vT0}, v{vT0}, 6, s31")
    a(f"s_lshl_b32 s31, s28, 5\ns_add_u32 s31, s31, s63\ns_lshl_b32 s31, s31, 6\ns_add_u32 s31, s31, {F_W+320*64}\nv_and_b32 v{vT1}, 3, v{vL}\nv_lshl_add_u32 v{vT1}, v{vT1}, 9, s31")
    a(f"v_cmp_gt_u32 vcc, 40, v{vL}\ns_mov_b32 s68, 0xaaaaaaaa\ns_mov_b32 s69, s68\nv_cndmask_b32 v{vF1}, v{vT1}, v{vT0}, vcc")
    a("s_mov_b32 s70, 0xcccccccc\ns_mov_b32 s71, s70\ns_mov_b32 s72, 0xff00ff00\ns_mov_b32 s73, s72\ns_mov_b32 s74, 0\ns_mov_b32 s75, -1")
    for i in range(4): a(f"v_mov_b32 v{TMP+i}, 0x3f803f80")
def cs_mf(s):
    return [f"v_mfma_f32_16x16x32_bf16 {vr(CS+4*t,4)}, {ar(12*s+4*t,4)}, {vr(TMP,4)}, {vr(CS+4*t,4) if s else 0}" for t in range(3)]
def gen_mid1(a, st, P):
    nin = P.get("nin", 20)
    a("P_WALL:")
    poll(a, 22, 23)
    for x in w1f_loads(0, nin): a(x)
    a("s_waitcnt vmcnt(0)\nP_MID:")
    for x in w1f_loads(nin, 20): a(x)
    st(8)
    g1_setup(a, P)
    a(f"buffer_load_dword v{vT3}, v{vF1}, s[64:67], 0 offen sc1")
    for s in range(20):
        if s >= nin: a(f"s_waitcnt vmcnt({3*(19-s)+1})")
        for x in cs_mf(s): a(x)
    poll(a, vF1, vT3, pre=0)
    st(9)
def h_dma(s):
    return [f"s_add_u32 m0, s26, {8192*s}", "s_nop 0", f"buffer_load_dwordx4 v{vH[0]}, s[8:11], s24 offen sc1 lds",
            f"buffer_load_dwordx4 v{vH[1]}, s[8:11], s24 offen offset:1024 sc1 lds", "s_add_u32 s24, s24, 131072", "s_cmp_eq_u32 s24, s21", "s_cselect_b32 s24, s20, s24"]
def w2f_load(f):
    x = f"buffer_load_dwordx4 {ar(4*f,4)}, v{vWa}, s[48:51], s52 offen offset:{1024*(f&3)} sc1"
    if f & 3 == 3 and f < 59: x += "\ns_add_u32 s52, s52, 4096"
    if f in (19, 39): x += "\ns_cmp_eq_u32 s52, s53\ns_cselect_b32 s52, s54, s52"
    return x
RES = 8192; RED = 24576
def g1_main(a, st, P):
    up = P.get("up", 10); bars = P.get("bars", [0, 1, 2, 4, 6, 8, 10, 12, 14, 16, 18])
    for s in range(up):
        for x in h_dma(s): a(x)
    for i in range(4): a(f"v_mov_b32 v{CS+12+i}, v{CS+8+i}")
    a("s_nop 1")
    for i in range(4): a(f"v_permlane32_swap_b32 v{CS+8+i}, v{CS+12+i}")
    def reads(s):
        p = s & 1
        return [f"ds_read_b64_tr_b16 {vr(FB[p]+4*i+2*h,2)}, v{vB+i} offset:{8192*(s&7)+4096*h}" for i in range(8) for h in range(2)]
    issued = up
    q = [c for c in range(up) for _ in range(2)]
    def sync(s):
        nb = min([b for b in bars if b > s] + [20])
        assert issued >= nb, (s, issued, nb)
        last = max(i for i, c in enumerate(q) if c == nb - 1)
        n = len(q) - 1 - last
        assert n < 60
        return [f"s_waitcnt vmcnt({n})", "s_barrier"]
    wp = P.get("w2pos", (17, 21, 25))
    for x in sync(0): a(x)
    st(10)
    for x in reads(0): a(x)
    a("s_or_b32 s31, s2, s28\ns_cbranch_scc1 M_NE")
    setflag(a, "0")
    a("M_NE:")
    for s in range(20):
        p = s & 1
        mf = []
        for ti in range(2):
            mf.append(f"v_mfma_f32_16x16x32_bf16 {vr(SQ+4*ti,4)}, {vr(FB[p]+4*ti,4)}, {vr(FB[p]+4*ti,4)}, {vr(SQ+4*ti,4) if s else 0}")
            mf.append(f"v_mfma_f32_16x16x32_bf16 {vr(SUM+4*ti,4)}, {vr(TMP,4)}, {vr(FB[p]+4*ti,4)}, {vr(SUM+4*ti,4) if s else 0}")
        for i in range(8):
            for t in range(3):
                d = vr(ACC + 12 * i + 4 * t, 4)
                mf.append(f"v_mfma_f32_16x16x32_bf16 {d}, {ar(12*s+4*t,4)}, {vr(FB[p]+4*i,4)}, {d if s else 0}")
        fill = [[] for _ in range(28)]
        a("s_waitcnt lgkmcnt(0)")
        if s < 19:
            if s + 1 in bars: fill[0] += sync(s + 1)
            if (s + 1) % 8 == 0: fill[0] += [f"v_add_u32 v{vB+i}, 0x10000, v{vB+i}" for i in range(8)]
            for i, x in enumerate(reads(s + 1)): fill[i].append(x)
            if issued < 20:
                d = h_dma(issued); issued += 1
                fill[19] += d[:3]; fill[23] += d[3:]
                ev = [(19, issued - 1), (23, issued - 1)]
            else: ev = []
            if s >= 1:
                for k in range(3): fill[wp[k]].append(w2f_load(3 * (s - 1) + k)); ev.append((wp[k] + 0.5, -1))
            q += [c for _, c in sorted(ev)]
        else:
            t = TMP + 4; q = SQ; S = SUM
            K1 = -LOG2E * 1.5957691216057308
            vs = [f"v_cndmask_b32 v{q}, v{q}, v{q+1}, s[68:69]", f"v_cndmask_b32 v{q+2}, v{q+2}, v{q+3}, s[68:69]",
                  f"v_cndmask_b32 v{q+4}, v{q+4}, v{q+5}, s[68:69]", f"v_cndmask_b32 v{q+6}, v{q+6}, v{q+7}, s[68:69]",
                  f"v_cndmask_b32 v{q}, v{q}, v{q+2}, s[70:71]", f"v_cndmask_b32 v{q+4}, v{q+4}, v{q+6}, s[70:71]",
                  f"v_cndmask_b32 v{S}, v{S}, v{S+4}, s[74:75]", f"v_mul_f32 v{S}, 0x3acccccd, v{S}",
                  f"v_permlane32_swap_b32 v{q}, v{q+4}", f"v_cvt_pk_bf16_f32 v{t+2}, 0, v{S}",
                  f"v_cndmask_b32 v{q}, v{q}, v{q+4}, s[72:73]", f"v_mul_f32 v{q}, 0x3acccccd, v{q}",
                  f"v_fma_f32 v{q}, -v{S}, v{S}, v{q}", f"v_max_f32 v{q}, 0, v{q}",
                  f"v_cvt_pk_bf16_f32 v{q}, 0, v{q}", f"v_add_f32 v{q}, 0x3727c5ac, v{q}", f"v_cvt_pk_bf16_f32 v{q}, 0, v{q}",
                  f"v_sqrt_f32 v{q}, v{q}", "s_nop 0", f"v_cvt_pk_bf16_f32 v{q}, 0, v{q}", f"v_rcp_f32 v{t}, v{q}", f"v_mul_f32 v{t+3}, v{q}, v{q}",
                  f"v_mul_f32 v{t+1}, v{t}, v{t}", f"v_mul_f32 v{t+1}, v{t+1}, v{t}",
                  f"v_mul_f32 v{t}, {fh(K1)}, v{t}", f"v_mul_f32 v{t+1}, {fh(K1*0.044715)}, v{t+1}", f"ds_write_b128 v{vPw}, {vr(t,4)}"]
            for i in range(1, 4): fill[i] += [f"v_xor_b32 v{vB+i}, {512*i}, v{vPr}", f"v_xor_b32 v{vB+4+i}, {512*i}, v{vPp}"]
            for k in range(3): fill[5 + 2 * k].append(w2f_load(54 + k))
            for i in range(11, 28):
                for _ in range(2):
                    if vs: fill[i].append(vs.pop(0))
            assert not vs
        for x in interleave(mf, fill): a(x)
def g1_epi(a, st, P):
    PR = FB[0]
    a("s_waitcnt lgkmcnt(0)\ns_barrier")
    st(11)
    for p in range(4):
        r = vPr if p == 0 else vB + p; q = vPp if p == 0 else vB + 4 + p
        a(f"ds_read_b128 {vr(PR+8*p,4)}, v{r}\nds_read_b128 {vr(PR+8*p+4,4)}, v{r} offset:256\nds_read_b128 {vr(PR+32+4*p,4)}, v{q}")
    for k in range(3): a(w2f_load(57 + k))
    for p in range(4):
        for i in range(4): a(f"v_permlane32_swap_b32 v{ACC+24*p+8+i}, v{ACC+24*p+20+i}")
        if p < 3: a(f"s_add_u32 m0, s47, {RES+1024*p}\ns_nop 0\nbuffer_load_dwordx4 v6, s[8:11], s46 offen sc1 lds\ns_add_u32 s46, s46, {8*4096}")
    E = TMP; O = TMP + 12; Z = TMP + 20
    def grp(items):
        def each(f):
            for k, it in enumerate(items):
                for j in (0, 2): f(it, E + 4 * k, j)
        each(lambda it, e, j: a(f"v_pk_fma_f32 {vr(it[0]+j,2)}, {vr(it[4]+2,2)}, {vr(it[2]+j,2)}, {vr(it[0]+j,2)} op_sel_hi:[0,1,1] neg_lo:[1,0,0] neg_hi:[1,0,0]"))
        each(lambda it, e, j: a(f"v_pk_mul_f32 {vr(e+j,2)}, {vr(it[0]+j,2)}, {vr(it[0]+j,2)}"))
        each(lambda it, e, j: a(f"v_pk_fma_f32 {vr(e+j,2)}, {vr(e+j,2)}, {vr(it[4],2)}, {vr(it[4],2)} op_sel:[0,1,0] op_sel_hi:[1,1,0]"))
        each(lambda it, e, j: a(f"v_pk_mul_f32 {vr(e+j,2)}, {vr(e+j,2)}, {vr(it[0]+j,2)}"))
        each(lambda it, e, j: a(f"v_exp_f32 v{e+j}, v{e+j}\nv_exp_f32 v{e+j+1}, v{e+j+1}\nv_pk_fma_f32 {vr(it[1]+j,2)}, {vr(it[4]+2,2)}, {vr(it[3]+j,2)}, {vr(it[1]+j,2)} op_sel_hi:[0,1,1] neg_lo:[1,0,0] neg_hi:[1,0,0]"))
        each(lambda it, e, j: a(f"v_pk_fma_f32 {vr(e+j,2)}, {vr(e+j,2)}, {vr(it[4]+2,2)}, {vr(it[4]+2,2)} op_sel:[0,1,1] op_sel_hi:[1,1,1]"))
        each(lambda it, e, j: a(f"v_rcp_f32 v{e+j}, v{e+j}\nv_rcp_f32 v{e+j+1}, v{e+j+1}\nv_pk_mul_f32 {vr(it[0]+j,2)}, {vr(it[0]+j,2)}, {vr(it[1]+j,2)}"))
        each(lambda it, e, j: a(f"v_pk_mul_f32 {vr(it[0]+j,2)}, {vr(it[0]+j,2)}, {vr(e+j,2)}"))
        each(lambda it, e, j: a(f"v_cvt_pk_bf16_f32 v{it[5]+j//2}, v{it[0]+j}, v{it[0]+j+1}"))
    for p in range(4):
        a(f"s_waitcnt lgkmcnt({9-3*p})")
        c = ACC + 24 * p; o = O + 4 * (p & 1); z = Z + 4 * (p >> 1)
        grp([(c, c + 4, CS, CS + 4, PR + 8 * p, o), (c + 12, c + 16, CS, CS + 4, PR + 8 * p + 4, o + 2), (c + 8, c + 20, CS + 8, CS + 12, PR + 32 + 4 * p, z + 2 * (p & 1))])
        a(f"v_permlane32_swap_b32 v{o}, v{o+2}\nv_permlane32_swap_b32 v{o+1}, v{o+3}")
        if p & 1: a(f"v_permlane16_swap_b32 v{z}, v{z+2}\nv_permlane16_swap_b32 v{z+1}, v{z+3}")
        a(f"buffer_store_dwordx4 {vr(o,4)}, v{vO1}, s[16:19], s{32+p} offen sc1")
        if p & 1: a(f"buffer_store_dwordx4 {vr(z,4)}, v{vO2}, s[16:19], s{36+(p>>1)} offen sc1")

def gen_g2(a, st, P):
    vHo = [6, 7, 8]; vWr = [9, 10, 11]; vRd, vTr, vTr4, vO, vO4, vR, vF2 = 12, 13, 14, 15, 16, 17, 18
    AC = [24, 44]; HB = 64
    vB16 = 19
    st(1)
    a(f"s_load_dwordx2 s[6:7], s[0:1], {KA['out']}")
    a("s_add_u32 s44, s28, s63\ns_and_b32 s44, s44, 3")
    if P.get("norot3"): a("s_mov_b32 s44, s28")
    a(f"v_lshlrev_b32 v{vB16}, 4, v{vL}")
    a(f"s_lshr_b32 s31, s62, 1\ns_lshl_b32 s31, s31, 2\ns_add_u32 s31, s31, s28\ns_lshl_b32 s31, s31, 8\ns_add_u32 s31, s31, {F_2}\nv_and_b32 v{vT2}, 3, v{vL}\nv_lshl_add_u32 v{vF2}, v{vT2}, 6, s31")
    for g in range(3):
        a(f"s_add_u32 s37, s55, {g}\ns_sub_u32 s38, s37, 3\ns_cselect_b32 s37, s37, s38\ns_lshl_b32 s37, s37, 12\nv_add_u32 v{vHo[g]}, s37, v{vB16}")
    a("s_lshl_b32 s35, s62, 2\ns_mul_i32 s36, s28, 12288")
    for j in range(4):
        a(f"s_add_u32 s37, s44, {j+1}\ns_and_b32 s37, s37, 3\ns_add_u32 s38, s37, s35\ns_mul_i32 s38, s38, 49152\ns_add_u32 s{40+j}, s38, s36")
        if j < 3: a(f"s_mul_i32 s37, s37, 15360\ns_add_u32 s37, s37, {RED+j*5120}\nv_add_u32 v{vWr[j]}, s37, v{vB16}")
    a(f"s_mul_i32 s37, s44, 15360\ns_add_u32 s37, s37, {RED}\nv_add_u32 v{vRd}, s37, v{vB16}")
    a(f"v_lshrrev_b32 v{vT0}, 4, v{vL}\nv_bfe_u32 v{vT1}, v{vL}, 2, 2\nv_lshlrev_b32 v{vO}, 3, v{vT2}\nv_lshl_add_u32 v{vO}, v{vT1}, 7, v{vO}\ns_lshl_b32 s37, s44, 5\ns_add_u32 s37, s37, {RES}\nv_add_u32 v{vO}, s37, v{vO}")
    a(f"v_lshl_add_u32 v{vTr}, v{vT0}, 10, v{vO}\nv_lshl_add_u32 v{vTr4}, v{vT0}, 9, v{vO}")
    a(f"v_and_b32 v{vO}, 1, v{vT1}\nv_lshlrev_b32 v{vO}, 8, v{vO}\nv_lshl_add_u32 v{vO}, v{vT2}, 1, v{vO}\nv_lshrrev_b32 v{vT1}, 1, v{vT1}\nv_add_u32 v{vO}, v{vO}, v{vT1}\nv_mul_u32_u24 v{vT1}, 1280, v{vO}")
    a(f"v_lshl_add_u32 v{vO}, v{vT0}, 4, v{vT1}\nv_lshl_add_u32 v{vO4}, v{vT0}, 3, v{vT1}")
    a("s_lshr_b32 s37, s62, 3\ns_lshl_b32 s37, s37, 9\ns_and_b32 s38, s62, 1\ns_lshl_b32 s38, s38, 2\ns_add_u32 s38, s38, s44\ns_lshl_b32 s38, s38, 5\ns_add_u32 s37, s37, s38")
    a("s_bfe_u32 s38, s62, 0x20001\ns_lshl_b32 s38, s38, 3\ns_add_u32 s37, s37, s38\ns_mul_i32 s37, s37, 1280\ns_mul_i32 s38, s63, 160\ns_add_u32 s45, s37, s38")
    a(f"s_lshl_b32 s31, s60, 4\ns_add_u32 s31, s31, s61\ns_lshl_b32 s31, s31, 6\ns_add_u32 s31, s31, {F_2}")
    a("s_waitcnt lgkmcnt(0)")
    a.srd(20, 6, 0, 2048 * 1280)
    a("s_waitcnt vmcnt(0)")
    st(2)
    a("s_barrier\ns_cmp_lg_u32 s28, 0\ns_cbranch_scc1 G_NF")
    setflag(a, "s31")
    a("G_NF:")
    st(3)
    poll(a, vF2, vT3)
    st(4)
    for j in range(4):
        for s in range(12): a(f"buffer_load_dwordx4 {vr(HB+48*j+4*s,4)}, v{vHo[s>>2]}, s[16:19], s{40+j} offen offset:{1024*(s&3)} sc1")
    st(5)
    X = HB; Hh = HB + 60; HU = HB + 72
    for j in range(4):
        c = AC[j & 1]
        fill = [[] for _ in range(60)]
        if j:
            for dt in range(5): fill[4 + 2 * dt].append(f"ds_write_b128 v{vWr[j-1]}, {vr(AC[(j-1)&1]+4*dt,4)} offset:{1024*dt}")
        if j == 3:
            fill[16] += ["s_waitcnt lgkmcnt(0)", "s_barrier"]
            rd = []
            for dt in range(5):
                rd.append(f"ds_read_b64_tr_b16 {vr(Hh+2*dt,2)}, v{vTr} offset:{(32*(dt>>1)+4*(dt&1))*128}" if dt < 4 else f"ds_read_b64_tr_b16 {vr(Hh+2*dt,2)}, v{vTr4} offset:{64*128}")
                for k in range(3): rd.append(f"ds_read_b128 {vr(X+12*dt+4*k,4)}, v{vRd} offset:{5120*k+1024*dt}")
            for i in range(10): fill[16 + i] += rd[2*i:2*i+2]
            vs = []
            for dt in range(5):
                x = X + 12 * dt; u = HU + 4 * dt
                o = []
                for h in range(2): o += [f"v_lshlrev_b32 v{u+2*h}, 16, v{Hh+2*dt+h}", f"v_and_b32 v{u+2*h+1}, 0xffff0000, v{Hh+2*dt+h}"]
                for k in range(4): o.append(f"v_add_f32 v{x+k}, v{x+k}, v{x+4+k}")
                for k in range(4): o.append(f"v_add_f32 v{u+k}, v{u+k}, v{x+8+k}")
                for k in range(4): o.append(f"v_add_f32 v{u+k}, v{u+k}, v{x+k}")
                o[0] = f"s_waitcnt lgkmcnt({min(12, 16-4*dt)})\n" + o[0]
                vs += o
            for i in range(26, 60):
                for _ in range(2):
                    if vs: fill[i].append(vs.pop(0))
        mf = []
        for s in range(12):
            for dt in range(5):
                d = vr(c + 4 * dt, 4)
                mf.append((f"s_waitcnt vmcnt({47-12*j-s})\n" if dt == 0 else "") + f"v_mfma_f32_16x16x32_bf16 {d}, {ar(20*s+4*dt,4)}, {vr(HB+48*j+4*s,4)}, {d if s else 0}")
        for k, x in enumerate(interleave(mf, fill)):
            a(x)
            if j == 0 and k == 0: st(6)
    for x in vs: a(x)
    st(7)
    O = X
    for dt in range(5):
        c = AC[1] + 4 * dt; u = HU + 4 * dt
        for h in range(2): a(f"v_pk_add_f32 {vr(u+2*h,2)}, {vr(u+2*h,2)}, {vr(c+2*h,2)}")
        for h in range(2): a(f"v_cvt_pk_bf16_f32 v{O+2*dt+h}, v{u+2*h}, v{u+2*h+1}")
        if dt in (1, 3): a(f"buffer_store_dwordx4 {vr(O+2*dt-2,4)}, v{vO}, s[20:23], s45 offen offset:{64*(dt>>1)}")
        if dt == 4: a(f"buffer_store_dwordx2 {vr(O+8,2)}, v{vO4}, s[20:23], s45 offen offset:128")

def gen_pk(name, stamp=0, P={}):
    a = Asm()
    sA = St(a, stamp == 1); sB = St(a, stamp == 2); sC = St(a, stamp > 0)
    a.l.append(kernel_head(name))
    a("s_cmp_ge_u32 s2, 256\ns_cbranch_scc1 P_END")
    sC(0)
    a(f"s_load_dwordx16 s[8:23], s[0:1], 0\ns_load_dwordx2 s[4:5], s[0:1], {KA['ws']}\ns_load_dwordx4 s[40:43], s[0:1], {KA['wg']}")
    a("v_lshrrev_b32 v2, 6, v0\nv_and_b32 v1, 63, v0\ns_and_b32 s30, s2, 7\nv_readfirstlane_b32 s28, v2\ns_lshr_b32 s31, s2, 3")
    k1 = P.get("k1", 2); k2 = P.get("k2", 3)
    def mp(dlo, dhi, k, nlo):
        b = 3 - (nlo - k)
        a(f"s_lshr_b32 s32, s30, {b}\ns_lshl_b32 s32, s32, {k}\ns_and_b32 s33, s31, {(1<<k)-1}\ns_add_u32 s{dlo}, s32, s33")
        a(f"s_and_b32 s32, s30, {(1<<b)-1}\ns_lshl_b32 s32, s32, {5-k}\ns_lshr_b32 s33, s31, {k}\ns_add_u32 s{dhi}, s32, s33")
    mp(61, 60, k1, 4); mp(63, 62, k2, 3)
    a(f"s_lshl_b32 s32, s61, {1 if k1 <= 2 else 0}\ns_lshl_b32 s33, s60, {0 if k1 <= 2 else 1}\ns_add_u32 s32, s32, s33\ns_and_b32 s32, s32, 7\ns_mul_i32 s32, s32, 5\ns_lshr_b32 s3, s32, 1")
    if P.get("norot"): a("s_mov_b32 s3, 0")
    a("s_cmp_ge_u32 s2, 160\ns_cbranch_scc1 P_HELP")
    a("s_mul_i32 s29, s30, 20\ns_add_u32 s29, s29, s31")
    gen_conv(a, sA, P)
    a("P_HELP:\ns_sub_u32 s29, s2, 160")
    gen_help(a, sA)
    gen_mid1(a, sC, P)
    g1_main(a, sC, P)
    g1_epi(a, sC, P)
    gen_g2(a, sB, P)
    if "spin" in P:
        i, j, wg = P["spin"]
        a(f"s_waitcnt vmcnt(0) lgkmcnt(0)\ns_memrealtime s[100:101]\ns_cmp_lg_u32 s2, {wg}\ns_cbranch_scc1 P_END\ns_waitcnt lgkmcnt(0)")
        a(f"s_sub_u32 s30, s{76+2*j}, s{76+2*i}\ns_lshl_b32 s30, s30, 2\ns_min_u32 s30, s30, 30000\nP_SPIN:\ns_memrealtime s[32:33]\ns_waitcnt lgkmcnt(0)\ns_sub_u32 s32, s32, s100\ns_cmp_lt_u32 s32, s30\ns_cbranch_scc1 P_SPIN")
    else: sC.flush()
    a("P_END:\ns_endpgm")
    return a.text(), kernel_desc(name, 256, sgpr=102 if stamp else 80, agpr=256), f"; @launch grid=(256,1,1) block=(256,1,1) lds=163840"
KN = "sequential_preLN__ssm_conv_s4d__geglu_ffn__prompt"
if __name__ == "__main__":
    from build import assemble
    import sys
    for s in (0, 1, 2): open(f"pk_s{s}.s", "w").write(assemble([gen_pk(KN + "_kernel", s)]))
```

```python
from lib import *
import struct, math
fh = lambda x: hex(struct.unpack("<I", struct.pack("<f", x))[0])
FL_OFF = 0x1A00000
F_ST, F_W, F_1, F_2 = 0x1000, 0x8000, 0x10000, 0x14000
RW = 21792; K1O = 4640; UO = 9248; UBO = 4224; XO = 17696
WST = 87296
NOWN = 6
vL = 1; vT0, vT1, vT2, vT3 = 2, 3, 4, 5
vWd = [6, 7, 8]; vWa, vWb = 9, 10
LOG2E = 1.4426950408889634
TAG = "s59"

class St:
    def __init__(s, a, on): s.a, s.on = a, on
    def __call__(s, i):
        if s.on: s.a(f"s_memrealtime s[{76+2*i}:{77+2*i}]")
    def flush(s):
        if not s.on: return
        a = s.a
        a("s_waitcnt vmcnt(0) lgkmcnt(0)"); s(12)
        a.srd(8, 4, ST_OFF, 256 * 256)
        a("s_lshl_b32 s12, s2, 2\ns_add_u32 s12, s12, s28\ns_lshl_b32 s12, s12, 6\ns_waitcnt lgkmcnt(0)\nv_mov_b32 v2, s12")
        for i in range(13): a(f"v_mov_b32 v3, s{76+2*i}\nbuffer_store_dword v3, v2, s[8:11], 0 offen offset:{4*i}")

def poll(a, va, vd, pre=None):
    L = a.label("PL"); D = a.label("PD")
    if pre is not None:
        a(f"s_waitcnt vmcnt({pre})\nv_cmp_ne_u32 vcc, {TAG}, v{vd}\ns_cbranch_vccz {D}")
    a(f"s_movk_i32 s58, 0x7fff\n{L}:")
    a(f"buffer_load_dword v{vd}, v{va}, s[64:67], 0 offen sc1\ns_waitcnt vmcnt(0)\nv_cmp_ne_u32 vcc, {TAG}, v{vd}\ns_cbranch_vccz {D}")
    a(f"s_sub_u32 s58, s58, 1\ns_cbranch_scc0 {L}\n{D}:")
def setflag(a, soff):
    a(f"v_mov_b32 v{vT0}, 0\nv_mov_b32 v{vT1}, {TAG}\ns_mov_b64 exec, 1\nbuffer_store_dword v{vT1}, v{vT0}, s[64:67], {soff} offen sc1\ns_mov_b64 exec, -1")

def cmul(d, x, w):
    return [f"v_pk_mul_f32 {vr(d,2)}, {vr(x,2)}, {vr(w,2)} op_sel_hi:[1,0]",
            f"v_pk_fma_f32 {vr(d,2)}, {vr(x,2)}, {vr(w,2)}, {vr(d,2)} op_sel:[1,1,0] op_sel_hi:[0,1,1] neg_lo:[1,0,0]"]

def w1_voff(a):
    for i in range(3):
        if i: a(f"v_add_u32 v{vT0}, {64*i}, v{vL}")
        s = vT0 if i else vL
        a(f"v_mul_u32_u24 v{vT1}, 5462, v{s}\nv_lshrrev_b32 v{vT1}, 16, v{vT1}\nv_mul_u32_u24 v{vT1}, {3072-192}, v{vT1}")
        a(f"v_lshl_add_u32 v{vWd[i]}, v{vL}, 4, v{vT1}")
def w1f_setup(a, vF):
    a.srd(12, 4, W1_OFF, 16 * 245760)
    a("s_mul_i32 s57, s61, 245760\ns_mul_i32 s31, s28, 3072\ns_add_u32 s57, s57, s31\ns_add_u32 s56, s57, 245760\ns_mul_i32 s39, s3, 12288\ns_add_u32 s39, s39, s57")
    a(f"v_min_u32 v{vF}, 19, v{vL}\nv_lshlrev_b32 v{vF}, 10, v{vF}\ns_lshl_b32 s31, s61, 6\ns_add_u32 s31, s31, {F_W}\nv_add_u32 v{vF}, s31, v{vF}\nv_lshlrev_b32 v{vWa}, 4, v{vL}")
def w1f_loads(c0, c1):
    o = []
    for c in range(c0, c1):
        for t in range(3):
            o.append(f"buffer_load_dwordx4 {ar(12*c+4*t,4)}, v{vWa}, s[12:15], s39 offen offset:{1024*t} sc1" +
                     ("\ns_add_u32 s39, s39, 12288\ns_cmp_eq_u32 s39, s56\ns_cselect_b32 s39, s57, s39" if t == 2 else ""))
    return o
def w1_addr(a, sbase):
    a(f"v_lshrrev_b32 v{vT0}, 2, v{vL}\nv_mul_u32_u24 v{vT0}, 192, v{vT0}\nv_add_u32 v{vT0}, {sbase}, v{vT0}")
    a(f"v_and_b32 v{vT1}, 3, v{vL}\nv_lshl_add_u32 v{vWa}, v{vT1}, 3, v{vT0}")
    a(f"v_bfe_u32 v{vT1}, v{vL}, 1, 1\nv_mul_u32_u24 v{vT1}, {6144-16}, v{vT1}\nv_add3_u32 v{vWb}, v{vWa}, v{vT1}, 32")
def w1_frag(dst, off):
    return [f"ds_read_b64_tr_b16 {dst(4*t+2*h)}, v{vWb if t == 2 else vWa} offset:{off+3072*h+(6144 if t == 1 else 0)}" for t in range(3) for h in range(2)]
def gen_conv(a, st, P0, sk):
    vA, vB, vK8, vK16, vK32, vKp, vUa, vKa, vXr, vTh, vSt, vFw, vD = 11, 12, 13, 14, 15, 16, 17, 18, 19, 20, 21, 22, 23
    XR, ST, ACC, FA, FB = 24, 40, 56, 72, 104
    W1, W8, W256, E, P, PK, PAR, vDt = 136, 138, 140, [142, 144], 146, 194, 210, 222
    a("s_lshl_b32 s30, s29, 2\ns_add_u32 s30, s30, s28")
    for i in range(12): a(f"v_mov_b32 v{PAR+i}, 0")
    a(f"v_lshlrev_b32 v{vT0}, 1, v{vL}\ns_mul_i32 s31, s30, 384\ns_and_b32 s32, s30, 0xfffffffe\ns_lshl_b32 s32, s32, 1")
    vG = 6
    a(f"v_mul_u32_u24 v{vG}, 10240, v0")
    a("s_waitcnt lgkmcnt(0)")
    a(f"s_add_u32 s64, s4, {FL_OFF}\ns_addc_u32 s65, s5, 0\ns_load_dword s59, s[64:65], 0\ns_load_dword s34, s[18:19], s32\ns_load_dword s35, s[20:21], s32")
    a.srd(24, 8, 0, 2048 * 1280)
    for i in range(4): a.srd(36 if i == 0 else 40 + 4 * i, 10 + 2 * i, 0, 640 * 384)
    PS = [36, 44, 48, 52]
    for p in range(3):
        for i in range(4):
            a(f"buffer_load_short_d16_hi v{PAR+4*p+i}, v{vT0}, s[{PS[i]}:{PS[i]+3}], s31 offen offset:{128*p}{' nt' if P0.get('nt', 0) >= 3 else ''}")
    a(f"s_lshr_b32 s31, s2, 3\ns_lshl_b32 s31, s31, 2\ns_add_u32 s31, s31, s28\ns_mul_i32 s31, s31, 26\nv_lshrrev_b32 v{vT0}, 1, v{vL}\nv_min_u32 v{vT0}, 25, v{vT0}\nv_add_u32 v{vT0}, s31, v{vT0}\nv_min_u32 v{vT0}, 2047, v{vT0}")
    a(f"v_mul_u32_u24 v{vT0}, 1280, v{vT0}\nv_and_b32 v{vT1}, 1, v{vL}\nv_mul_u32_u24 v{vT1}, 156, v{vT1}\nv_add_u32 v{vT0}, v{vT0}, v{vT1}\ns_and_b32 s31, s2, 7\ns_mul_i32 s31, s31, 160")
    a(f"buffer_load_dword v250, v{vT0}, s[24:27], s31 offen")
    npf = P0.get("npf", 0)
    if npf:
        a.srd(68, 42, 0, 640 * 3072)
        a(f"v_min_u32 v{vT0}, 23, v{vL}\nv_mul_u32_u24 v{vT1}, 21846, v{vT0}\nv_lshrrev_b32 v{vT1}, 16, v{vT1}\nv_mul_u32_u24 v{vT1}, {3072-384}, v{vT1}\nv_lshl_add_u32 v{vT0}, v{vT0}, 7, v{vT1}")
        a(f"s_lshr_b32 s31, s2, 3\ns_lshl_b32 s31, s31, 2\ns_add_u32 s31, s31, s28\ns_mul_i32 s31, s31, {8*3072}\ns_and_b32 s33, s2, 7\ns_mul_i32 s33, s33, 384\ns_add_u32 s31, s31, s33")
        a(f"buffer_load_dword v249, v{vT0}, s[68:71], s31 offen")
    gath = [("s_add_u32 s17, s17, 3840\n" if i in (3, 6) else "") + f"buffer_load_dwordx2 {vr(XR+2*i,2)}, v{vG}, s[24:27], s17 offen offset:{1280*(i%3)}" for i in range(8)]
    a("s_lshl_b32 s17, s29, 3")
    a(f"s_mov_b32 s66, 0x20000\ns_mov_b32 s67, 0x20000\ns_mul_i32 s32, s28, {RW}\ns_movk_i32 s33, 272")
    a.srd(8, 4, HT_OFF, 640 * 4096)
    a(f"v_and_b32 v{vT1}, 31, v{vL}\nv_lshrrev_b32 v{vT2}, 5, v{vL}")
    a(f"v_lshl_add_u32 v{vA}, v{vT2}, 4, s32\nv_mad_u32_u24 v{vB}, v{vT1}, s33, v{vA}")
    tab = {9: 1, 12: 1, 13: 2, 19: 1, 23: 1}
    lo = sum(tab.get(r, 0) << (2 * r) for r in range(16)); hi = sum(tab.get(r + 16, 0) << (2 * r) for r in range(16))
    a(f"s_mov_b32 s46, {hex(lo)}\ns_mov_b32 s47, {hex(hi)}\nv_lshlrev_b32 v{vT0}, 1, v{vT1}\nv_lshrrev_b64 {vr(P,2)}, v{vT0}, s[46:47]")
    a(f"v_and_b32 v{P}, 3, v{P}\nv_sub_u32 v{P}, v{vT1}, v{P}\nv_mad_u32_u24 v{vA}, v{P}, s33, v{vA}")
    a(f"s_add_u32 s33, s32, 512\nv_lshl_add_u32 v{vT0}, v{vT1}, 4, s33\nv_lshl_add_u32 v{vK16}, v{vT2}, 9, v{vT0}\nv_lshl_add_u32 v{vK32}, v{vT2}, 10, v{vT0}")
    a(f"v_mul_u32_u24 v{vT3}, 24, v{vT2}\nv_add3_u32 v{vKp}, v{vT0}, v{vT3}, 6\nv_lshlrev_b32 v{vT3}, 3, v{vT2}\nv_sub_u32 v{vK8}, v{vT0}, v{vT3}\nv_add_u32 v{vK8}, 8, v{vK8}")
    a(f"v_and_b32 v{vT0}, 15, v{vL}\nv_lshrrev_b32 v{vT1}, 4, v{vL}\nv_and_b32 v{vT2}, 1, v{vL}\nv_lshlrev_b32 v{vT1}, 4, v{vT1}")
    a(f"s_add_u32 s33, s32, {UO+UBO+8}\nv_lshl_add_u32 v{vUa}, v{vT0}, 2, s33\nv_mul_u32_u24 v{vT3}, {UBO+4}, v{vT2}\nv_sub_u32 v{vUa}, v{vUa}, v{vT3}\nv_add_u32 v{vUa}, v{vUa}, v{vT1}")
    a(f"v_lshrrev_b32 v{vT0}, 1, v{vT0}\nv_lshlrev_b32 v{vT0}, 6, v{vT0}")
    a(f"s_add_u32 s33, s32, {512+48-448}\nv_mul_u32_u24 v{vT3}, {K1O}, v{vT2}\nv_add3_u32 v{vKa}, v{vT0}, v{vT3}, s33\nv_sub_u32 v{vKa}, v{vKa}, v{vT1}")
    a(f"s_add_u32 s33, s32, {XO}\nv_lshl_add_u32 v{vT3}, v{vT2}, 3, s33\nv_add3_u32 v{vXr}, v{vT0}, v{vT1}, v{vT3}")
    a(f"v_lshlrev_b32 v{vTh}, 4, v0\nv_lshlrev_b32 v{vSt}, 6, v0\nv_add_u32 v{vSt}, {F_ST}, v{vSt}")
    a(f"v_cmp_eq_u32 s[68:69], 1, v{vT2}\nv_cmp_eq_u32 vcc, 0, v{vL}\ns_mov_b32 m0, s32")
    a("s_waitcnt lgkmcnt(0)\ns_barrier")
    a("s_add_u32 s59, s59, 1\ns_and_b32 s31, s30, 1\ns_lshl_b32 s31, s31, 4\ns_lshr_b32 s34, s34, s31\ns_lshl_b32 s34, s34, 16\ns_lshr_b32 s35, s35, s31\ns_lshl_b32 s35, s35, 16")
    a(f"v_mov_b32 v{vD}, s35\nv_cndmask_b32 v{vD}, 0, v{vD}, vcc\nv_mov_b32 v{vT0}, 0x3f80\nds_write_addtid_b32 v{vT0} offset:8704")
    a(f"v_mov_b32 v{vDt}, {fh(LOG2E)}\nv_mul_f32 v{vDt}, s34, v{vDt}\nv_exp_f32 v{vDt}, v{vDt}\ns_nop 0\nv_cvt_pk_bf16_f32 v{vDt}, 0, v{vDt}\nv_add_f32 v{vDt+1}, v{vDt}, v{vDt}")
    c = 1 / (2 * math.pi); chi = struct.unpack("<f", struct.pack("<f", c))[0]; clo = c - chi
    a(f"s_mov_b32 s12, {fh(chi)}\ns_mov_b32 s13, {fh(clo)}\ns_mov_b32 s14, {fh(LOG2E)}\ns_mov_b32 s15, 0x41000000\ns_mov_b32 s16, 0x43800000")
    st(1)
    def stat_loads():
        for k in range(4): a(f"buffer_load_dwordx4 {vr(ST+4*k,4)}, v{vSt}, s[64:67], 0 offen offset:{16*k} sc1")
    pend = []
    for p in range(3):
        q = PAR + 4 * p; t = P
        sk(1 + 2 * p)
        a(f"s_waitcnt vmcnt({9+npf})")
        sk(2 + 2 * p)
        o = [f"v_mul_f32 v{q}, s14, v{q}", f"v_exp_f32 v{q}, v{q}", f"v_mul_f32 v{q+1}, v{q+1}, v{vDt}",
             f"v_mul_f32 v{t}, s12, v{q+1}", f"v_fma_f32 v{t+1}, v{q+1}, s12, -v{t}", f"v_cvt_pk_bf16_f32 v{q}, 0, v{q}",
             f"v_fma_f32 v{t+1}, v{q+1}, s13, v{t+1}", f"v_mul_f32 v{q}, v{q}, v{vDt}", f"v_fract_f32 v{t+2}, v{t}",
             f"v_mul_f32 v{q}, s14, v{q}",
             f"v_mul_f32 v{t+3}, s15, v{t+2}", f"v_mul_f32 v{t+4}, s16, v{t+2}", f"v_add_f32 v{t+2}, v{t+2}, v{t+1}",
             f"v_fract_f32 v{t+3}, v{t+3}", f"v_fract_f32 v{t+4}, v{t+4}",
             f"v_fma_f32 v{t+3}, v{t+1}, s15, v{t+3}", f"v_fma_f32 v{t+4}, v{t+1}, s16, v{t+4}",
             f"v_mul_f32 v{t+6}, s15, v{q}", f"v_mul_f32 v{t+8}, s16, v{q}",
             f"v_cos_f32 v{W8}, v{t+3}", f"v_sin_f32 v{W8+1}, v{t+3}", f"v_exp_f32 v{t+6}, -v{t+6}",
             f"v_cos_f32 v{W1}, v{t+2}", f"v_sin_f32 v{W1+1}, v{t+2}", f"v_exp_f32 v{t+10}, -v{q}",
             f"v_cos_f32 v{W256}, v{t+4}", f"v_sin_f32 v{W256+1}, v{t+4}", f"v_exp_f32 v{t+8}, -v{t+8}",
             f"v_mul_f32 v{E[0]}, v{q+2}, v{vDt+1}", f"v_mul_f32 v{E[0]+1}, v{q+3}, v{vDt+1}",
             f"v_mul_f32 v{W8}, v{W8}, v{t+6}", f"v_mul_f32 v{W8+1}, v{W8+1}, v{t+6}", f"v_mul_f32 v{W1}, v{W1}, v{t+10}", f"v_mul_f32 v{W1+1}, v{W1+1}, v{t+10}",
             f"v_mul_f32 v{W256}, v{W256}, v{t+8}", f"v_mul_f32 v{W256+1}, v{W256+1}, v{t+8}"]
        at = [1, 6, 12, 18, 21, 24, 27, 32]
        for i, x in enumerate(o):
            a(x)
            if pend and i in at: a(pend.pop(0))
        assert not pend
        R = {1: W1, 8: W256, "w8": W8}
        nxt = P
        plan = {2: (1, W1), 3: (2, W1), 4: (3, W1), 5: (4, W1), 6: (5, W1), 7: (6, W1),
                10: (2, W256), 11: (4, W256), 14: (6, W256), 15: ("w8", W256),
                16: (8, W256), 17: (11, W256), 18: (15, W256), 20: (16, W256), 21: (17, W256), 22: (18, W256),
                24: (20, W256), 25: (22, W256), 26: (24, W256), 27: (25, W256), 28: (26, W256), 29: (27, W256), 30: (28, W256), 31: (29, W256)}
        wr = []
        for j in range(32):
            e = E[j & 1]; pk = PK + 2 * (j & 7)
            xm = []
            if j in plan:
                R[j] = nxt; nxt += 2; xm = cmul(R[j], R[plan[j][0]], plan[j][1])
            em = cmul(E[(j + 1) & 1], e, W8) if j < 31 else []
            if xm: a(xm[0])
            if em: a(em[0])
            if xm: a(xm[1])
            a(f"v_cvt_pk_bf16_f32 v{pk}, v{e}, v{e+1}")
            if em: a(em[1])
            wr.append(f"ds_write_addtid_b32 v{pk} offset:{272*j}")
            if j in R:
                a(f"v_cvt_pk_bf16_f32 v{pk+1}, v{R[j]}, -v{R[j]+1}")
                wr.append(f"ds_write_addtid_b32 v{pk+1} offset:{8704+272*j}")
            if j & 7 == 7:
                for x in wr: a(x)
                wr = []
                if p < 2 and j in (7, 23):
                    for _ in range(2):
                        g = gath.pop(0)
                        a(g if not P0.get("nogath") else g.replace(f"v{vG},", f"v{vTh},"))
                if p == 2 and j == P0.get("stj", 15): stat_loads()
        for s in range(8):
            a(f"ds_read_b128 {vr(FA+4*s,4)}, v{vA} offset:{8704+32*s}\nds_read_b128 {vr(FB+4*s,4)}, v{vB} offset:{32*s}")
        d = vr(ACC, 16)
        pend = [f"s_waitcnt lgkmcnt({14-2*s})\nv_mfma_f32_32x32x16_bf16 {d}, {vr(FA+4*s,4)}, {vr(FB+4*s,4)}, {d if (p or s) else 0}" for s in range(8)]
    st(3); sk(7)
    XF = P; XP = PK
    a("s_waitcnt vmcnt(4)\ns_mov_b32 s12, 0x05040100\ns_mov_b32 s13, 0x07060302")
    fl = []
    for ch in range(4):
        for k, (r0, r1) in enumerate(((0, 2), (4, 6), (1, 3), (5, 7))):
            fl.append(f"v_perm_b32 v{XP+4*ch+k}, v{XR+2*r1+(ch>>1)}, v{XR+2*r0+(ch>>1)}, s{12+(ch&1)}")
    for i in range(16): fl += [f"v_lshlrev_b32 v{XF+2*i}, 16, v{XR+i}", f"v_and_b32 v{XF+2*i+1}, 0xffff0000, v{XR+i}"]
    for s in range(8):
        a(pend[s])
        for x in fl[6*s:6*s+6]: a(x)
    a(f"v_add_u32 v{vT3}, {XO}, v{vTh}\nv_mov_b32 v{FA}, 0\nv_mov_b32 v{FA+1}, 0\nv_lshl_add_u32 v{vT0}, v{vL}, 3, s32")
    a(f"v_bfe_u32 v{vT1}, v{vL}, 4, 1\nv_mul_u32_u24 v{vT1}, {UBO}, v{vT1}\nv_and_b32 v{vT2}, 15, v{vL}\nv_lshl_add_u32 v{vT1}, v{vT2}, 3, v{vT1}\nv_add_u32 v{vT1}, s32, v{vT1}")
    for ch in range(4): a(f"ds_write_b128 v{vT3}, {vr(XP+4*ch,4)} offset:{RW*ch}")
    a(f"ds_write_b64 v{vT0}, {vr(FA,2)}\nds_write_b64 v{vT0}, {vr(FA,2)} offset:{K1O}\nds_write_b64 v{vT1}, {vr(FA,2)} offset:{UO}")
    c = ACC; o = FB
    cv = lambda d, x, y: a(f"v_cvt_pk_bf16_f32 v{d}, v{x}, {'v%d' % y if y is not None else 0}")
    a(f"v_add_f32 v{c}, v{c}, v{vD}")
    for i in range(2): a(f"v_cndmask_b32 v{vT0+i}, v{c+12+2*i}, v{c+13+2*i}, s[68:69]")
    cv(o, c+3, c+2); cv(o+1, c+1, c); cv(o+2, c+7, c+6); cv(o+3, c+5, c+4)
    cv(o+4, c+2, c+1); cv(o+5, c, None); cv(o+6, c+6, c+5); cv(o+7, c+4, c+4)
    cv(o+8, c+10, c+10); cv(o+9, c+9, c+9); cv(o+10, c+9, c+8); cv(o+11, c+8, c+8)
    cv(o+12, c+10, c+9); cv(o+13, c+9, c+9); cv(o+14, c+8, c+8); cv(o+15, c+8, c+8)
    for i in range(2):
        x = c + 12 + 2 * i; y = x + 1; b = o + 16 + 8 * i
        cv(b, y, y); cv(b+1, y, vT0+i); cv(b+2, x, x); cv(b+3, x, x)
        cv(b+4, y, y); cv(b+5, vT0+i, x); cv(b+6, x, x); cv(b+7, x, x)
    a(f"ds_write_b64 v{vK8}, {vr(o,2)} offset:{K1O}\nds_write_b64 v{vK8}, {vr(o+2,2)} offset:{K1O+512}")
    a(f"ds_write_b64 v{vK8}, {vr(o+4,2)}\nds_write_b64 v{vK8}, {vr(o+6,2)} offset:512\nds_write_b16 v{vKp}, v{o}")
    a(f"ds_write_b128 v{vK16}, {vr(o+8,4)} offset:{K1O+1024}\nds_write_b128 v{vK16}, {vr(o+12,4)} offset:1024")
    for i in range(2):
        a(f"ds_write_b128 v{vK32}, {vr(o+16+8*i,4)} offset:{K1O+2048+512*i}\nds_write_b128 v{vK32}, {vr(o+20+8*i,4)} offset:{2048+512*i}")
    st(4)
    L = a.label("SL"); Dn = a.label("SD")
    a(f"s_movk_i32 s58, 0x7fff\n{L}:\ns_waitcnt vmcnt(0)")
    for k in range(8): a(f"v_xor_b32 v{ST+2*k+1}, {TAG}, v{ST+2*k+1}")
    a(f"v_or3_b32 v{vT0}, v{ST+1}, v{ST+3}, v{ST+5}\nv_or3_b32 v{vT1}, v{ST+7}, v{ST+9}, v{ST+11}\nv_or3_b32 v{vT0}, v{vT0}, v{ST+13}, v{ST+15}\nv_or_b32 v{vT0}, v{vT0}, v{vT1}")
    a(f"v_cmp_ne_u32 vcc, 0, v{vT0}\ns_cbranch_vccz {Dn}")
    stat_loads()
    a(f"s_sub_u32 s58, s58, 1\ns_cbranch_scc0 {L}\ns_waitcnt vmcnt(0)\n{Dn}:")
    st(5)
    for i in range(8): a(f"v_and_b32 v{ST+2*i+1}, 0xffff0000, v{ST+2*i}\nv_lshlrev_b32 v{ST+2*i}, 16, v{ST+2*i}")
    for i in range(8):
        for k in range(2): a(f"v_pk_add_f32 {vr(XF+4*i+2*k,2)}, {vr(XF+4*i+2*k,2)}, {vr(ST+2*i,2)} op_sel_hi:[1,0] neg_lo:[0,1] neg_hi:[0,1]")
        a(f"v_rcp_f32 v{ST+2*i+1}, v{ST+2*i+1}")
    for i in range(32): a(f"v_cvt_pk_bf16_f32 v{XF+i}, 0, v{XF+i}")
    for i in range(8):
        for k in range(2): a(f"v_pk_mul_f32 {vr(XF+4*i+2*k,2)}, {vr(XF+4*i+2*k,2)}, {vr(ST+2*i,2)} op_sel:[0,1] op_sel_hi:[1,1]")
    U = FA
    for ch in range(4):
        for k in range(4): cv(U + 6 * ch + k, XF + 8 * k + ch, XF + 8 * k + 4 + ch)
        for k in (1, 2): cv(U + 6 * ch + 3 + k, XF + 8 * k + ch, XF + 8 * k + 4 + ch)
    a(f"v_add_u32 v{vT0}, {UO+64}, v{vTh}")
    for ch in range(4): a(f"v_add_u32 v{XR+ch}, {UO+UBO+64+RW*ch}, v{vTh}")
    a("s_waitcnt lgkmcnt(0)\ns_barrier")
    for ch in range(4):
        a(f"ds_write_b128 v{vT0}, {vr(U+6*ch,4)} offset:{RW*ch}\nds_write_b64 v{XR+ch}, {vr(U+6*ch+4,2)} offset:8")
        a(f"ds_write2_b32 v{XR+ch}, v{U+6*ch}, v{U+6*ch+3} offset0:1 offset1:4")
    w1f_setup(a, vFw)
    a(f"s_lshl_b32 s33, s30, 12")
    a("s_waitcnt lgkmcnt(0)\ns_barrier")
    st(6)
    rw = P0.get("rw", 3); nin = P0.get("nin", 20)
    wl = w1f_loads(0, nin)
    CA = 24; FT = [56, 120]; FG = [88, 152]; X = 184; XU = 200
    def reads(r):
        p = r & 1; o = []
        for i in range(8):
            o.append(f"ds_read_b128 {vr(FG[p]+4*i,4)}, v{vKa} offset:{512*i+64*(7-r)}")
            for hh in range(2): o.append(f"ds_read_b64 {vr(FT[p]+4*i+2*hh,2)}, v{vUa} offset:{512*i+64*r+8*hh}")
        return o
    for x in reads(0): a(x)
    for r in range(8):
        p = r & 1
        mf = []
        for sg in range(8):
            for dl in range(8 - sg):
                d = vr(CA + 4 * (sg + dl), 4)
                mf.append(f"v_mfma_f32_16x16x32_bf16 {d}, {vr(FT[p]+4*sg,4)}, {vr(FG[p]+4*dl,4)}, {d if (r or sg) else 0}")
        fill = [[] for _ in range(36)]
        if r < 7:
            for i, x in enumerate(reads(r + 1)): fill[i].append(x)
        if r == rw - 2: fill[25].append(f"buffer_load_dword v{vD}, v{vFw}, s[64:67], 0 offen sc1")
        if r == rw - 1: fill[34] += ["s_waitcnt vmcnt(0)", f"v_cmp_ne_u32 s[70:71], {TAG}, v{vD}"]
        if r >= rw:
            n = -(-len(wl) // (8 - r))
            for k in range(n): fill[(36 * k + 18) // n].append(wl.pop(0))
        if r == 6:
            for q in range(8): fill[24 + q].append(f"ds_read_b64 {vr(X+2*q,2)}, v{vXr} offset:{512*q}")
        if r == 7:
            for i in range(16): fill[i] += [f"v_lshlrev_b32 v{XU+2*i}, 16, v{X+i}", f"v_and_b32 v{XU+2*i+1}, 0xffff0000, v{X+i}"]
            done = {q: sum(8 - s for s in range(q)) + 8 for q in range(8)}
            ep = []
            for q in range(4):
                for k in range(4): ep.append((done[q], f"v_add_f32 v{CA+4*q+k}, v{CA+4*q+k}, v{XU+4*q+k}"))
                for k in range(2): ep.append((done[q], f"v_cvt_pk_bf16_f32 v{X+2*q+k}, v{CA+4*q+2*k}, v{CA+4*q+2*k+1}"))
            for i in range(16, 36):
                for _ in range(2):
                    if ep and ep[0][0] <= i: fill[i].append(ep.pop(0)[1])
            assert not ep
        a("s_waitcnt lgkmcnt(0)")
        for x in interleave(mf, fill): a(x)
    assert not wl
    st(7)
    for Q in range(2): a(f"buffer_store_dwordx4 {vr(X+4*Q,4)}, v{vWa}, s[8:11], s33 offen offset:{1024*Q} sc1")
    for q in range(4, 8):
        if q == 6: a("s_nop 0")
        for k in range(2): a(f"v_pk_add_f32 {vr(CA+4*q+2*k,2)}, {vr(CA+4*q+2*k,2)}, {vr(XU+4*q+2*k,2)}")
        for k in range(2): a(f"v_cvt_pk_bf16_f32 v{X+2*q+k}, v{CA+4*q+2*k}, v{CA+4*q+2*k+1}")
        if q & 1: a(f"buffer_store_dwordx4 {vr(X+2*q-2,4)}, v{vWa}, s[8:11], s33 offen offset:{512*(q-1)} sc1")
    a(f"s_lshl_b32 s31, s29, 6\ns_add_u32 s31, s31, {F_1}\ns_waitcnt vmcnt(0)")
    st(2)
    a("s_barrier\ns_cmp_lg_u32 s28, 0\ns_cbranch_scc1 M_NF")
    setflag(a, "s31")
    a("M_NF:\ns_cmp_eq_u64 s[70:71], 0\ns_cbranch_scc1 P_MID\ns_mul_i32 s39, s3, 12288\ns_add_u32 s39, s39, s57\ns_branch P_WALL")

def gen_help(a, st, sk, P={}):
    ntw = ' nt' if P.get('nt', 0) >= 1 else ''; ntx = ' nt' if P.get('nt', 0) >= 2 else ''
    vX, vFw = 11, 22
    S, M, RAW, XF = 24, 32, 36, 76
    a(f"v_lshrrev_b32 v{vT0}, 3, v{vL}\nv_and_b32 v{vT1}, 7, v{vL}\nv_lshlrev_b32 v{vT1}, 4, v{vT1}\ns_movk_i32 s33, 1280\nv_mad_u32_u24 v{vX}, v{vT0}, s33, v{vT1}")
    a("s_cmp_ge_u32 s29, 32\ns_cbranch_scc1 H_RB")
    a("s_lshr_b32 s34, s29, 3\ns_lshl_b32 s34, s34, 2\ns_add_u32 s34, s34, s28\ns_lshl_b32 s30, s29, 1\ns_add_u32 s30, s30, s28\ns_sub_u32 s46, s30, 2")
    a("s_cmp_lt_u32 s28, 2\ns_cselect_b32 s30, s30, 256\ns_cselect_b32 s46, 128, s46\ns_branch H_RJ\nH_RB:")
    a("s_mul_i32 s31, s29, 3\ns_add_u32 s31, s31, s28\ns_lshr_b32 s34, s29, 3\ns_mul_i32 s34, s34, 3\ns_add_u32 s34, s34, s28\ns_add_u32 s34, s34, 4\ns_sub_u32 s30, s31, 33\ns_add_u32 s46, s29, 32")
    a("s_cmp_eq_u32 s28, 0\ns_cselect_b32 s30, 256, s30\ns_cmp_eq_u32 s28, 3\ns_cselect_b32 s34, 40, s34\ns_cselect_b32 s46, s46, 128\nH_RJ:")
    a("s_lshr_b32 s31, s34, 1\ns_lshl_b32 s31, s31, 3\ns_and_b32 s33, s29, 7\ns_add_u32 s31, s31, s33\ns_lshl_b32 s31, s31, 1\ns_and_b32 s34, s34, 1\ns_add_u32 s34, s34, s31")
    a(f"s_load_dwordx2 s[44:45], s[0:1], {KA['wd']}\ns_mul_i32 s31, s30, 10240\ns_mul_i32 s32, s28, {RW}")
    w1_voff(a)
    sk(1)
    a("s_waitcnt lgkmcnt(0)")
    sk(2)
    a(f"s_add_u32 s64, s4, {FL_OFF}\ns_addc_u32 s65, s5, 0\ns_load_dword s59, s[64:65], 0\ns_mov_b32 s66, 0x20000\ns_mov_b32 s67, 0x20000")
    a.srd(24, 8, 0, 2048 * 1280)
    a.srd(12, 40, 0, 640 * 3072); a.srd(16, 42, 0, 640 * 3072)
    a("s_cmp_ge_u32 s30, 256\ns_cbranch_scc1 H_NX")
    for i in range(10): a(f"buffer_load_dwordx4 {vr(RAW+4*i,4)}, v{vX}, s[24:27], s31 offen offset:{128*i}{ntx}")
    a("H_NX:")
    sk(3)
    a("s_waitcnt lgkmcnt(0)\ns_barrier")
    sk(4)
    a("s_add_u32 s59, s59, 1\ns_cmp_ge_u32 s34, 320\ns_cbranch_scc1 H_NW")
    a(f"s_lshr_b32 s35, s34, 4\ns_and_b32 s36, s34, 15\ns_mul_i32 s37, s35, 98304\ns_mul_i32 s38, s36, 192\ns_add_u32 s37, s37, s38\ns_add_u32 s38, s37, {16*3072}")
    for g in range(4):
        a(f"s_add_u32 m0, s32, {3072*g}\ns_nop 0")
        for i in range(3): a(f"buffer_load_dwordx4 v{vWd[i]}, s[{12+4*(g>>1)}:{15+4*(g>>1)}], s{37+(g&1)} offen offset:{1024*i}{ntw} lds")
    a("s_mul_i32 s36, s36, 245760\ns_mul_i32 s35, s35, 12288\ns_add_u32 s35, s35, s36\ns_branch H_J1\nH_NW:\ns_waitcnt vmcnt(0)\nH_J1:")
    st(1)
    a("s_cmp_ge_u32 s30, 256\ns_cbranch_scc1 H_NOST")
    for i in range(10):
        a(f"s_waitcnt vmcnt({12+9-i})")
        if i == 0: st(2)
        for k in range(4):
            a(f"v_lshlrev_b32 v{XF+8*i+2*k}, 16, v{RAW+4*i+k}\nv_and_b32 v{XF+8*i+2*k+1}, 0xffff0000, v{RAW+4*i+k}")
        for k in range(4):
            if i == 1: a(f"v_pk_add_f32 {vr(S+2*k,2)}, {vr(XF+2*k,2)}, {vr(XF+8+2*k,2)}")
            elif i > 1: a(f"v_pk_add_f32 {vr(S+2*k,2)}, {vr(S+2*k,2)}, {vr(XF+8*i+2*k,2)}")
    def red():
        a(f"v_pk_add_f32 {vr(S,2)}, {vr(S,2)}, {vr(S+2,2)}\nv_pk_add_f32 {vr(S+4,2)}, {vr(S+4,2)}, {vr(S+6,2)}\nv_pk_add_f32 {vr(S,2)}, {vr(S,2)}, {vr(S+4,2)}\nv_add_f32 v{S}, v{S}, v{S+1}")
        for m in ("quad_perm:[1,0,3,2]", "quad_perm:[2,3,0,1]", "row_half_mirror"):
            a(f"s_nop 1\nv_add_f32_dpp v{S}, v{S}, v{S} {m} row_mask:0xf bank_mask:0xf")
        a(f"v_mul_f32 v{S}, 0x3acccccd, v{S}")
    red()
    a(f"v_mov_b32 v{M}, v{S}")
    for i in range(41):
        if i < 40:
            x = vr(XF + 2 * i, 2); a(f"v_pk_add_f32 {x}, {x}, {vr(M,2)} op_sel_hi:[1,0] neg_lo:[0,1] neg_hi:[0,1]")
        if i >= 1:
            k = i - 1; y = vr(XF + 2 * k, 2); s = vr(S + 2 * (k & 3), 2)
            a(f"v_pk_mul_f32 {s}, {y}, {y}" if k < 4 else f"v_pk_fma_f32 {s}, {y}, {y}, {s}")
    red()
    a(f"v_cvt_pk_bf16_f32 v{S}, 0, v{S}\nv_add_f32 v{S}, 0x3727c5ac, v{S}\nv_cvt_pk_bf16_f32 v{S}, 0, v{S}\nv_sqrt_f32 v{S}, v{S}")
    a(f"v_mov_b32 v{S+3}, {TAG}\nv_cvt_pk_bf16_f32 v{S+2}, v{M}, v{S}\ns_lshl_b32 s31, s30, 6\ns_add_u32 s31, s31, {F_ST}")
    a(f"s_mov_b32 exec_lo, 0x01010101\ns_mov_b32 exec_hi, 0x01010101\nbuffer_store_dwordx2 {vr(S+2,2)}, v{vL}, s[64:67], s31 offen sc1\ns_mov_b64 exec, -1")
    a("H_NOST:")
    st(3)
    FR = 24
    a(f"v_lshlrev_b32 v{vX}, 4, v{vL}\ns_cmp_ge_u32 s34, 320\ns_cbranch_scc1 H_W2B")
    w1_addr(a, "s32")
    a.srd(12, 4, W1_OFF, 16 * 245760)
    a("s_waitcnt vmcnt(0)")
    sk(5)
    for ww in range(4):
        for x in w1_frag(lambda k: vr(FR + 12 * ww + k, 2), 48 * ww): a(x)
        if ww == 1: a("s_waitcnt lgkmcnt(3)")
    for f in range(12):
        if f % 3 == 0: a(f"s_waitcnt lgkmcnt({min(12, 18-2*f)})")
        a(f"buffer_store_dwordx4 {vr(FR+4*f,4)}, v{vX}, s[12:15], s35 offen offset:{1024*(f&3)} sc1")
        if f & 3 == 3: a("s_add_u32 s35, s35, 4096")
    sk(6)
    a(f"s_lshl_b32 s34, s34, 6\ns_add_u32 s34, s34, {F_W}\ns_waitcnt vmcnt(0)")
    sk(7)
    setflag(a, "s34")
    a("H_W2B:")
    st(4)
    a("s_cmp_ge_u32 s46, 128\ns_cbranch_scc1 H_J2")
    a.srd(12, 44, 0, 1536 * 1280)
    a(f"s_lshr_b32 s36, s46, 3\ns_and_b32 s35, s46, 7\ns_mul_i32 s37, s36, {96*1280}\ns_mul_i32 s38, s35, 160\ns_add_u32 s37, s37, s38")
    vD = [12, 13, 14, 15, 16]
    for j in range(5):
        a(f"v_add_u32 v{vT0}, {64*j}, v{vL}\nv_mul_u32_u24 v{vT1}, 6554, v{vT0}\nv_lshrrev_b32 v{vT1}, 16, v{vT1}\nv_mul_u32_u24 v{vT1}, {1280-160}, v{vT1}\nv_lshl_add_u32 v{vD[j]}, v{vT0}, 4, v{vT1}")
    for g in range(3):
        for j in range(5): a(f"s_add_u32 m0, s32, {5120*g+1024*j}\ns_nop 0\nbuffer_load_dwordx4 v{vD[j]}, s[12:15], s37 offen{ntw} lds")
        a(f"s_add_u32 s37, s37, {32*1280}")
    a("s_mul_i32 s35, s35, 245760\ns_mul_i32 s36, s36, 15360\ns_add_u32 s35, s35, s36")
    a.srd(12, 4, W2_OFF, 8 * 245760)
    vR = 12
    a(f"v_lshrrev_b32 v{vT0}, 4, v{vL}\nv_lshlrev_b32 v{vT0}, 3, v{vT0}\nv_bfe_u32 v{vT1}, v{vL}, 2, 2\nv_and_b32 v{vT2}, 3, v{vL}\nv_lshlrev_b32 v{vT2}, 3, v{vT2}\ns_movk_i32 s33, 160")
    for q in range(3):
        for h in range(2):
            tb = 0
            for kq in range(4):
                sl = 4 * q + kq; ww, i = sl // 3, sl % 3
                tb |= (24 * ww + (4 * i + 8 * h if i < 2 else 16 + 4 * h)) << (8 * kq)
            r = vR + 4 * q + 2 * h
            a(f"s_mov_b32 s36, {hex(tb)}\nv_bfe_u32 v{vT3}, s36, v{vT0}, 8\nv_add_u32 v{vT3}, v{vT3}, v{vT1}\nv_mad_u32_u24 v{vT3}, v{vT3}, s33, v{vT2}")
            a(f"v_add_u32 v{r+1}, s32, v{vT3}\nv_add_u32 v{r}, v{r+1}, v{vT2}")
    a("s_waitcnt vmcnt(0)")
    for q in range(3):
        for dt in range(5):
            for h in range(2):
                r = vR + 4 * q + 2 * h
                a(f"ds_read_b64_tr_b16 {vr(FR+20*q+4*dt+2*h,2)}, v{r if dt < 4 else r+1} offset:{64*(dt>>1)+8*(dt&1)}")
        a("s_waitcnt lgkmcnt(0)")
        for dt in range(5):
            f = 5 * q + dt
            a(f"buffer_store_dwordx4 {vr(FR+4*f,4)}, v{vX}, s[12:15], s35 offen offset:{1024*(f&3)} sc1")
            if f & 3 == 3: a("s_add_u32 s35, s35, 4096")
    a(f"s_lshl_b32 s34, s46, 6\ns_add_u32 s34, s34, {F_W+320*64}\ns_waitcnt vmcnt(0)")
    setflag(a, "s34")
    a("H_J2:")
    st(5)
    w1f_setup(a, vFw)
    a("s_barrier")
    st(6); st(7)

vH = [11, 12]; vB = 16; vO1, vO2, vPw, vPr, vPp, vF1, vL16 = 13, 14, 15, 24, 25, 26, 27
SUM, SQ, CS, ACC, FB, TMP = 28, 36, 44, 60, [156, 188], 220
def g1_setup(a, P):
    a.srd(8, 4, HT_OFF, 640 * 4096)
    a.srd(16, 4, HH_OFF, 128 * 49152)
    a(f"v_lshrrev_b32 v{vT0}, 4, v{vL}\nv_and_b32 v{vT1}, 15, v{vL}\nv_lshlrev_b32 v{vT2}, 1, v{vT0}\nv_xor_b32 v{vT2}, v{vT1}, v{vT2}")
    a(f"v_lshlrev_b32 v{vT2}, 4, v{vT2}\nv_lshl_add_u32 v{vH[0]}, v{vT0}, 12, v{vT2}\nv_xor_b32 v{vH[1]}, 128, v{vH[0]}\nv_add_u32 v{vH[1]}, {4*4096-1024}, v{vH[1]}")
    a(f"s_lshl_b32 s20, s28, 15\ns_lshl_b32 s25, s60, 8\ns_add_u32 s20, s20, s25\ns_lshl_b32 s26, s28, 11\ns_add_u32 s21, s20, {20*131072}\ns_lshl_b32 s24, s3, 17\ns_add_u32 s24, s24, s20")
    a.srd(48, 4, W2_OFF, 8 * 245760)
    a("s_and_b32 s55, s62, 3\ns_lshr_b32 s31, s63, 2\ns_add_u32 s55, s55, s31\ns_sub_u32 s31, s55, 3\ns_cselect_b32 s55, s55, s31")
    if P.get("norot2"): a("s_mov_b32 s55, 0")
    a(f"v_lshrrev_b32 v{vT2}, 3, v{vL}\nv_and_b32 v{vT3}, 7, v{vL}\nv_lshlrev_b32 v{vT3}, 4, v{vT3}\nv_lshl_add_u32 v6, v{vT2}, 12, v{vT3}")
    a("s_mul_i32 s46, s63, 80\ns_mul_i32 s47, s28, 24\ns_add_u32 s46, s46, s47\ns_lshl_b32 s46, s46, 12\ns_lshl_b32 s47, s62, 7\ns_add_u32 s46, s46, s47\ns_mul_i32 s47, s28, 3072")
    a("s_mul_i32 s54, s63, 245760\ns_mul_i32 s31, s28, 61440\ns_add_u32 s54, s54, s31\ns_add_u32 s53, s54, 61440\ns_mul_i32 s52, s55, 20480\ns_add_u32 s52, s52, s54")
    a(f"v_lshrrev_b32 v{vT2}, 2, v{vL}\nv_and_b32 v{vT3}, 7, v{vT2}\ns_lshl_b32 s27, s28, 1\nv_xor_b32 v{vT3}, s27, v{vT3}\nv_lshlrev_b32 v{vT3}, 5, v{vT3}")
    a(f"v_lshl_add_u32 v{vT3}, v{vT2}, 8, v{vT3}\nv_and_b32 v{vT2}, 3, v{vL}\nv_lshl_add_u32 v{vB}, v{vT2}, 3, v{vT3}")
    for i in range(1, 8): a(f"v_xor_b32 v{vB+i}, {32*i}, v{vB}")
    a(f"v_lshlrev_b32 v{vT1}, 4, v{vT1}\nv_lshrrev_b32 v{vT2}, 5, v{vL}\nv_and_b32 v{vT3}, 1, v{vT0}")
    a(f"s_mov_b32 s38, 49152\nv_mad_u32_u24 v{vO2}, v{vT2}, s38, v{vT1}\nv_lshl_add_u32 v{vO1}, v{vT3}, 8, v{vO2}")
    a(f"s_and_b32 s30, s28, 1\nv_xor_b32 v{vT3}, s30, v{vT3}\nv_mul_u32_u24 v{vT3}, 98304, v{vT3}\nv_add3_u32 v{vO2}, v{vO2}, v{vT3}, s38\nv_subrev_u32 v{vO2}, {49152-512}, v{vO2}")
    a("s_mul_i32 s30, s60, 393216\ns_mul_i32 s31, s61, 3072\ns_add_u32 s30, s30, s31\ns_mul_i32 s31, s28, 768\ns_add_u32 s30, s30, s31")
    for p in range(4): a(f"s_xor_b32 s31, s28, {p}\ns_mul_i32 s31, s31, 98304\ns_add_u32 s{32+p}, s30, s31")
    for q in range(2): a(f"s_lshr_b32 s31, s28, 1\ns_xor_b32 s31, s31, {q}\ns_mul_i32 s31, s31, 196608\ns_add_u32 s{36+q}, s30, s31")
    a(f"s_lshl_b32 s31, s28, 9\nv_add_u32 v{vPr}, s31, v{vT1}\nv_lshl_add_u32 v{vPp}, v{vT2}, 8, v{vPr}")
    a(f"v_lshrrev_b32 v{vT2}, 2, v{vL}\nv_xor_b32 v{vT2}, v{vT2}, v{vT0}\nv_and_b32 v{vT2}, 1, v{vT2}\nv_lshl_add_u32 v{vPw}, v{vT2}, 11, v{vPp}")
    a(f"v_lshrrev_b32 v{vT0}, 1, v{vL}\nv_and_b32 v{vT1}, 1, v{vL}\nv_lshl_add_u32 v{vT0}, v{vT0}, 3, v{vT1}\ns_lshl_b32 s31, s28, 7\ns_add_u32 s31, s31, {F_1}\nv_lshl_add_u32 v{vT0}, v{vT0}, 6, s31")
    a(f"s_lshl_b32 s31, s28, 5\ns_add_u32 s31, s31, s63\ns_lshl_b32 s31, s31, 6\ns_add_u32 s31, s31, {F_W+320*64}\nv_and_b32 v{vT1}, 3, v{vL}\nv_lshl_add_u32 v{vT1}, v{vT1}, 9, s31")
    a(f"v_cmp_gt_u32 vcc, 40, v{vL}\ns_mov_b32 s68, 0xaaaaaaaa\ns_mov_b32 s69, s68\nv_cndmask_b32 v{vF1}, v{vT1}, v{vT0}, vcc")
    a("s_mov_b32 s70, 0xcccccccc\ns_mov_b32 s71, s70\ns_mov_b32 s72, 0xff00ff00\ns_mov_b32 s73, s72\ns_mov_b32 s74, 0\ns_mov_b32 s75, -1")
    for i in range(4): a(f"v_mov_b32 v{TMP+i}, 0x3f803f80")
def cs_mf(s):
    return [f"v_mfma_f32_16x16x32_bf16 {vr(CS+4*t,4)}, {ar(12*s+4*t,4)}, {vr(TMP,4)}, {vr(CS+4*t,4) if s else 0}" for t in range(3)]
def gen_mid1(a, st, P):
    nin = P.get("nin", 20)
    a("P_WALL:")
    poll(a, 22, 23)
    for x in w1f_loads(0, nin): a(x)
    a("s_waitcnt vmcnt(0)\nP_MID:")
    for x in w1f_loads(nin, 20): a(x)
    st(8)
    g1_setup(a, P)
    a(f"buffer_load_dword v{vT3}, v{vF1}, s[64:67], 0 offen sc1")
    for s in range(20):
        if s >= nin: a(f"s_waitcnt vmcnt({3*(19-s)+1})")
        for x in cs_mf(s): a(x)
    poll(a, vF1, vT3, pre=0)
    st(9)
def h_dma(s):
    return [f"s_add_u32 m0, s26, {8192*s}", "s_nop 0", f"buffer_load_dwordx4 v{vH[0]}, s[8:11], s24 offen sc1 lds",
            f"buffer_load_dwordx4 v{vH[1]}, s[8:11], s24 offen offset:1024 sc1 lds", "s_add_u32 s24, s24, 131072", "s_cmp_eq_u32 s24, s21", "s_cselect_b32 s24, s20, s24"]
def w2f_load(f):
    x = f"buffer_load_dwordx4 {ar(4*f,4)}, v{vWa}, s[48:51], s52 offen offset:{1024*(f&3)} sc1"
    if f & 3 == 3 and f < 59: x += "\ns_add_u32 s52, s52, 4096"
    if f in (19, 39): x += "\ns_cmp_eq_u32 s52, s53\ns_cselect_b32 s52, s54, s52"
    return x
RES = 8192; RED = 24576
def g1_main(a, st, P):
    up = P.get("up", 10); bars = P.get("bars", [0, 1, 2, 4, 6, 8, 10, 12, 14, 16, 18])
    for s in range(up):
        for x in h_dma(s): a(x)
    for i in range(4): a(f"v_mov_b32 v{CS+12+i}, v{CS+8+i}")
    a("s_nop 1")
    for i in range(4): a(f"v_permlane32_swap_b32 v{CS+8+i}, v{CS+12+i}")
    def reads(s):
        p = s & 1
        return [f"ds_read_b64_tr_b16 {vr(FB[p]+4*i+2*h,2)}, v{vB+i} offset:{8192*(s&7)+4096*h}" for i in range(8) for h in range(2)]
    issued = up
    q = [c for c in range(up) for _ in range(2)]
    def sync(s):
        nb = min([b for b in bars if b > s] + [20])
        assert issued >= nb, (s, issued, nb)
        last = max(i for i, c in enumerate(q) if c == nb - 1)
        n = len(q) - 1 - last
        assert n < 60
        return [f"s_waitcnt vmcnt({n})", "s_barrier"]
    wp = P.get("w2pos", (17, 21, 25))
    for x in sync(0): a(x)
    st(10)
    for x in reads(0): a(x)
    a("s_or_b32 s31, s2, s28\ns_cbranch_scc1 M_NE")
    setflag(a, "0")
    a("M_NE:")
    for s in range(20):
        p = s & 1
        mf = []
        for ti in range(2):
            mf.append(f"v_mfma_f32_16x16x32_bf16 {vr(SQ+4*ti,4)}, {vr(FB[p]+4*ti,4)}, {vr(FB[p]+4*ti,4)}, {vr(SQ+4*ti,4) if s else 0}")
            mf.append(f"v_mfma_f32_16x16x32_bf16 {vr(SUM+4*ti,4)}, {vr(TMP,4)}, {vr(FB[p]+4*ti,4)}, {vr(SUM+4*ti,4) if s else 0}")
        for i in range(8):
            for t in range(3):
                d = vr(ACC + 12 * i + 4 * t, 4)
                mf.append(f"v_mfma_f32_16x16x32_bf16 {d}, {ar(12*s+4*t,4)}, {vr(FB[p]+4*i,4)}, {d if s else 0}")
        fill = [[] for _ in range(28)]
        a("s_waitcnt lgkmcnt(0)")
        if s < 19:
            if s + 1 in bars: fill[0] += sync(s + 1)
            if (s + 1) % 8 == 0: fill[0] += [f"v_add_u32 v{vB+i}, 0x10000, v{vB+i}" for i in range(8)]
            for i, x in enumerate(reads(s + 1)): fill[i].append(x)
            if issued < 20:
                d = h_dma(issued); issued += 1
                fill[19] += d[:3]; fill[23] += d[3:]
                ev = [(19, issued - 1), (23, issued - 1)]
            else: ev = []
            if s >= 1:
                for k in range(3): fill[wp[k]].append(w2f_load(3 * (s - 1) + k)); ev.append((wp[k] + 0.5, -1))
            q += [c for _, c in sorted(ev)]
        else:
            t = TMP + 4; q = SQ; S = SUM
            K1 = -LOG2E * 1.5957691216057308
            vs = [f"v_cndmask_b32 v{q}, v{q}, v{q+1}, s[68:69]", f"v_cndmask_b32 v{q+2}, v{q+2}, v{q+3}, s[68:69]",
                  f"v_cndmask_b32 v{q+4}, v{q+4}, v{q+5}, s[68:69]", f"v_cndmask_b32 v{q+6}, v{q+6}, v{q+7}, s[68:69]",
                  f"v_cndmask_b32 v{q}, v{q}, v{q+2}, s[70:71]", f"v_cndmask_b32 v{q+4}, v{q+4}, v{q+6}, s[70:71]",
                  f"v_cndmask_b32 v{S}, v{S}, v{S+4}, s[74:75]", f"v_mul_f32 v{S}, 0x3acccccd, v{S}",
                  f"v_permlane32_swap_b32 v{q}, v{q+4}", f"v_cvt_pk_bf16_f32 v{t+2}, 0, v{S}",
                  f"v_cndmask_b32 v{q}, v{q}, v{q+4}, s[72:73]", f"v_mul_f32 v{q}, 0x3acccccd, v{q}",
                  f"v_fma_f32 v{q}, -v{S}, v{S}, v{q}", f"v_max_f32 v{q}, 0, v{q}",
                  f"v_cvt_pk_bf16_f32 v{q}, 0, v{q}", f"v_add_f32 v{q}, 0x3727c5ac, v{q}", f"v_cvt_pk_bf16_f32 v{q}, 0, v{q}",
                  f"v_sqrt_f32 v{q}, v{q}", "s_nop 0", f"v_cvt_pk_bf16_f32 v{q}, 0, v{q}", f"v_rcp_f32 v{t}, v{q}", f"v_mul_f32 v{t+3}, v{q}, v{q}",
                  f"v_mul_f32 v{t+1}, v{t}, v{t}", f"v_mul_f32 v{t+1}, v{t+1}, v{t}",
                  f"v_mul_f32 v{t}, {fh(K1)}, v{t}", f"v_mul_f32 v{t+1}, {fh(K1*0.044715)}, v{t+1}", f"ds_write_b128 v{vPw}, {vr(t,4)}"]
            for i in range(1, 4): fill[i] += [f"v_xor_b32 v{vB+i}, {512*i}, v{vPr}", f"v_xor_b32 v{vB+4+i}, {512*i}, v{vPp}"]
            for k in range(3): fill[5 + 2 * k].append(w2f_load(54 + k))
            for i in range(11, 28):
                for _ in range(2):
                    if vs: fill[i].append(vs.pop(0))
            assert not vs
        for x in interleave(mf, fill): a(x)
def g1_epi(a, st, P):
    PR = FB[0]
    a("s_waitcnt lgkmcnt(0)\ns_barrier")
    st(11)
    for p in range(4):
        r = vPr if p == 0 else vB + p; q = vPp if p == 0 else vB + 4 + p
        a(f"ds_read_b128 {vr(PR+8*p,4)}, v{r}\nds_read_b128 {vr(PR+8*p+4,4)}, v{r} offset:256\nds_read_b128 {vr(PR+32+4*p,4)}, v{q}")
    for k in range(3): a(w2f_load(57 + k))
    for p in range(4):
        for i in range(4): a(f"v_permlane32_swap_b32 v{ACC+24*p+8+i}, v{ACC+24*p+20+i}")
        if p < 3: a(f"s_add_u32 m0, s47, {RES+1024*p}\ns_nop 0\nbuffer_load_dwordx4 v6, s[8:11], s46 offen sc1 lds\ns_add_u32 s46, s46, {8*4096}")
    E = TMP; O = TMP + 12; Z = TMP + 20
    def grp(items):
        def each(f):
            for k, it in enumerate(items):
                for j in (0, 2): f(it, E + 4 * k, j)
        each(lambda it, e, j: a(f"v_pk_fma_f32 {vr(it[0]+j,2)}, {vr(it[4]+2,2)}, {vr(it[2]+j,2)}, {vr(it[0]+j,2)} op_sel_hi:[0,1,1] neg_lo:[1,0,0] neg_hi:[1,0,0]"))
        each(lambda it, e, j: a(f"v_pk_mul_f32 {vr(e+j,2)}, {vr(it[0]+j,2)}, {vr(it[0]+j,2)}"))
        each(lambda it, e, j: a(f"v_pk_fma_f32 {vr(e+j,2)}, {vr(e+j,2)}, {vr(it[4],2)}, {vr(it[4],2)} op_sel:[0,1,0] op_sel_hi:[1,1,0]"))
        each(lambda it, e, j: a(f"v_pk_mul_f32 {vr(e+j,2)}, {vr(e+j,2)}, {vr(it[0]+j,2)}"))
        each(lambda it, e, j: a(f"v_exp_f32 v{e+j}, v{e+j}\nv_exp_f32 v{e+j+1}, v{e+j+1}\nv_pk_fma_f32 {vr(it[1]+j,2)}, {vr(it[4]+2,2)}, {vr(it[3]+j,2)}, {vr(it[1]+j,2)} op_sel_hi:[0,1,1] neg_lo:[1,0,0] neg_hi:[1,0,0]"))
        each(lambda it, e, j: a(f"v_pk_fma_f32 {vr(e+j,2)}, {vr(e+j,2)}, {vr(it[4]+2,2)}, {vr(it[4]+2,2)} op_sel:[0,1,1] op_sel_hi:[1,1,1]"))
        each(lambda it, e, j: a(f"v_rcp_f32 v{e+j}, v{e+j}\nv_rcp_f32 v{e+j+1}, v{e+j+1}\nv_pk_mul_f32 {vr(it[0]+j,2)}, {vr(it[0]+j,2)}, {vr(it[1]+j,2)}"))
        each(lambda it, e, j: a(f"v_pk_mul_f32 {vr(it[0]+j,2)}, {vr(it[0]+j,2)}, {vr(e+j,2)}"))
        each(lambda it, e, j: a(f"v_cvt_pk_bf16_f32 v{it[5]+j//2}, v{it[0]+j}, v{it[0]+j+1}"))
    for p in range(4):
        a(f"s_waitcnt lgkmcnt({9-3*p})")
        c = ACC + 24 * p; o = O + 4 * (p & 1); z = Z + 4 * (p >> 1)
        grp([(c, c + 4, CS, CS + 4, PR + 8 * p, o), (c + 12, c + 16, CS, CS + 4, PR + 8 * p + 4, o + 2), (c + 8, c + 20, CS + 8, CS + 12, PR + 32 + 4 * p, z + 2 * (p & 1))])
        a(f"v_permlane32_swap_b32 v{o}, v{o+2}\nv_permlane32_swap_b32 v{o+1}, v{o+3}")
        if p & 1: a(f"v_permlane16_swap_b32 v{z}, v{z+2}\nv_permlane16_swap_b32 v{z+1}, v{z+3}")
        a(f"buffer_store_dwordx4 {vr(o,4)}, v{vO1}, s[16:19], s{32+p} offen sc1")
        if p & 1: a(f"buffer_store_dwordx4 {vr(z,4)}, v{vO2}, s[16:19], s{36+(p>>1)} offen sc1")

def gen_g2(a, st, P):
    vHo = [6, 7, 8]; vWr = [9, 10, 11]; vRd, vTr, vTr4, vO, vO4, vR, vF2 = 12, 13, 14, 15, 16, 17, 18
    AC = [24, 44]; HB = 64
    vB16 = 19
    st(1)
    a(f"s_load_dwordx2 s[6:7], s[0:1], {KA['out']}")
    a("s_add_u32 s44, s28, s63\ns_and_b32 s44, s44, 3")
    if P.get("norot3"): a("s_mov_b32 s44, s28")
    a(f"v_lshlrev_b32 v{vB16}, 4, v{vL}")
    a(f"s_lshr_b32 s31, s62, 1\ns_lshl_b32 s31, s31, 2\ns_add_u32 s31, s31, s28\ns_lshl_b32 s31, s31, 8\ns_add_u32 s31, s31, {F_2}\nv_and_b32 v{vT2}, 3, v{vL}\nv_lshl_add_u32 v{vF2}, v{vT2}, 6, s31")
    for g in range(3):
        a(f"s_add_u32 s37, s55, {g}\ns_sub_u32 s38, s37, 3\ns_cselect_b32 s37, s37, s38\ns_lshl_b32 s37, s37, 12\nv_add_u32 v{vHo[g]}, s37, v{vB16}")
    a("s_lshl_b32 s35, s62, 2\ns_mul_i32 s36, s28, 12288")
    for j in range(4):
        a(f"s_add_u32 s37, s44, {j+1}\ns_and_b32 s37, s37, 3\ns_add_u32 s38, s37, s35\ns_mul_i32 s38, s38, 49152\ns_add_u32 s{40+j}, s38, s36")
        if j < 3: a(f"s_mul_i32 s37, s37, 15360\ns_add_u32 s37, s37, {RED+j*5120}\nv_add_u32 v{vWr[j]}, s37, v{vB16}")
    a(f"s_mul_i32 s37, s44, 15360\ns_add_u32 s37, s37, {RED}\nv_add_u32 v{vRd}, s37, v{vB16}")
    a(f"v_lshrrev_b32 v{vT0}, 4, v{vL}\nv_bfe_u32 v{vT1}, v{vL}, 2, 2\nv_lshlrev_b32 v{vO}, 3, v{vT2}\nv_lshl_add_u32 v{vO}, v{vT1}, 7, v{vO}\ns_lshl_b32 s37, s44, 5\ns_add_u32 s37, s37, {RES}\nv_add_u32 v{vO}, s37, v{vO}")
    a(f"v_lshl_add_u32 v{vTr}, v{vT0}, 10, v{vO}\nv_lshl_add_u32 v{vTr4}, v{vT0}, 9, v{vO}")
    a(f"v_and_b32 v{vO}, 1, v{vT1}\nv_lshlrev_b32 v{vO}, 8, v{vO}\nv_lshl_add_u32 v{vO}, v{vT2}, 1, v{vO}\nv_lshrrev_b32 v{vT1}, 1, v{vT1}\nv_add_u32 v{vO}, v{vO}, v{vT1}\nv_mul_u32_u24 v{vT1}, 1280, v{vO}")
    a(f"v_lshl_add_u32 v{vO}, v{vT0}, 4, v{vT1}\nv_lshl_add_u32 v{vO4}, v{vT0}, 3, v{vT1}")
    a("s_lshr_b32 s37, s62, 3\ns_lshl_b32 s37, s37, 9\ns_and_b32 s38, s62, 1\ns_lshl_b32 s38, s38, 2\ns_add_u32 s38, s38, s44\ns_lshl_b32 s38, s38, 5\ns_add_u32 s37, s37, s38")
    a("s_bfe_u32 s38, s62, 0x20001\ns_lshl_b32 s38, s38, 3\ns_add_u32 s37, s37, s38\ns_mul_i32 s37, s37, 1280\ns_mul_i32 s38, s63, 160\ns_add_u32 s45, s37, s38")
    a(f"s_lshl_b32 s31, s60, 4\ns_add_u32 s31, s31, s61\ns_lshl_b32 s31, s31, 6\ns_add_u32 s31, s31, {F_2}")
    a("s_waitcnt lgkmcnt(0)")
    a.srd(20, 6, 0, 2048 * 1280)
    a("s_waitcnt vmcnt(0)")
    st(2)
    a("s_barrier\ns_cmp_lg_u32 s28, 0\ns_cbranch_scc1 G_NF")
    setflag(a, "s31")
    a("G_NF:")
    st(3)
    poll(a, vF2, vT3)
    st(4)
    for j in range(4):
        for s in range(12): a(f"buffer_load_dwordx4 {vr(HB+48*j+4*s,4)}, v{vHo[s>>2]}, s[16:19], s{40+j} offen offset:{1024*(s&3)} sc1")
    st(5)
    X = HB; Hh = HB + 60; HU = HB + 72
    for j in range(4):
        c = AC[j & 1]
        fill = [[] for _ in range(60)]
        if j:
            for dt in range(5): fill[4 + 2 * dt].append(f"ds_write_b128 v{vWr[j-1]}, {vr(AC[(j-1)&1]+4*dt,4)} offset:{1024*dt}")
        if j == 3:
            fill[16] += ["s_waitcnt lgkmcnt(0)", "s_barrier"]
            rd = []
            for dt in range(5):
                rd.append(f"ds_read_b64_tr_b16 {vr(Hh+2*dt,2)}, v{vTr} offset:{(32*(dt>>1)+4*(dt&1))*128}" if dt < 4 else f"ds_read_b64_tr_b16 {vr(Hh+2*dt,2)}, v{vTr4} offset:{64*128}")
                for k in range(3): rd.append(f"ds_read_b128 {vr(X+12*dt+4*k,4)}, v{vRd} offset:{5120*k+1024*dt}")
            for i in range(10): fill[16 + i] += rd[2*i:2*i+2]
            vs = []
            for dt in range(5):
                x = X + 12 * dt; u = HU + 4 * dt
                o = []
                for h in range(2): o += [f"v_lshlrev_b32 v{u+2*h}, 16, v{Hh+2*dt+h}", f"v_and_b32 v{u+2*h+1}, 0xffff0000, v{Hh+2*dt+h}"]
                for k in range(4): o.append(f"v_add_f32 v{x+k}, v{x+k}, v{x+4+k}")
                for k in range(4): o.append(f"v_add_f32 v{u+k}, v{u+k}, v{x+8+k}")
                for k in range(4): o.append(f"v_add_f32 v{u+k}, v{u+k}, v{x+k}")
                o[0] = f"s_waitcnt lgkmcnt({min(12, 16-4*dt)})\n" + o[0]
                vs += o
            for i in range(26, 60):
                for _ in range(2):
                    if vs: fill[i].append(vs.pop(0))
        mf = []
        for s in range(12):
            for dt in range(5):
                d = vr(c + 4 * dt, 4)
                mf.append((f"s_waitcnt vmcnt({47-12*j-s})\n" if dt == 0 else "") + f"v_mfma_f32_16x16x32_bf16 {d}, {ar(20*s+4*dt,4)}, {vr(HB+48*j+4*s,4)}, {d if s else 0}")
        for k, x in enumerate(interleave(mf, fill)):
            a(x)
            if j == 0 and k == 0: st(6)
    for x in vs: a(x)
    st(7)
    O = X
    for dt in range(5):
        c = AC[1] + 4 * dt; u = HU + 4 * dt
        for h in range(2): a(f"v_pk_add_f32 {vr(u+2*h,2)}, {vr(u+2*h,2)}, {vr(c+2*h,2)}")
        for h in range(2): a(f"v_cvt_pk_bf16_f32 v{O+2*dt+h}, v{u+2*h}, v{u+2*h+1}")
        if dt in (1, 3): a(f"buffer_store_dwordx4 {vr(O+2*dt-2,4)}, v{vO}, s[20:23], s45 offen offset:{64*(dt>>1)}")
        if dt == 4: a(f"buffer_store_dwordx2 {vr(O+8,2)}, v{vO4}, s[20:23], s45 offen offset:128")

def gen_pk(name, stamp=0, P={}):
    a = Asm()
    sA = St(a, stamp == 1); sB = St(a, stamp == 2); sC = St(a, stamp > 0)
    a.l.append(kernel_head(name))
    a("s_cmp_ge_u32 s2, 256\ns_cbranch_scc1 P_END")
    sC(0)
    a(f"s_getpc_b64 s[68:69]\nP_PC:\ns_sub_u32 s68, s68, P_PC-{name}\ns_subb_u32 s69, s69, 0\ns_mov_b32 s70, P_END-{name}\ns_mov_b32 s71, 0x20000")
    a("s_lshr_b32 s31, s2, 3\ns_lshl_b32 s31, s31, 11\nv_lshlrev_b32 v2, 3, v0\nbuffer_load_dword v251, v2, s[68:71], s31 offen")
    a(f"s_load_dwordx16 s[8:23], s[0:1], 0\ns_load_dwordx2 s[4:5], s[0:1], {KA['ws']}\ns_load_dwordx4 s[40:43], s[0:1], {KA['wg']}")
    a("v_lshrrev_b32 v2, 6, v0\nv_and_b32 v1, 63, v0\ns_and_b32 s30, s2, 7\nv_readfirstlane_b32 s28, v2\ns_lshr_b32 s31, s2, 3")
    k1 = P.get("k1", 2); k2 = P.get("k2", 3)
    def mp(dlo, dhi, k, nlo):
        b = 3 - (nlo - k)
        a(f"s_lshr_b32 s32, s30, {b}\ns_lshl_b32 s32, s32, {k}\ns_and_b32 s33, s31, {(1<<k)-1}\ns_add_u32 s{dlo}, s32, s33")
        a(f"s_and_b32 s32, s30, {(1<<b)-1}\ns_lshl_b32 s32, s32, {5-k}\ns_lshr_b32 s33, s31, {k}\ns_add_u32 s{dhi}, s32, s33")
    mp(61, 60, k1, 4); mp(63, 62, k2, 3)
    a(f"s_lshl_b32 s32, s61, {1 if k1 <= 2 else 0}\ns_lshl_b32 s33, s60, {0 if k1 <= 2 else 1}\ns_add_u32 s32, s32, s33\ns_and_b32 s32, s32, 7\ns_mul_i32 s32, s32, 5\ns_lshr_b32 s3, s32, 1")
    if P.get("norot"): a("s_mov_b32 s3, 0")
    a("s_cmp_ge_u32 s2, 160\ns_cbranch_scc1 P_HELP")
    a("s_mul_i32 s29, s30, 20\ns_add_u32 s29, s29, s31")
    gen_conv(a, sA, P, St(a, stamp == 3))
    a("P_HELP:\ns_sub_u32 s29, s2, 160")
    gen_help(a, sA, St(a, stamp == 3), P)
    gen_mid1(a, sC, P)
    g1_main(a, sC, P)
    g1_epi(a, sC, P)
    gen_g2(a, sB, P)
    if "spin" in P:
        i, j, wg = P["spin"]
        a(f"s_waitcnt vmcnt(0) lgkmcnt(0)\ns_memrealtime s[100:101]\ns_cmp_lg_u32 s2, {wg}\ns_cbranch_scc1 P_END\ns_waitcnt lgkmcnt(0)")
        a(f"s_sub_u32 s30, s{76+2*j}, s{76+2*i}\ns_lshl_b32 s30, s30, 2\ns_min_u32 s30, s30, 30000\nP_SPIN:\ns_memrealtime s[32:33]\ns_waitcnt lgkmcnt(0)\ns_sub_u32 s32, s32, s100\ns_cmp_lt_u32 s32, s30\ns_cbranch_scc1 P_SPIN")
    else: sC.flush()
    a("P_END:\ns_endpgm")
    return a.text(), kernel_desc(name, 256, sgpr=102 if stamp else 80, agpr=256), f"; @launch grid=(256,1,1) block=(256,1,1) lds=163840"
KN = "sequential_preLN__ssm_conv_s4d__geglu_ffn__prompt"
if __name__ == "__main__":
    from build import assemble
    import sys
    for s in (0, 1, 2, 3): open(f"pk_s{s}.s", "w").write(assemble([gen_pk(KN + "_kernel", s)]))
    V = dict(n1=dict(nt=1), n2=dict(nt=2), n3=dict(nt=3))
    for n, pp in V.items():
        for s in (0, 1, 2, 3): open(f"pk_{n}_{s}.s", "w").write(assemble([gen_pk(KN + "_kernel", s, pp)]))
```

```python
from lib import *
import struct, math
fh = lambda x: hex(struct.unpack("<I", struct.pack("<f", x))[0])
FL_OFF = 0x1A00000
F_ST, F_W, F_1, F_2, F_2L, F_1L, F_C = 0x1000, 0x8000, 0x10000, 0x14000, 0x18000, 0x1C000, 0x1F000
CSO = 128 * 49152
vN = 252
RW = 21792; K1O = 4640; UO = 9248; UBO = 4224; XO = 17696
WST = 87296
NOWN = 6
vL = 1; vT0, vT1, vT2, vT3 = 2, 3, 4, 5
vWd = [6, 7, 8]; vWa, vWb = 9, 10
LOG2E = 1.4426950408889634
TAG = "s59"

MT = [0]
class St:
    def __init__(s, a, on): s.a, s.on = a, on
    def __call__(s, i):
        if s.on: s.a(f"{'s_memtime' if MT[0] else 's_memrealtime'} s[{76+2*i}:{77+2*i}]")
    def flush(s):
        if not s.on: return
        a = s.a
        a("s_waitcnt vmcnt(0) lgkmcnt(0)"); s(12)
        a.srd(8, 4, ST_OFF, 256 * 256)
        a("s_lshl_b32 s12, s2, 2\ns_add_u32 s12, s12, s28\ns_lshl_b32 s12, s12, 6\ns_waitcnt lgkmcnt(0)\nv_mov_b32 v2, s12")
        for i in range(13): a(f"v_mov_b32 v3, s{76+2*i}\nbuffer_store_dword v3, v2, s[8:11], 0 offen offset:{4*i}")

def poll(a, va, vd, pre=None, one=False):
    L = a.label("PL"); D = a.label("PD")
    if one: a("s_mov_b64 exec, 1")
    if pre is not None:
        a(f"s_waitcnt vmcnt({pre})\nv_cmp_ne_u32 vcc, {TAG}, v{vd}\ns_cbranch_vccz {D}\ns_mov_b64 exec, vcc")
    a(f"s_movk_i32 s58, 0x7fff\n{L}:")
    a(f"buffer_load_dword v{vd}, v{va}, s[64:67], 0 offen sc1\ns_waitcnt vmcnt(0)\nv_cmp_ne_u32 vcc, {TAG}, v{vd}\ns_cbranch_vccz {D}")
    a(f"s_mov_b64 exec, vcc\ns_sub_u32 s58, s58, 1\ns_cbranch_scc0 {L}\n{D}:\ns_mov_b64 exec, -1")
def touch(a, n):
    a("s_mov_b64 exec, 0")
    for w in range(4): a(f"s_cmp_eq_u32 s28, {w}\ns_cbranch_scc1 PAD_{n}{w}")
    a(f"RET_{n}:\ns_mov_b64 exec, -1")
def setflag(a, soff):
    a(f"v_mov_b32 v{vT0}, 0\nv_mov_b32 v{vT1}, {TAG}\ns_mov_b64 exec, 1\nbuffer_store_dword v{vT1}, v{vT0}, s[64:67], {soff} offen sc1\ns_mov_b64 exec, -1")

def cmul(d, x, w):
    return [f"v_pk_mul_f32 {vr(d,2)}, {vr(x,2)}, {vr(w,2)} op_sel_hi:[1,0]",
            f"v_pk_fma_f32 {vr(d,2)}, {vr(x,2)}, {vr(w,2)}, {vr(d,2)} op_sel:[1,1,0] op_sel_hi:[0,1,1] neg_lo:[1,0,0]"]

def w1_voff(a):
    for i in range(3):
        if i: a(f"v_add_u32 v{vT0}, {64*i}, v{vL}")
        s = vT0 if i else vL
        a(f"v_mul_u32_u24 v{vT1}, 5462, v{s}\nv_lshrrev_b32 v{vT1}, 16, v{vT1}\nv_mul_u32_u24 v{vT1}, {3072-192}, v{vT1}")
        a(f"v_lshl_add_u32 v{vWd[i]}, v{vL}, 4, v{vT1}")
def w1f_setup(a, vF):
    a.srd(12, 4, W1_OFF, 16 * 245760)
    a("s_mul_i32 s57, s61, 245760\ns_mul_i32 s31, s28, 3072\ns_add_u32 s57, s57, s31\ns_add_u32 s56, s57, 245760\ns_mul_i32 s39, s3, 12288\ns_add_u32 s39, s39, s57")
    a(f"v_min_u32 v{vF}, 19, v{vL}\nv_lshlrev_b32 v{vF}, 10, v{vF}\ns_lshl_b32 s31, s61, 6\ns_add_u32 s31, s31, {F_W}\nv_add_u32 v{vF}, s31, v{vF}\nv_lshlrev_b32 v{vWa}, 4, v{vL}")
def w1f_loads(c0, c1):
    o = []
    for c in range(c0, c1):
        for t in range(3):
            o.append(f"buffer_load_dwordx4 {ar(12*c+4*t,4)}, v{vWa}, s[12:15], s39 offen offset:{1024*t} sc1" +
                     ("\ns_add_u32 s39, s39, 12288\ns_cmp_eq_u32 s39, s56\ns_cselect_b32 s39, s57, s39" if t == 2 else ""))
    return o
def w1_addr(a, sbase):
    a(f"v_lshrrev_b32 v{vT0}, 2, v{vL}\nv_mul_u32_u24 v{vT0}, 192, v{vT0}\nv_add_u32 v{vT0}, {sbase}, v{vT0}")
    a(f"v_and_b32 v{vT1}, 3, v{vL}\nv_lshl_add_u32 v{vWa}, v{vT1}, 3, v{vT0}")
    a(f"v_bfe_u32 v{vT1}, v{vL}, 1, 1\nv_mul_u32_u24 v{vT1}, {6144-16}, v{vT1}\nv_add3_u32 v{vWb}, v{vWa}, v{vT1}, 32")
def w1_frag(dst, off):
    return [f"ds_read_b64_tr_b16 {dst(4*t+2*h)}, v{vWb if t == 2 else vWa} offset:{off+3072*h+(6144 if t == 1 else 0)}" for t in range(3) for h in range(2)]
def gen_conv(a, st, P0, sk):
    vA, vB, vK8, vK16, vK32, vKp, vUa, vKa, vXr, vTh, vSt, vFw, vD = 11, 12, 13, 14, 15, 16, 17, 18, 19, 20, 21, 22, 23
    XR, ST, ACC, FA, FB = 24, 40, 56, 72, 104
    W1, W8, W256, E, P, PK, PAR, vDt = 136, 138, 140, [142, 144], 146, 194, 210, 222
    a("s_lshl_b32 s30, s29, 2\ns_add_u32 s30, s30, s28")
    for i in range(12): a(f"v_mov_b32 v{PAR+i}, 0")
    a(f"v_lshlrev_b32 v{vT0}, 1, v{vL}\ns_mul_i32 s31, s30, 384\ns_and_b32 s32, s30, 0xfffffffe\ns_lshl_b32 s32, s32, 1")
    vG = 6
    a(f"v_mul_u32_u24 v{vG}, 10240, v0")
    a("s_waitcnt lgkmcnt(0)")
    a(f"s_add_u32 s64, s4, {FL_OFF}\ns_addc_u32 s65, s5, 0\ns_load_dword s59, s[64:65], 0\ns_load_dword s34, s[18:19], s32\ns_load_dword s35, s[20:21], s32")
    a.srd(24, 8, 0, 2048 * 1280)
    for i in range(4): a.srd(36 if i == 0 else 40 + 4 * i, 10 + 2 * i, 0, 640 * 384)
    PS = [36, 44, 48, 52]
    for p in range(3):
        for i in range(4):
            a(f"buffer_load_short_d16_hi v{PAR+4*p+i}, v{vT0}, s[{PS[i]}:{PS[i]+3}], s31 offen offset:{128*p}{' nt' if P0.get('nt', 0) >= 3 else ''}")
    a(f"s_lshr_b32 s31, s2, 3\ns_lshl_b32 s31, s31, 2\ns_add_u32 s31, s31, s28\ns_mul_i32 s31, s31, 26\nv_lshrrev_b32 v{vT0}, 1, v{vL}\nv_min_u32 v{vT0}, 25, v{vT0}\nv_add_u32 v{vT0}, s31, v{vT0}\nv_min_u32 v{vT0}, 2047, v{vT0}")
    a(f"v_mul_u32_u24 v{vT0}, 1280, v{vT0}\nv_and_b32 v{vT1}, 1, v{vL}\nv_mul_u32_u24 v{vT1}, 156, v{vT1}\nv_add_u32 v{vT0}, v{vT0}, v{vT1}\ns_and_b32 s31, s2, 7\ns_mul_i32 s31, s31, 160")
    a(f"buffer_load_dword v250, v{vT0}, s[24:27], s31 offen")
    npf = P0.get("npf", 0)
    if npf:
        a.srd(68, 42, 0, 640 * 3072)
        a(f"v_min_u32 v{vT0}, 23, v{vL}\nv_mul_u32_u24 v{vT1}, 21846, v{vT0}\nv_lshrrev_b32 v{vT1}, 16, v{vT1}\nv_mul_u32_u24 v{vT1}, {3072-384}, v{vT1}\nv_lshl_add_u32 v{vT0}, v{vT0}, 7, v{vT1}")
        a(f"s_lshr_b32 s31, s2, 3\ns_lshl_b32 s31, s31, 2\ns_add_u32 s31, s31, s28\ns_mul_i32 s31, s31, {8*3072}\ns_and_b32 s33, s2, 7\ns_mul_i32 s33, s33, 384\ns_add_u32 s31, s31, s33")
        a(f"buffer_load_dword v249, v{vT0}, s[68:71], s31 offen")
    gath = [("s_add_u32 s17, s17, 3840\n" if i in (3, 6) else "") + f"buffer_load_dwordx2 {vr(XR+2*i,2)}, v{vG}, s[24:27], s17 offen offset:{1280*(i%3)}" for i in range(8)]
    a("s_lshl_b32 s17, s29, 3")
    a(f"v_lshlrev_b32 v{vWa}, 4, v{vL}\ns_lshl_b32 s7, s30, 12")
    for i in range(4): a(f"v_mov_b32 v{vN+i}, -1")
    clr = [f"buffer_store_dwordx4 {vr(vN,4)}, v{vWa}, s[8:11], s7 offen offset:{1024*Q} sc1" for Q in range(4)]
    a(f"s_mov_b32 s66, 0x20000\ns_mov_b32 s67, 0x20000\ns_mul_i32 s32, s28, {RW}\ns_movk_i32 s33, 272")
    a.srd(8, 4, HT_OFF, 640 * 4096)
    a(f"v_and_b32 v{vT1}, 31, v{vL}\nv_lshrrev_b32 v{vT2}, 5, v{vL}")
    a(f"v_lshl_add_u32 v{vA}, v{vT2}, 4, s32\nv_mad_u32_u24 v{vB}, v{vT1}, s33, v{vA}")
    tab = {9: 1, 12: 1, 13: 2, 19: 1, 23: 1}
    lo = sum(tab.get(r, 0) << (2 * r) for r in range(16)); hi = sum(tab.get(r + 16, 0) << (2 * r) for r in range(16))
    a(f"s_mov_b32 s46, {hex(lo)}\ns_mov_b32 s47, {hex(hi)}\nv_lshlrev_b32 v{vT0}, 1, v{vT1}\nv_lshrrev_b64 {vr(P,2)}, v{vT0}, s[46:47]")
    a(f"v_and_b32 v{P}, 3, v{P}\nv_sub_u32 v{P}, v{vT1}, v{P}\nv_mad_u32_u24 v{vA}, v{P}, s33, v{vA}")
    a(f"s_add_u32 s33, s32, 512\nv_lshl_add_u32 v{vT0}, v{vT1}, 4, s33\nv_lshl_add_u32 v{vK16}, v{vT2}, 9, v{vT0}\nv_lshl_add_u32 v{vK32}, v{vT2}, 10, v{vT0}")
    a(f"v_mul_u32_u24 v{vT3}, 24, v{vT2}\nv_add3_u32 v{vKp}, v{vT0}, v{vT3}, 6\nv_lshlrev_b32 v{vT3}, 3, v{vT2}\nv_sub_u32 v{vK8}, v{vT0}, v{vT3}\nv_add_u32 v{vK8}, 8, v{vK8}")
    a(f"v_and_b32 v{vT0}, 15, v{vL}\nv_lshrrev_b32 v{vT1}, 4, v{vL}\nv_and_b32 v{vT2}, 1, v{vL}\nv_lshlrev_b32 v{vT1}, 4, v{vT1}")
    a(f"s_add_u32 s33, s32, {UO+UBO+8}\nv_lshl_add_u32 v{vUa}, v{vT0}, 2, s33\nv_mul_u32_u24 v{vT3}, {UBO+4}, v{vT2}\nv_sub_u32 v{vUa}, v{vUa}, v{vT3}\nv_add_u32 v{vUa}, v{vUa}, v{vT1}")
    a(f"v_lshrrev_b32 v{vT0}, 1, v{vT0}\nv_lshlrev_b32 v{vT0}, 6, v{vT0}")
    a(f"s_add_u32 s33, s32, {512+48-448}\nv_mul_u32_u24 v{vT3}, {K1O}, v{vT2}\nv_add3_u32 v{vKa}, v{vT0}, v{vT3}, s33\nv_sub_u32 v{vKa}, v{vKa}, v{vT1}")
    a(f"s_add_u32 s33, s32, {XO}\nv_lshl_add_u32 v{vT3}, v{vT2}, 3, s33\nv_add3_u32 v{vXr}, v{vT0}, v{vT1}, v{vT3}")
    a(f"v_lshlrev_b32 v{vTh}, 4, v0\nv_lshlrev_b32 v{vSt}, 6, v0\nv_add_u32 v{vSt}, {F_ST}, v{vSt}")
    a(f"v_cmp_eq_u32 s[68:69], 1, v{vT2}\nv_cmp_eq_u32 vcc, 0, v{vL}\ns_mov_b32 m0, s32")
    if P0.get("padA"): touch(a, "A")
    a("s_waitcnt lgkmcnt(0)\ns_barrier")
    a("s_add_u32 s59, s59, 1\ns_and_b32 s31, s30, 1\ns_lshl_b32 s31, s31, 4\ns_lshr_b32 s34, s34, s31\ns_lshl_b32 s34, s34, 16\ns_lshr_b32 s35, s35, s31\ns_lshl_b32 s35, s35, 16")
    a(f"v_mov_b32 v{vD}, s35\nv_cndmask_b32 v{vD}, 0, v{vD}, vcc\nv_mov_b32 v{vT0}, 0x3f80\nds_write_addtid_b32 v{vT0} offset:8704")
    a(f"v_mov_b32 v{vDt}, {fh(LOG2E)}\nv_mul_f32 v{vDt}, s34, v{vDt}\nv_exp_f32 v{vDt}, v{vDt}\ns_nop 0\nv_cvt_pk_bf16_f32 v{vDt}, 0, v{vDt}\nv_add_f32 v{vDt+1}, v{vDt}, v{vDt}")
    c = 1 / (2 * math.pi); chi = struct.unpack("<f", struct.pack("<f", c))[0]; clo = c - chi
    a(f"s_mov_b32 s12, {fh(chi)}\ns_mov_b32 s13, {fh(clo)}\ns_mov_b32 s14, {fh(LOG2E)}\ns_mov_b32 s15, 0x41000000\ns_mov_b32 s16, 0x43800000")
    st(1)
    def stat_loads():
        for k in range(4): a(f"buffer_load_dwordx4 {vr(ST+4*k,4)}, v{vSt}, s[64:67], 0 offen offset:{16*k} sc1")
    pend = []
    gpos = P0.get("gpos", [0, 0, 2, 2, 4, 4, 6, 6])
    cpos = P0.get("cpos", [])
    assert max(gpos + cpos) <= 8 + (P0.get("stj", 15) >> 3)
    for p in range(3):
        q = PAR + 4 * p; t = P
        sk(1 + 2 * p)
        a(f"s_waitcnt vmcnt({9+npf-4*p+sum(1 for g in gpos + cpos if g < 4*p)})")
        sk(2 + 2 * p)
        o = [f"v_mul_f32 v{q}, s14, v{q}", f"v_exp_f32 v{q}, v{q}", f"v_mul_f32 v{q+1}, v{q+1}, v{vDt}",
             f"v_mul_f32 v{t}, s12, v{q+1}", f"v_fma_f32 v{t+1}, v{q+1}, s12, -v{t}", f"v_cvt_pk_bf16_f32 v{q}, 0, v{q}",
             f"v_fma_f32 v{t+1}, v{q+1}, s13, v{t+1}", f"v_mul_f32 v{q}, v{q}, v{vDt}", f"v_fract_f32 v{t+2}, v{t}",
             f"v_mul_f32 v{q}, s14, v{q}",
             f"v_mul_f32 v{t+3}, s15, v{t+2}", f"v_mul_f32 v{t+4}, s16, v{t+2}", f"v_add_f32 v{t+2}, v{t+2}, v{t+1}",
             f"v_fract_f32 v{t+3}, v{t+3}", f"v_fract_f32 v{t+4}, v{t+4}",
             f"v_fma_f32 v{t+3}, v{t+1}, s15, v{t+3}", f"v_fma_f32 v{t+4}, v{t+1}, s16, v{t+4}",
             f"v_mul_f32 v{t+6}, s15, v{q}", f"v_mul_f32 v{t+8}, s16, v{q}",
             f"v_cos_f32 v{W8}, v{t+3}", f"v_sin_f32 v{W8+1}, v{t+3}", f"v_exp_f32 v{t+6}, -v{t+6}",
             f"v_cos_f32 v{W1}, v{t+2}", f"v_sin_f32 v{W1+1}, v{t+2}", f"v_exp_f32 v{t+10}, -v{q}",
             f"v_cos_f32 v{W256}, v{t+4}", f"v_sin_f32 v{W256+1}, v{t+4}", f"v_exp_f32 v{t+8}, -v{t+8}",
             f"v_mul_f32 v{E[0]}, v{q+2}, v{vDt+1}", f"v_mul_f32 v{E[0]+1}, v{q+3}, v{vDt+1}",
             f"v_mul_f32 v{W8}, v{W8}, v{t+6}", f"v_mul_f32 v{W8+1}, v{W8+1}, v{t+6}", f"v_mul_f32 v{W1}, v{W1}, v{t+10}", f"v_mul_f32 v{W1+1}, v{W1+1}, v{t+10}",
             f"v_mul_f32 v{W256}, v{W256}, v{t+8}", f"v_mul_f32 v{W256+1}, v{W256+1}, v{t+8}"]
        at = [1, 6, 12, 18, 21, 24, 27, 32]
        for i, x in enumerate(o):
            a(x)
            if pend and i in at: a(pend.pop(0))
        assert not pend
        R = {1: W1, 8: W256, "w8": W8}
        nxt = P
        plan = {2: (1, W1), 3: (2, W1), 4: (3, W1), 5: (4, W1), 6: (5, W1), 7: (6, W1),
                10: (2, W256), 11: (4, W256), 14: (6, W256), 15: ("w8", W256),
                16: (8, W256), 17: (11, W256), 18: (15, W256), 20: (16, W256), 21: (17, W256), 22: (18, W256),
                24: (20, W256), 25: (22, W256), 26: (24, W256), 27: (25, W256), 28: (26, W256), 29: (27, W256), 30: (28, W256), 31: (29, W256)}
        wr = []
        for j in range(32):
            e = E[j & 1]; pk = PK + 2 * (j & 7)
            xm = []
            if j in plan:
                R[j] = nxt; nxt += 2; xm = cmul(R[j], R[plan[j][0]], plan[j][1])
            em = cmul(E[(j + 1) & 1], e, W8) if j < 31 else []
            if xm: a(xm[0])
            if em: a(em[0])
            if xm: a(xm[1])
            a(f"v_cvt_pk_bf16_f32 v{pk}, v{e}, v{e+1}")
            if em: a(em[1])
            wr.append(f"ds_write_addtid_b32 v{pk} offset:{272*j}")
            if j in R:
                a(f"v_cvt_pk_bf16_f32 v{pk+1}, v{R[j]}, -v{R[j]+1}")
                wr.append(f"ds_write_addtid_b32 v{pk+1} offset:{8704+272*j}")
            if j & 7 == 7:
                for x in wr: a(x)
                wr = []
                for _ in range(gpos.count(4 * p + (j >> 3))): a(gath.pop(0))
                for _ in range(cpos.count(4 * p + (j >> 3))): a(clr.pop(0))
                if p == 2 and j == P0.get("stj", 15): stat_loads()
        for s in range(8):
            a(f"ds_read_b128 {vr(FA+4*s,4)}, v{vA} offset:{8704+32*s}\nds_read_b128 {vr(FB+4*s,4)}, v{vB} offset:{32*s}")
        d = vr(ACC, 16)
        pend = [f"s_waitcnt lgkmcnt({14-2*s})\nv_mfma_f32_32x32x16_bf16 {d}, {vr(FA+4*s,4)}, {vr(FB+4*s,4)}, {d if (p or s) else 0}" for s in range(8)]
    st(3); sk(7)
    XF = P; XP = PK
    a("s_waitcnt vmcnt(4)\ns_mov_b32 s12, 0x05040100\ns_mov_b32 s13, 0x07060302")
    fl = []
    for ch in range(4):
        for k, (r0, r1) in enumerate(((0, 2), (4, 6), (1, 3), (5, 7))):
            fl.append(f"v_perm_b32 v{XP+4*ch+k}, v{XR+2*r1+(ch>>1)}, v{XR+2*r0+(ch>>1)}, s{12+(ch&1)}")
    for i in range(16): fl += [f"v_lshlrev_b32 v{XF+2*i}, 16, v{XR+i}", f"v_and_b32 v{XF+2*i+1}, 0xffff0000, v{XR+i}"]
    for s in range(8):
        a(pend[s])
        for x in fl[6*s:6*s+6]: a(x)
    a(f"v_add_u32 v{vT3}, {XO}, v{vTh}\nv_mov_b32 v{FA}, 0\nv_mov_b32 v{FA+1}, 0\nv_lshl_add_u32 v{vT0}, v{vL}, 3, s32")
    a(f"v_bfe_u32 v{vT1}, v{vL}, 4, 1\nv_mul_u32_u24 v{vT1}, {UBO}, v{vT1}\nv_and_b32 v{vT2}, 15, v{vL}\nv_lshl_add_u32 v{vT1}, v{vT2}, 3, v{vT1}\nv_add_u32 v{vT1}, s32, v{vT1}")
    for ch in range(4): a(f"ds_write_b128 v{vT3}, {vr(XP+4*ch,4)} offset:{RW*ch}")
    a(f"ds_write_b64 v{vT0}, {vr(FA,2)}\nds_write_b64 v{vT0}, {vr(FA,2)} offset:{K1O}\nds_write_b64 v{vT1}, {vr(FA,2)} offset:{UO}")
    c = ACC; o = FB
    cv = lambda d, x, y: a(f"v_cvt_pk_bf16_f32 v{d}, v{x}, {'v%d' % y if y is not None else 0}")
    a(f"v_add_f32 v{c}, v{c}, v{vD}")
    for i in range(2): a(f"v_cndmask_b32 v{vT0+i}, v{c+12+2*i}, v{c+13+2*i}, s[68:69]")
    cv(o, c+3, c+2); cv(o+1, c+1, c); cv(o+2, c+7, c+6); cv(o+3, c+5, c+4)
    cv(o+4, c+2, c+1); cv(o+5, c, None); cv(o+6, c+6, c+5); cv(o+7, c+4, c+4)
    cv(o+8, c+10, c+10); cv(o+9, c+9, c+9); cv(o+10, c+9, c+8); cv(o+11, c+8, c+8)
    cv(o+12, c+10, c+9); cv(o+13, c+9, c+9); cv(o+14, c+8, c+8); cv(o+15, c+8, c+8)
    for i in range(2):
        x = c + 12 + 2 * i; y = x + 1; b = o + 16 + 8 * i
        cv(b, y, y); cv(b+1, y, vT0+i); cv(b+2, x, x); cv(b+3, x, x)
        cv(b+4, y, y); cv(b+5, vT0+i, x); cv(b+6, x, x); cv(b+7, x, x)
    a(f"ds_write_b64 v{vK8}, {vr(o,2)} offset:{K1O}\nds_write_b64 v{vK8}, {vr(o+2,2)} offset:{K1O+512}")
    a(f"ds_write_b64 v{vK8}, {vr(o+4,2)}\nds_write_b64 v{vK8}, {vr(o+6,2)} offset:512\nds_write_b16 v{vKp}, v{o}")
    a(f"ds_write_b128 v{vK16}, {vr(o+8,4)} offset:{K1O+1024}\nds_write_b128 v{vK16}, {vr(o+12,4)} offset:1024")
    for i in range(2):
        a(f"ds_write_b128 v{vK32}, {vr(o+16+8*i,4)} offset:{K1O+2048+512*i}\nds_write_b128 v{vK32}, {vr(o+20+8*i,4)} offset:{2048+512*i}")
    st(4)
    L = a.label("SL"); Dn = a.label("SD")
    a(f"s_movk_i32 s58, 0x7fff\n{L}:\ns_waitcnt vmcnt(0)")
    for k in range(8): a(f"v_xor_b32 v{ST+2*k+1}, {TAG}, v{ST+2*k+1}")
    a(f"v_or3_b32 v{vT0}, v{ST+1}, v{ST+3}, v{ST+5}\nv_or3_b32 v{vT1}, v{ST+7}, v{ST+9}, v{ST+11}\nv_or3_b32 v{vT0}, v{vT0}, v{ST+13}, v{ST+15}\nv_or_b32 v{vT0}, v{vT0}, v{vT1}")
    a(f"v_cmp_ne_u32 vcc, 0, v{vT0}\ns_cbranch_vccz {Dn}")
    stat_loads()
    a(f"s_sub_u32 s58, s58, 1\ns_cbranch_scc0 {L}\ns_waitcnt vmcnt(0)\n{Dn}:")
    st(5)
    for i in range(8): a(f"v_and_b32 v{ST+2*i+1}, 0xffff0000, v{ST+2*i}\nv_lshlrev_b32 v{ST+2*i}, 16, v{ST+2*i}")
    for i in range(8):
        for k in range(2): a(f"v_pk_add_f32 {vr(XF+4*i+2*k,2)}, {vr(XF+4*i+2*k,2)}, {vr(ST+2*i,2)} op_sel_hi:[1,0] neg_lo:[0,1] neg_hi:[0,1]")
        a(f"v_rcp_f32 v{ST+2*i+1}, v{ST+2*i+1}")
    for i in range(32): a(f"v_cvt_pk_bf16_f32 v{XF+i}, 0, v{XF+i}")
    for i in range(8):
        for k in range(2): a(f"v_pk_mul_f32 {vr(XF+4*i+2*k,2)}, {vr(XF+4*i+2*k,2)}, {vr(ST+2*i,2)} op_sel:[0,1] op_sel_hi:[1,1]")
    U = FA
    for ch in range(4):
        for k in range(4): cv(U + 6 * ch + k, XF + 8 * k + ch, XF + 8 * k + 4 + ch)
        for k in (1, 2): cv(U + 6 * ch + 3 + k, XF + 8 * k + ch, XF + 8 * k + 4 + ch)
    a(f"v_add_u32 v{vT0}, {UO+64}, v{vTh}")
    for ch in range(4): a(f"v_add_u32 v{XR+ch}, {UO+UBO+64+RW*ch}, v{vTh}")
    a("s_waitcnt lgkmcnt(0)\ns_barrier")
    for ch in range(4):
        a(f"ds_write_b128 v{vT0}, {vr(U+6*ch,4)} offset:{RW*ch}\nds_write_b64 v{XR+ch}, {vr(U+6*ch+4,2)} offset:8")
        a(f"ds_write2_b32 v{XR+ch}, v{U+6*ch}, v{U+6*ch+3} offset0:1 offset1:4")
    rw = P0.get("rw", 3); nin = P0.get("nin", 20)
    w1f_setup(a, vFw)
    if rw < 2: a(f"buffer_load_dword v{vD}, v{vFw}, s[64:67], 0 offen sc1")
    a(f"s_lshl_b32 s33, s30, 12")
    a("s_waitcnt lgkmcnt(0)\ns_barrier")
    st(6)
    wl = w1f_loads(0, nin)
    CA = 24; FT = [56, 120]; FG = [88, 152]; X = 184; XU = 200
    def reads(r):
        p = r & 1; o = []
        for i in range(8):
            o.append(f"ds_read_b128 {vr(FG[p]+4*i,4)}, v{vKa} offset:{512*i+64*(7-r)}")
            for hh in range(2): o.append(f"ds_read_b64 {vr(FT[p]+4*i+2*hh,2)}, v{vUa} offset:{512*i+64*r+8*hh}")
        return o
    if P0.get("force1"):
        a(f"s_lshl_b32 s31, s29, 6\ns_add_u32 s31, s31, {F_1}")
        setflag(a, "s31")
    for x in reads(0): a(x)
    for r in range(8):
        p = r & 1
        mf = []
        for sg in range(8):
            for dl in range(8 - sg):
                d = vr(CA + 4 * (sg + dl), 4)
                mf.append(f"v_mfma_f32_16x16x32_bf16 {d}, {vr(FT[p]+4*sg,4)}, {vr(FG[p]+4*dl,4)}, {d if (r or sg) else 0}")
        fill = [[] for _ in range(36)]
        if r < 7:
            for i, x in enumerate(reads(r + 1)): fill[i].append(x)
        if r == 0:
            for i in range(26, 34, 2):
                if clr: fill[i].append(clr.pop(0))
        if r == rw - 2: fill[35 if r == 0 else 25].append(f"buffer_load_dword v{vD}, v{vFw}, s[64:67], 0 offen sc1")
        if r == rw - 1: fill[34] += [f"s_waitcnt vmcnt({4 if r == 0 else 0})", f"v_cmp_ne_u32 s[70:71], {TAG}, v{vD}"]
        if r >= rw:
            re = P0.get("re", 8)
            n = -(-len(wl) // (re - r)) if r < re else 0
            if "wsch" in P0: n = P0["wsch"][r]
            for k in range(n): fill[(36 * k + 18) // n].append(wl.pop(0))
        if r == 6:
            for q in range(8): fill[24 + q].append(f"ds_read_b64 {vr(X+2*q,2)}, v{vXr} offset:{512*q}")
        if r == 7:
            for i in range(16): fill[i] += [f"v_lshlrev_b32 v{XU+2*i}, 16, v{X+i}", f"v_and_b32 v{XU+2*i+1}, 0xffff0000, v{X+i}"]
            done = {q: sum(8 - s for s in range(q)) + 8 for q in range(8)}
            ep = []
            for q in range(4):
                for k in range(4): ep.append((done[q], f"v_add_f32 v{CA+4*q+k}, v{CA+4*q+k}, v{XU+4*q+k}"))
                for k in range(2): ep.append((done[q], f"v_cvt_pk_bf16_f32 v{X+2*q+k}, v{CA+4*q+2*k}, v{CA+4*q+2*k+1}"))
            for i in range(16, 36):
                for _ in range(2):
                    if ep and ep[0][0] <= i: fill[i].append(ep.pop(0)[1])
            assert not ep
        a("s_waitcnt lgkmcnt(0)")
        for x in interleave(mf, fill): a(x)
    assert not wl
    st(7)
    a(f"s_waitcnt vmcnt({min(40, 3*nin)})")
    for Q in range(2): a(f"buffer_store_dwordx4 {vr(X+4*Q,4)}, v{vWa}, s[8:11], s33 offen offset:{1024*Q} sc1")
    for q in range(4, 8):
        if q == 6: a("s_nop 0")
        for k in range(2): a(f"v_pk_add_f32 {vr(CA+4*q+2*k,2)}, {vr(CA+4*q+2*k,2)}, {vr(XU+4*q+2*k,2)}")
        for k in range(2): a(f"v_cvt_pk_bf16_f32 v{X+2*q+k}, v{CA+4*q+2*k}, v{CA+4*q+2*k+1}")
        if q & 1: a(f"buffer_store_dwordx4 {vr(X+2*q-2,4)}, v{vWa}, s[8:11], s33 offen offset:{512*(q-1)} sc1")
    a(f"s_lshl_b32 s31, s29, 6\ns_add_u32 s31, s31, {F_1}")
    if P0.get("late1"): a("s_waitcnt vmcnt(0)")
    st(2)
    a("s_barrier\ns_cmp_lg_u32 s28, 0\ns_cbranch_scc1 M_NF")
    setflag(a, "s31")
    a("M_NF:")
    if P0.get("hold") == 1: a("s_barrier")
    if P0.get("hold") == 2: a("s_waitcnt vmcnt(0)\ns_barrier")
    a("s_cmp_eq_u64 s[70:71], 0\ns_cbranch_scc1 P_MID\ns_mul_i32 s39, s3, 12288\ns_add_u32 s39, s39, s57\ns_branch P_WALL")

def gen_help(a, st, sk, P={}):
    ntw = ' nt' if P.get('nt', 0) >= 1 else ''; ntx = ' nt' if P.get('nt', 0) >= 2 else ''
    vX, vFw = 11, 22
    S, M, RAW, XF = 24, 32, 36, 76
    a(f"v_lshrrev_b32 v{vT0}, 3, v{vL}\nv_and_b32 v{vT1}, 7, v{vL}\nv_lshlrev_b32 v{vT1}, 4, v{vT1}\ns_movk_i32 s33, 1280\nv_mad_u32_u24 v{vX}, v{vT0}, s33, v{vT1}")
    a("s_cmp_ge_u32 s29, 32\ns_cbranch_scc1 H_RB")
    a("s_lshr_b32 s34, s29, 3\ns_lshl_b32 s34, s34, 2\ns_add_u32 s34, s34, s28\ns_lshl_b32 s30, s29, 1\ns_add_u32 s30, s30, s28\ns_sub_u32 s46, s30, 2")
    a("s_cmp_lt_u32 s28, 2\ns_cselect_b32 s30, s30, 256\ns_cselect_b32 s46, 128, s46\ns_branch H_RJ\nH_RB:")
    a("s_mul_i32 s31, s29, 3\ns_add_u32 s31, s31, s28\ns_lshr_b32 s34, s29, 3\ns_mul_i32 s34, s34, 3\ns_add_u32 s34, s34, s28\ns_add_u32 s34, s34, 4\ns_sub_u32 s30, s31, 33\ns_add_u32 s46, s29, 32")
    a("s_cmp_eq_u32 s28, 0\ns_cselect_b32 s30, 256, s30\ns_cmp_eq_u32 s28, 3\ns_cselect_b32 s34, 40, s34\ns_cselect_b32 s46, s46, 128\nH_RJ:")
    a("s_lshr_b32 s31, s34, 1\ns_lshl_b32 s31, s31, 3\ns_and_b32 s33, s29, 7\ns_add_u32 s31, s31, s33\ns_lshl_b32 s31, s31, 1\ns_and_b32 s34, s34, 1\ns_add_u32 s34, s34, s31")
    a(f"s_load_dwordx2 s[44:45], s[0:1], {KA['wd']}\ns_mul_i32 s31, s30, 10240\ns_mul_i32 s32, s28, {RW}")
    w1_voff(a)
    sk(1)
    a("s_waitcnt lgkmcnt(0)")
    sk(2)
    a(f"s_add_u32 s64, s4, {FL_OFF}\ns_addc_u32 s65, s5, 0\ns_load_dword s59, s[64:65], 0\ns_mov_b32 s66, 0x20000\ns_mov_b32 s67, 0x20000")
    a.srd(24, 8, 0, 2048 * 1280)
    a.srd(12, 40, 0, 640 * 3072); a.srd(16, 42, 0, 640 * 3072)
    a("s_cmp_ge_u32 s30, 256\ns_cbranch_scc1 H_NX")
    for i in range(10): a(f"buffer_load_dwordx4 {vr(RAW+4*i,4)}, v{vX}, s[24:27], s31 offen offset:{128*i}{ntx}")
    a("H_NX:")
    sk(3)
    a("s_waitcnt lgkmcnt(0)\ns_barrier")
    sk(4)
    a("s_add_u32 s59, s59, 1\ns_cmp_ge_u32 s34, 320\ns_cbranch_scc1 H_NW")
    a(f"s_lshr_b32 s35, s34, 4\ns_and_b32 s36, s34, 15\ns_mul_i32 s37, s35, 98304\ns_mul_i32 s38, s36, 192\ns_add_u32 s37, s37, s38\ns_add_u32 s38, s37, {16*3072}")
    for g in range(4):
        a(f"s_add_u32 m0, s32, {3072*g}\ns_nop 0")
        for i in range(3): a(f"buffer_load_dwordx4 v{vWd[i]}, s[{12+4*(g>>1)}:{15+4*(g>>1)}], s{37+(g&1)} offen offset:{1024*i}{ntw} lds")
    a("s_mul_i32 s36, s36, 245760\ns_mul_i32 s35, s35, 12288\ns_add_u32 s35, s35, s36\ns_branch H_J1\nH_NW:\ns_waitcnt vmcnt(0)\nH_J1:")
    st(1)
    a("s_cmp_ge_u32 s30, 256\ns_cbranch_scc1 H_NOST")
    for i in range(10):
        a(f"s_waitcnt vmcnt({12+9-i})")
        if i == 0: st(2)
        for k in range(4):
            a(f"v_lshlrev_b32 v{XF+8*i+2*k}, 16, v{RAW+4*i+k}\nv_and_b32 v{XF+8*i+2*k+1}, 0xffff0000, v{RAW+4*i+k}")
        for k in range(4):
            if i == 1: a(f"v_pk_add_f32 {vr(S+2*k,2)}, {vr(XF+2*k,2)}, {vr(XF+8+2*k,2)}")
            elif i > 1: a(f"v_pk_add_f32 {vr(S+2*k,2)}, {vr(S+2*k,2)}, {vr(XF+8*i+2*k,2)}")
    def red():
        a(f"v_pk_add_f32 {vr(S,2)}, {vr(S,2)}, {vr(S+2,2)}\nv_pk_add_f32 {vr(S+4,2)}, {vr(S+4,2)}, {vr(S+6,2)}\nv_pk_add_f32 {vr(S,2)}, {vr(S,2)}, {vr(S+4,2)}\nv_add_f32 v{S}, v{S}, v{S+1}")
        for m in ("quad_perm:[1,0,3,2]", "quad_perm:[2,3,0,1]", "row_half_mirror"):
            a(f"s_nop 1\nv_add_f32_dpp v{S}, v{S}, v{S} {m} row_mask:0xf bank_mask:0xf")
        a(f"v_mul_f32 v{S}, 0x3acccccd, v{S}")
    red()
    a(f"v_mov_b32 v{M}, v{S}")
    for i in range(41):
        if i < 40:
            x = vr(XF + 2 * i, 2); a(f"v_pk_add_f32 {x}, {x}, {vr(M,2)} op_sel_hi:[1,0] neg_lo:[0,1] neg_hi:[0,1]")
        if i >= 1:
            k = i - 1; y = vr(XF + 2 * k, 2); s = vr(S + 2 * (k & 3), 2)
            a(f"v_pk_mul_f32 {s}, {y}, {y}" if k < 4 else f"v_pk_fma_f32 {s}, {y}, {y}, {s}")
    red()
    a(f"v_cvt_pk_bf16_f32 v{S}, 0, v{S}\nv_add_f32 v{S}, 0x3727c5ac, v{S}\nv_cvt_pk_bf16_f32 v{S}, 0, v{S}\nv_sqrt_f32 v{S}, v{S}")
    a(f"v_mov_b32 v{S+3}, {TAG}\nv_cvt_pk_bf16_f32 v{S+2}, v{M}, v{S}\ns_lshl_b32 s31, s30, 6\ns_add_u32 s31, s31, {F_ST}")
    a(f"s_mov_b32 exec_lo, 0x01010101\ns_mov_b32 exec_hi, 0x01010101\nbuffer_store_dwordx2 {vr(S+2,2)}, v{vL}, s[64:67], s31 offen sc1\ns_mov_b64 exec, -1")
    a("H_NOST:")
    st(3)
    FR = 24
    a(f"v_lshlrev_b32 v{vX}, 4, v{vL}\ns_cmp_ge_u32 s34, 320\ns_cbranch_scc1 H_W2B")
    w1_addr(a, "s32")
    a.srd(12, 4, W1_OFF, 16 * 245760)
    a("s_waitcnt vmcnt(0)")
    sk(5)
    for ww in range(4):
        for x in w1_frag(lambda k: vr(FR + 12 * ww + k, 2), 48 * ww): a(x)
        if ww == 1: a("s_waitcnt lgkmcnt(3)")
    for f in range(12):
        if f % 3 == 0: a(f"s_waitcnt lgkmcnt({min(12, 18-2*f)})")
        a(f"buffer_store_dwordx4 {vr(FR+4*f,4)}, v{vX}, s[12:15], s35 offen offset:{1024*(f&3)} sc1")
        if f & 3 == 3: a("s_add_u32 s35, s35, 4096")
    sk(6)
    a(f"s_lshl_b32 s34, s34, 6\ns_add_u32 s34, s34, {F_W}\ns_waitcnt vmcnt(0)")
    sk(7)
    setflag(a, "s34")
    a("H_W2B:")
    st(4)
    a("s_cmp_ge_u32 s46, 128\ns_cbranch_scc1 H_J2")
    a.srd(12, 44, 0, 1536 * 1280)
    a(f"s_lshr_b32 s36, s46, 3\ns_and_b32 s35, s46, 7\ns_mul_i32 s37, s36, {96*1280}\ns_mul_i32 s38, s35, 160\ns_add_u32 s37, s37, s38")
    vD = [12, 13, 14, 15, 16]
    for j in range(5):
        a(f"v_add_u32 v{vT0}, {64*j}, v{vL}\nv_mul_u32_u24 v{vT1}, 6554, v{vT0}\nv_lshrrev_b32 v{vT1}, 16, v{vT1}\nv_mul_u32_u24 v{vT1}, {1280-160}, v{vT1}\nv_lshl_add_u32 v{vD[j]}, v{vT0}, 4, v{vT1}")
    for g in range(3):
        for j in range(5): a(f"s_add_u32 m0, s32, {5120*g+1024*j}\ns_nop 0\nbuffer_load_dwordx4 v{vD[j]}, s[12:15], s37 offen{ntw} lds")
        a(f"s_add_u32 s37, s37, {32*1280}")
    a("s_mul_i32 s35, s35, 245760\ns_mul_i32 s36, s36, 15360\ns_add_u32 s35, s35, s36")
    a.srd(12, 4, W2_OFF, 8 * 245760)
    vR = 12
    a(f"v_lshrrev_b32 v{vT0}, 4, v{vL}\nv_lshlrev_b32 v{vT0}, 3, v{vT0}\nv_bfe_u32 v{vT1}, v{vL}, 2, 2\nv_and_b32 v{vT2}, 3, v{vL}\nv_lshlrev_b32 v{vT2}, 3, v{vT2}\ns_movk_i32 s33, 160")
    for q in range(3):
        for h in range(2):
            tb = 0
            for kq in range(4):
                sl = 4 * q + kq; ww, i = sl // 3, sl % 3
                tb |= (24 * ww + (4 * i + 8 * h if i < 2 else 16 + 4 * h)) << (8 * kq)
            r = vR + 4 * q + 2 * h
            a(f"s_mov_b32 s36, {hex(tb)}\nv_bfe_u32 v{vT3}, s36, v{vT0}, 8\nv_add_u32 v{vT3}, v{vT3}, v{vT1}\nv_mad_u32_u24 v{vT3}, v{vT3}, s33, v{vT2}")
            a(f"v_add_u32 v{r+1}, s32, v{vT3}\nv_add_u32 v{r}, v{r+1}, v{vT2}")
    a("s_waitcnt vmcnt(0)")
    for q in range(3):
        for dt in range(5):
            for h in range(2):
                r = vR + 4 * q + 2 * h
                a(f"ds_read_b64_tr_b16 {vr(FR+20*q+4*dt+2*h,2)}, v{r if dt < 4 else r+1} offset:{64*(dt>>1)+8*(dt&1)}")
        a("s_waitcnt lgkmcnt(0)")
        for dt in range(5):
            f = 5 * q + dt
            a(f"buffer_store_dwordx4 {vr(FR+4*f,4)}, v{vX}, s[12:15], s35 offen offset:{1024*(f&3)} sc1")
            if f & 3 == 3: a("s_add_u32 s35, s35, 4096")
    a(f"s_lshl_b32 s34, s46, 6\ns_add_u32 s34, s34, {F_W+320*64}\ns_waitcnt vmcnt(0)")
    setflag(a, "s34")
    a("H_J2:")
    st(5)
    w1f_setup(a, vFw)
    a("s_barrier")
    st(6); st(7)

vH = [11, 12]; vB = 16; vO1, vO2, vPw, vPr, vPp, vF1, vL16 = 13, 14, 15, 24, 25, 26, 27
SUM, SQ, CS, ACC, FB, TMP = 28, 36, 44, 60, [156, 188], 220
def g1_setup(a, P):
    a.srd(8, 4, HT_OFF, 640 * 4096)
    a.srd(16, 4, HH_OFF, CSO + 64 * 3072)
    a(f"v_lshrrev_b32 v{vT0}, 4, v{vL}\nv_and_b32 v{vT1}, 15, v{vL}\nv_lshlrev_b32 v{vT2}, 1, v{vT0}\nv_xor_b32 v{vT2}, v{vT1}, v{vT2}")
    a(f"v_lshlrev_b32 v{vT2}, 4, v{vT2}\nv_lshl_add_u32 v{vH[0]}, v{vT0}, 12, v{vT2}\nv_xor_b32 v{vH[1]}, 128, v{vH[0]}\nv_add_u32 v{vH[1]}, {4*4096-1024}, v{vH[1]}")
    a(f"s_lshl_b32 s20, s28, 15\ns_lshl_b32 s25, s60, 8\ns_add_u32 s20, s20, s25\ns_lshl_b32 s26, s28, 11\ns_add_u32 s21, s20, {20*131072}\ns_lshl_b32 s24, s3, 17\ns_add_u32 s24, s24, s20")
    a.srd(48, 4, W2_OFF, 8 * 245760)
    a("s_and_b32 s55, s62, 3\ns_lshr_b32 s31, s63, 2\ns_add_u32 s55, s55, s31\ns_sub_u32 s31, s55, 3\ns_cselect_b32 s55, s55, s31")
    if P.get("norot2"): a("s_mov_b32 s55, 0")
    a(f"v_lshrrev_b32 v{vT2}, 3, v{vL}\nv_and_b32 v{vT3}, 7, v{vL}\nv_lshlrev_b32 v{vT3}, 4, v{vT3}\nv_lshl_add_u32 v6, v{vT2}, 12, v{vT3}")
    a("s_mul_i32 s46, s63, 80\ns_mul_i32 s47, s28, 24\ns_add_u32 s46, s46, s47\ns_lshl_b32 s46, s46, 12\ns_lshl_b32 s47, s62, 7\ns_add_u32 s46, s46, s47\ns_mul_i32 s47, s28, 3072")
    a("s_mul_i32 s54, s63, 245760\ns_mul_i32 s31, s28, 61440\ns_add_u32 s54, s54, s31\ns_add_u32 s53, s54, 61440\ns_mul_i32 s52, s55, 20480\ns_add_u32 s52, s52, s54")
    a(f"v_lshrrev_b32 v{vT2}, 2, v{vL}\nv_and_b32 v{vT3}, 7, v{vT2}\ns_lshl_b32 s27, s28, 1\nv_xor_b32 v{vT3}, s27, v{vT3}\nv_lshlrev_b32 v{vT3}, 5, v{vT3}")
    a(f"v_lshl_add_u32 v{vT3}, v{vT2}, 8, v{vT3}\nv_and_b32 v{vT2}, 3, v{vL}\nv_lshl_add_u32 v{vB}, v{vT2}, 3, v{vT3}")
    for i in range(1, 8): a(f"v_xor_b32 v{vB+i}, {32*i}, v{vB}")
    a(f"v_lshlrev_b32 v{vT1}, 4, v{vT1}\nv_lshrrev_b32 v{vT2}, 5, v{vL}\nv_and_b32 v{vT3}, 1, v{vT0}")
    a(f"s_mov_b32 s38, 49152\nv_mad_u32_u24 v{vO2}, v{vT2}, s38, v{vT1}\nv_lshl_add_u32 v{vO1}, v{vT3}, 8, v{vO2}")
    a(f"s_and_b32 s30, s28, 1\nv_xor_b32 v{vT3}, s30, v{vT3}\nv_mul_u32_u24 v{vT3}, 98304, v{vT3}\nv_add3_u32 v{vO2}, v{vO2}, v{vT3}, s38\nv_subrev_u32 v{vO2}, {49152-512}, v{vO2}")
    a("s_mul_i32 s30, s60, 393216\ns_mul_i32 s31, s61, 3072\ns_add_u32 s30, s30, s31\ns_mul_i32 s31, s28, 768\ns_add_u32 s30, s30, s31")
    for p in range(4): a(f"s_xor_b32 s31, s28, {p}\ns_mul_i32 s31, s31, 98304\ns_add_u32 s{32+p}, s30, s31")
    for q in range(2): a(f"s_lshr_b32 s31, s28, 1\ns_xor_b32 s31, s31, {q}\ns_mul_i32 s31, s31, 196608\ns_add_u32 s{36+q}, s30, s31")
    a(f"s_lshl_b32 s31, s28, 9\nv_add_u32 v{vPr}, s31, v{vT1}\nv_lshl_add_u32 v{vPp}, v{vT2}, 8, v{vPr}")
    a(f"v_lshrrev_b32 v{vT2}, 2, v{vL}\nv_xor_b32 v{vT2}, v{vT2}, v{vT0}\nv_and_b32 v{vT2}, 1, v{vT2}\nv_lshl_add_u32 v{vPw}, v{vT2}, 11, v{vPp}")
    a(f"v_lshrrev_b32 v{vT0}, 1, v{vL}\nv_and_b32 v{vT1}, 1, v{vL}\nv_lshl_add_u32 v{vT0}, v{vT0}, 3, v{vT1}\ns_lshl_b32 s31, s28, 7\ns_add_u32 s31, s31, {F_1}\ns_add_u32 s31, s31, s6\nv_lshl_add_u32 v{vT0}, v{vT0}, 6, s31")
    a(f"s_lshl_b32 s31, s28, 5\ns_add_u32 s31, s31, s63\ns_lshl_b32 s31, s31, 6\ns_add_u32 s31, s31, {F_W+320*64}\nv_and_b32 v{vT1}, 3, v{vL}\nv_lshl_add_u32 v{vT1}, v{vT1}, 9, s31")
    a(f"v_cmp_gt_u32 vcc, 40, v{vL}\ns_mov_b32 s68, 0xaaaaaaaa\ns_mov_b32 s69, s68\nv_cndmask_b32 v{vF1}, v{vT1}, v{vT0}, vcc")
    a("s_mov_b32 s70, 0xcccccccc\ns_mov_b32 s71, s70\ns_mov_b32 s72, 0xff00ff00\ns_mov_b32 s73, s72\ns_mov_b32 s74, 0\ns_mov_b32 s75, -1")
    a(f"s_mul_i32 s31, s63, 1280\ns_add_u32 s31, s31, {F_1L}\nv_lshl_add_u32 v8, v{vL}, 6, s31")
    a(f"s_lshl_b32 s31, s61, 2\ns_add_u32 s31, s31, s28\ns_mul_i32 s22, s31, 3072\ns_add_u32 s22, s22, {CSO}\ns_lshl_b32 s23, s31, 6\ns_add_u32 s23, s23, {F_C}")
    a(f"v_mov_b32 v7, s23\nv_cmp_gt_u32 vcc, 20, v{vL}\nv_cndmask_b32 v8, v7, v8, vcc")
    for i in range(4): a(f"v_mov_b32 v{vN+i}, -1")
    for i in range(4): a(f"v_mov_b32 v{TMP+i}, 0x3f803f80")
    a("s_nop 1")
def cs_mf(s):
    return [f"v_mfma_f32_16x16x32_bf16 {vr(CS+4*t,4)}, {ar(12*s+4*t,4)}, {vr(TMP,4)}, {vr(CS+4*t,4) if s else 0}" for t in range(3)]
def gen_mid1(a, st, P):
    nin = P.get("nin", 20); nin0 = 0
    a("P_WALL:")
    poll(a, 22, 23)
    for x in w1f_loads(0, nin): a(x)
    a("s_waitcnt vmcnt(0)\nP_MID:")
    for x in w1f_loads(nin, 20): a(x)
    st(8)
    g1_setup(a, P)
    touch(a, "B")
    if True:
        a("s_cmp_lt_u32 s2, 160\ns_cbranch_scc1 M_P2")
        assert P["k1"] == 3
        a("s_and_b32 s31, s2, 0xc3\ns_cmp_lg_u32 s31, 0xc0\ns_cbranch_scc1 M_P1\ns_waitcnt vmcnt(0)")
        for s in range(20):
            for x in cs_mf(s): a(x)
        a("s_nop 7")
        for t in range(3): a(f"buffer_store_dwordx4 {vr(CS+4*t,4)}, v{vWa}, s[16:19], s22 offen offset:{1024*t} sc1")
        a("s_waitcnt vmcnt(0)")
        setflag(a, "s23")
        a("M_P1:")
        if not P.get("nopf2"):
            a(f"v_lshlrev_b32 v{vT2}, 6, v{vL}\nv_add_u32 v{vT2}, {F_W+320*64}, v{vT2}")
            poll(a, vT2, vT3)
            a(f"v_add_u32 v{vT2}, 4096, v{vT2}")
            poll(a, vT2, vT3)
            a(f"v_lshrrev_b32 v{vT3}, 3, v{vL}\nv_lshlrev_b32 v{vT3}, 12, v{vT3}\nv_lshl_add_u32 v{vT2}, v{vL}, 7, v{vT3}\ns_lshr_b32 s31, s29, 3\ns_lshl_b32 s31, s31, 2\ns_add_u32 s31, s31, s28\ns_mul_i32 s31, s31, 40960")
            for k in P.get("pf2", (0, 2)): a(f"buffer_load_dword v{250+k}, v{vT2}, s[48:51], s31 offen offset:{1024*k} sc1")
        poll(a, vF1, vT3, one=True)
        a("M_P2:")
    poll(a, vF1, vT3)
    st(9)
    if not P.get("nobar1"): a("s_barrier")
def h_dma(s):
    return [f"s_add_u32 m0, s26, {8192*s}", "s_nop 0", f"buffer_load_dwordx4 v{vH[0]}, s[8:11], s24 offen sc1 lds",
            f"buffer_load_dwordx4 v{vH[1]}, s[8:11], s24 offen offset:1024 sc1 lds", "s_add_u32 s24, s24, 131072", "s_cmp_eq_u32 s24, s21", "s_cselect_b32 s24, s20, s24"]
def w2f_load(f):
    x = f"buffer_load_dwordx4 {ar(4*f,4)}, v{vWa}, s[48:51], s52 offen offset:{1024*(f&3)} sc1"
    if f & 3 == 3 and f < 59: x += "\ns_add_u32 s52, s52, 4096"
    if f in (19, 39): x += "\ns_cmp_eq_u32 s52, s53\ns_cselect_b32 s52, s54, s52"
    return x
RES = 8192; RED = 24576
def g1_main(a, st, P):
    up = P.get("up", 10); bars = P.get("bars", [0, 1, 2, 4, 6, 8, 10, 12, 14, 16, 18])
    for s in range(up):
        for x in h_dma(s): a(x)
    def reads(s):
        p = s & 1
        return [f"ds_read_b64_tr_b16 {vr(FB[p]+4*i+2*h,2)}, v{vB+i} offset:{8192*(s&7)+4096*h}" for i in range(8) for h in range(2)]
    issued = up
    q = [c for c in range(up) for _ in range(2)]
    def sync(s):
        nb = min([b for b in bars if b > s] + [20])
        assert issued >= nb, (s, issued, nb)
        last = max(i for i, c in enumerate(q) if c == nb - 1)
        n = len(q) - 1 - last
        assert n < 60
        return [f"s_waitcnt vmcnt({n})", "s_barrier"]
    wp = P.get("w2pos", (17, 21, 25)); nw2 = 0
    for x in sync(0): a(x)
    st(10)
    for x in reads(0): a(x)
    a(f"s_cmp_lg_u32 s28, 0\ns_cbranch_scc1 M_NE\ns_cmp_ge_u32 s2, 160\ns_cbranch_scc1 M_NE\ns_lshl_b32 s31, s29, 6\ns_add_u32 s31, s31, {F_1L}")
    setflag(a, "s31")
    a("s_cmp_lg_u32 s2, 0\ns_cbranch_scc1 M_NE")
    setflag(a, "0")
    a("M_NE:")
    hclr = [f"buffer_store_dwordx4 {vr(vN,4)}, v{vO1 if k < 4 else vO2}, s[16:19], s{32+k} offen sc1" for k in range(6)]
    for s in range(20):
        p = s & 1
        mf = []
        for ti in range(2):
            mf.append(f"v_mfma_f32_16x16x32_bf16 {vr(SQ+4*ti,4)}, {vr(FB[p]+4*ti,4)}, {vr(FB[p]+4*ti,4)}, {vr(SQ+4*ti,4) if s else 0}")
            mf.append(f"v_mfma_f32_16x16x32_bf16 {vr(SUM+4*ti,4)}, {vr(TMP,4)}, {vr(FB[p]+4*ti,4)}, {vr(SUM+4*ti,4) if s else 0}")
        for i, t in ([(i, t) for t in range(3) for i in range(8)] if P.get("tmaj") else [(i, t) for i in range(8) for t in range(3)]):
                d = vr(ACC + 12 * i + 4 * t, 4)
                mf.append(f"v_mfma_f32_16x16x32_bf16 {d}, {ar(12*s+4*t,4)}, {vr(FB[p]+4*i,4)}, {d if s else 0}")
        fill = [[] for _ in range(28)]
        if P.get("cyc") and s in (0, 4, 8, 12, 16): a(f"s_memtime s[{78+2*(s//4)}:{79+2*(s//4)}]")
        a("s_waitcnt lgkmcnt(0)")
        if s < 19:
            if s + 1 in bars: fill[0] += sync(s + 1)
            if (s + 1) % 8 == 0: fill[0] += [f"v_add_u32 v{vB+i}, 0x10000, v{vB+i}" for i in range(8)]
            for i, x in enumerate(reads(s + 1)): fill[i].append(x)
            if issued < 20:
                d = h_dma(issued); issued += 1
                fill[19] += d[:3]; fill[23] += d[3:]
                ev = [(19, issued - 1), (23, issued - 1)]
                if s < P.get("dbl", 0) and issued < 20:
                    d = h_dma(issued); issued += 1
                    fill[24] += d[:3]; fill[26] += d[3:]
                    ev += [(24, issued - 1), (26, issued - 1)]
            else: ev = []
            if s >= P.get("w2s", 1):
                for k in range(len(wp)):
                    if nw2 < 3 * s: fill[wp[k]].append(w2f_load(nw2)); ev.append((wp[k] + 0.5, -1)); nw2 += 1
            if s >= P.get("hcs", 3) and hclr: fill[27].append(hclr.pop(0)); ev.append((27.7, -2))
            if s == 11: fill[27].append("buffer_load_dword v7, v8, s[64:67], 0 offen sc1"); ev.append((27.8, -3))
            if s == 14:
                n = len(q) - 1 - q.index(-3)
                fill[16].append(f"s_waitcnt vmcnt({n})\nv_cmp_ne_u32 vcc, {TAG}, v7\ns_cbranch_vccnz G1_P\nG1_PC:")
            if s in (15, 16):
                for i in (19, 23):
                    t = 2 * (s - 15) + (i == 23)
                    fill[i].append(f"buffer_load_dwordx4 {vr(CS+4*t,4)}, v{vWa}, s[16:19], s22 offen offset:{1024*min(t,2)} sc1"); ev.append((i + 0.2, -4))
            if s == 12 and P.get("force2"):
                fill[27].append(f"s_waitcnt vmcnt(0)\ns_barrier\ns_lshl_b32 s31, s60, 4\ns_add_u32 s31, s31, s61\ns_lshl_b32 s31, s31, 6\ns_add_u32 s31, s31, {F_2}\nv_mov_b32 v2, 0\nv_mov_b32 v3, s59\nbuffer_store_dword v3, v2, s[64:67], s31 offen sc1")
            q += [c for _, c in sorted(ev)]
            if s == 18: P["_nres"] = len(q) - 1 - max(i for i, c in enumerate(q) if c == -4) + 57 - nw2; assert not hclr and max(i for i, c in enumerate(q) if c == -2) < q.index(-3)
        else:
            t = TMP + 4; q = SQ; S = SUM
            K1 = -LOG2E * 1.5957691216057308
            vs = [f"v_cndmask_b32 v{q}, v{q}, v{q+1}, s[68:69]", f"v_cndmask_b32 v{q+2}, v{q+2}, v{q+3}, s[68:69]",
                  f"v_cndmask_b32 v{q+4}, v{q+4}, v{q+5}, s[68:69]", f"v_cndmask_b32 v{q+6}, v{q+6}, v{q+7}, s[68:69]",
                  f"v_cndmask_b32 v{q}, v{q}, v{q+2}, s[70:71]", f"v_cndmask_b32 v{q+4}, v{q+4}, v{q+6}, s[70:71]",
                  f"v_cndmask_b32 v{S}, v{S}, v{S+4}, s[74:75]", f"v_mul_f32 v{S}, 0x3acccccd, v{S}",
                  f"v_permlane32_swap_b32 v{q}, v{q+4}", f"v_cvt_pk_bf16_f32 v{t+2}, 0, v{S}",
                  f"v_cndmask_b32 v{q}, v{q}, v{q+4}, s[72:73]", f"v_mul_f32 v{q}, 0x3acccccd, v{q}",
                  f"v_fma_f32 v{q}, -v{S}, v{S}, v{q}", f"v_max_f32 v{q}, 0, v{q}",
                  f"v_cvt_pk_bf16_f32 v{q}, 0, v{q}", f"v_add_f32 v{q}, 0x3727c5ac, v{q}", f"v_cvt_pk_bf16_f32 v{q}, 0, v{q}",
                  f"v_sqrt_f32 v{q}, v{q}", "s_nop 0", f"v_cvt_pk_bf16_f32 v{q}, 0, v{q}", f"v_rcp_f32 v{t}, v{q}", f"v_mul_f32 v{t+3}, v{q}, v{q}",
                  f"v_mul_f32 v{t+1}, v{t}, v{t}", f"v_mul_f32 v{t+1}, v{t+1}, v{t}",
                  f"v_mul_f32 v{t}, {fh(K1)}, v{t}", f"v_mul_f32 v{t+1}, {fh(K1*0.044715)}, v{t+1}", f"ds_write_b128 v{vPw}, {vr(t,4)}"]
            for i in range(1, 4): fill[i] += [f"v_xor_b32 v{vB+i}, {512*i}, v{vPr}", f"v_xor_b32 v{vB+4+i}, {512*i}, v{vPp}"]
            for k in range(57 - nw2): fill[4 + k % 24].append(w2f_load(nw2 + k))
            for i in range(11, 28):
                for _ in range(2):
                    if vs: fill[i].append(vs.pop(0))
            assert not vs
        for x in interleave(mf, fill): a(x)
def g1_epi(a, st, P):
    PR = FB[0]
    if P.get("cyc"): a("s_memtime s[88:89]")
    a("s_waitcnt lgkmcnt(0)\ns_barrier")
    st(11)
    for p in range(4):
        r = vPr if p == 0 else vB + p; q = vPp if p == 0 else vB + 4 + p
        a(f"ds_read_b128 {vr(PR+8*p,4)}, v{r}\nds_read_b128 {vr(PR+8*p+4,4)}, v{r} offset:256\nds_read_b128 {vr(PR+32+4*p,4)}, v{q}")
    a(f"s_waitcnt vmcnt({P['_nres']})")
    for i in range(4): a(f"v_permlane32_swap_b32 v{CS+8+i}, v{CS+12+i}")
    for k in range(3): a(w2f_load(57 + k))
    for p in range(4):
        for i in range(4): a(f"v_permlane32_swap_b32 v{ACC+24*p+8+i}, v{ACC+24*p+20+i}")
        if p < 3: a(f"s_add_u32 m0, s47, {RES+1024*p}\ns_nop 0\nbuffer_load_dwordx4 v6, s[8:11], s46 offen sc1 lds\ns_add_u32 s46, s46, {8*4096}")
    E = TMP; O = TMP + 12; Z = TMP + 20
    m = [PR + 4 * i + 2 for i in range(8)]
    a(f"s_waitcnt lgkmcnt(0)\nv_fma_f32 v2, v{m[0]}, v{m[1]}, v{m[2]}\nv_fma_f32 v3, v{m[3]}, v{m[4]}, v{m[5]}\nv_fma_f32 v2, v{m[6]}, v{m[7]}, v2\nv_cmp_u_f32 vcc, v2, v3\ns_cbranch_vccnz G1_REDO\nG1_CONT:")
    def grp(items):
        def each(f):
            for k, it in enumerate(items):
                for j in (0, 2): f(it, E + 4 * k, j)
        each(lambda it, e, j: a(f"v_pk_fma_f32 {vr(it[0]+j,2)}, {vr(it[4]+2,2)}, {vr(it[2]+j,2)}, {vr(it[0]+j,2)} op_sel_hi:[0,1,1] neg_lo:[1,0,0] neg_hi:[1,0,0]"))
        each(lambda it, e, j: a(f"v_pk_mul_f32 {vr(e+j,2)}, {vr(it[0]+j,2)}, {vr(it[0]+j,2)}"))
        each(lambda it, e, j: a(f"v_pk_fma_f32 {vr(e+j,2)}, {vr(e+j,2)}, {vr(it[4],2)}, {vr(it[4],2)} op_sel:[0,1,0] op_sel_hi:[1,1,0]"))
        each(lambda it, e, j: a(f"v_pk_mul_f32 {vr(e+j,2)}, {vr(e+j,2)}, {vr(it[0]+j,2)}"))
        each(lambda it, e, j: a(f"v_exp_f32 v{e+j}, v{e+j}\nv_exp_f32 v{e+j+1}, v{e+j+1}\nv_pk_fma_f32 {vr(it[1]+j,2)}, {vr(it[4]+2,2)}, {vr(it[3]+j,2)}, {vr(it[1]+j,2)} op_sel_hi:[0,1,1] neg_lo:[1,0,0] neg_hi:[1,0,0]"))
        each(lambda it, e, j: a(f"v_pk_fma_f32 {vr(e+j,2)}, {vr(e+j,2)}, {vr(it[4]+2,2)}, {vr(it[4]+2,2)} op_sel:[0,1,1] op_sel_hi:[1,1,1]"))
        each(lambda it, e, j: a(f"v_rcp_f32 v{e+j}, v{e+j}\nv_rcp_f32 v{e+j+1}, v{e+j+1}\nv_pk_mul_f32 {vr(it[0]+j,2)}, {vr(it[0]+j,2)}, {vr(it[1]+j,2)}"))
        each(lambda it, e, j: a(f"v_pk_mul_f32 {vr(it[0]+j,2)}, {vr(it[0]+j,2)}, {vr(e+j,2)}"))
        each(lambda it, e, j: a(f"v_cvt_pk_bf16_f32 v{it[5]+j//2}, v{it[0]+j}, v{it[0]+j+1}"))
    for p in range(4):
        c = ACC + 24 * p; o = O + 4 * (p & 1); z = Z + 4 * (p >> 1)
        grp([(c, c + 4, CS, CS + 4, PR + 8 * p, o), (c + 12, c + 16, CS, CS + 4, PR + 8 * p + 4, o + 2), (c + 8, c + 20, CS + 8, CS + 12, PR + 32 + 4 * p, z + 2 * (p & 1))])
        a(f"v_permlane32_swap_b32 v{o}, v{o+2}\nv_permlane32_swap_b32 v{o+1}, v{o+3}")
        if p & 1: a(f"v_permlane16_swap_b32 v{z}, v{z+2}\nv_permlane16_swap_b32 v{z+1}, v{z+3}")
        a(f"buffer_store_dwordx4 {vr(o,4)}, v{vO1}, s[16:19], s{32+p} offen sc1")
        if p & 1: a(f"buffer_store_dwordx4 {vr(z,4)}, v{vO2}, s[16:19], s{36+(p>>1)} offen sc1")

def gen_g2(a, st, P):
    vHo = [6, 7, 8]; vWr = [9, 10, 11]; vRd, vTr, vTr4, vO, vO4, vR, vF2 = 12, 13, 14, 15, 16, 17, 18
    AC = [24, 44]; HB = 64
    vB16 = 19
    st(1)
    a(f"s_load_dwordx2 s[6:7], s[0:1], {KA['out']}")
    a(f"s_lshl_b32 s39, s60, 4\ns_add_u32 s39, s39, s61\ns_lshl_b32 s39, s39, 6\ns_add_u32 s39, s39, {F_2}")
    if P.get("late2"): a("s_waitcnt vmcnt(0)")
    a("s_barrier\ns_cmp_lg_u32 s28, 0\ns_cbranch_scc1 G_NF")
    setflag(a, "s39")
    a("G_NF:")
    st(2)
    a("s_add_u32 s44, s28, s63\ns_and_b32 s44, s44, 3")
    if P.get("norot3"): a("s_mov_b32 s44, s28")
    a(f"v_lshlrev_b32 v{vB16}, 4, v{vL}")
    a(f"s_lshr_b32 s31, s62, 1\ns_lshl_b32 s31, s31, 2\ns_add_u32 s31, s31, s28\ns_lshl_b32 s31, s31, 8\ns_add_u32 s31, s31, {F_2}\nv_and_b32 v{vT2}, 3, v{vL}\nv_lshl_add_u32 v{vF2}, v{vT2}, 6, s31")
    for g in range(3):
        a(f"s_add_u32 s37, s55, {g}\ns_sub_u32 s38, s37, 3\ns_cselect_b32 s37, s37, s38\ns_lshl_b32 s37, s37, 12\nv_add_u32 v{vHo[g]}, s37, v{vB16}")
    a("s_lshl_b32 s35, s62, 2\ns_mul_i32 s36, s28, 12288")
    for j in range(4):
        a(f"s_add_u32 s37, s44, {j+1}\ns_and_b32 s37, s37, 3\ns_add_u32 s38, s37, s35\ns_mul_i32 s38, s38, 49152\ns_add_u32 s{40+j}, s38, s36")
        if j < 3: a(f"s_mul_i32 s37, s37, 15360\ns_add_u32 s37, s37, {RED+j*5120}\nv_add_u32 v{vWr[j]}, s37, v{vB16}")
    a(f"s_mul_i32 s37, s44, 15360\ns_add_u32 s37, s37, {RED}\nv_add_u32 v{vRd}, s37, v{vB16}")
    a(f"v_lshrrev_b32 v{vT0}, 4, v{vL}\nv_bfe_u32 v{vT1}, v{vL}, 2, 2\nv_lshlrev_b32 v{vO}, 3, v{vT2}\nv_lshl_add_u32 v{vO}, v{vT1}, 7, v{vO}\ns_lshl_b32 s37, s44, 5\ns_add_u32 s37, s37, {RES}\nv_add_u32 v{vO}, s37, v{vO}")
    a(f"v_lshl_add_u32 v{vTr}, v{vT0}, 10, v{vO}\nv_lshl_add_u32 v{vTr4}, v{vT0}, 9, v{vO}")
    a(f"v_and_b32 v{vO}, 1, v{vT1}\nv_lshlrev_b32 v{vO}, 8, v{vO}\nv_lshl_add_u32 v{vO}, v{vT2}, 1, v{vO}\nv_lshrrev_b32 v{vT1}, 1, v{vT1}\nv_add_u32 v{vO}, v{vO}, v{vT1}\nv_mul_u32_u24 v{vT1}, 1280, v{vO}")
    a(f"v_lshl_add_u32 v{vO}, v{vT0}, 4, v{vT1}\nv_lshl_add_u32 v{vO4}, v{vT0}, 3, v{vT1}")
    a("s_lshr_b32 s37, s62, 3\ns_lshl_b32 s37, s37, 9\ns_and_b32 s38, s62, 1\ns_lshl_b32 s38, s38, 2\ns_add_u32 s38, s38, s44\ns_lshl_b32 s38, s38, 5\ns_add_u32 s37, s37, s38")
    a("s_bfe_u32 s38, s62, 0x20001\ns_lshl_b32 s38, s38, 3\ns_add_u32 s37, s37, s38\ns_mul_i32 s37, s37, 1280\ns_mul_i32 s38, s63, 160\ns_add_u32 s45, s37, s38")
    a("s_waitcnt lgkmcnt(0)")
    a.srd(20, 6, 0, 2048 * 1280)
    st(3)
    poll(a, vF2, vT3)
    st(4)
    a(f"s_barrier")
    hl = [f"buffer_load_dwordx4 {vr(HB+48*j+4*s,4)}, v{vHo[s>>2]}, s[16:19], s{40+j} offen offset:{1024*(s&3)} sc1" for j in range(4) for s in range(12)]
    pre2 = P.get("pre2", 16); niss = pre2
    for x in hl[:pre2]: a(x)
    a(f"v_add_u32 v{vF2}, {F_2L-F_2}, v{vF2}\ns_cmp_lg_u32 s28, 0\ns_cbranch_scc1 G_NL\ns_add_u32 s39, s39, {F_2L-F_2}")
    setflag(a, "s39")
    a("G_NL:")
    chk = lambda j: f"v_cmp_u_f32 vcc, v{AC[j&1]}, v{AC[j&1]}\ns_cbranch_vccnz G2_R{j}\nG2_C{j}:"
    st(5)
    X = HB; Hh = HB + 60; HU = HB + 72
    for j in range(4):
        c = AC[j & 1]
        fill = [[] for _ in range(60)]
        if j:
            fill[2].append(chk(j - 1))
            for dt in range(5): fill[4 + 2 * dt].append(f"ds_write_b128 v{vWr[j-1]}, {vr(AC[(j-1)&1]+4*dt,4)} offset:{1024*dt}")
        if j == 3:
            fill[16] += ["s_waitcnt lgkmcnt(0)", "s_barrier"]
            rd = []
            for dt in range(5):
                rd.append(f"ds_read_b64_tr_b16 {vr(Hh+2*dt,2)}, v{vTr} offset:{(32*(dt>>1)+4*(dt&1))*128}" if dt < 4 else f"ds_read_b64_tr_b16 {vr(Hh+2*dt,2)}, v{vTr4} offset:{64*128}")
                for k in range(3): rd.append(f"ds_read_b128 {vr(X+12*dt+4*k,4)}, v{vRd} offset:{5120*k+1024*dt}")
            for i in range(10): fill[16 + i] += rd[2*i:2*i+2]
            vs = []
            for dt in range(5):
                x = X + 12 * dt; u = HU + 4 * dt
                o = []
                for h in range(2): o += [f"v_lshlrev_b32 v{u+2*h}, 16, v{Hh+2*dt+h}", f"v_and_b32 v{u+2*h+1}, 0xffff0000, v{Hh+2*dt+h}"]
                for k in range(4): o.append(f"v_add_f32 v{x+k}, v{x+k}, v{x+4+k}")
                for k in range(4): o.append(f"v_add_f32 v{u+k}, v{u+k}, v{x+8+k}")
                for k in range(4): o.append(f"v_add_f32 v{u+k}, v{u+k}, v{x+k}")
                o[0] = f"s_waitcnt lgkmcnt({min(12, 16-4*dt)})\n" + o[0]
                vs += o
            for i in range(26, 60):
                for _ in range(2):
                    if vs: fill[i].append(vs.pop(0))
        mf = []
        for s in range(12):
            for dt in range(5):
                d = vr(c + 4 * dt, 4)
                if dt == 1 + P.get("hp", 0) and niss < 48: fill[5 * s + dt - 1].append(hl[niss]); niss += 1
                mf.append((f"s_waitcnt vmcnt({niss-1-12*j-s})\n" if dt == 0 else "") + f"v_mfma_f32_16x16x32_bf16 {d}, {ar(20*s+4*dt,4)}, {vr(HB+48*j+4*s,4)}, {d if s else 0}")
        for k, x in enumerate(interleave(mf, fill)):
            a(x)
            if j == 0 and k == 0: st(6)
    for x in vs: a(x)
    a(chk(3))
    st(7)
    O = X
    for dt in range(5):
        c = AC[1] + 4 * dt; u = HU + 4 * dt
        for h in range(2): a(f"v_pk_add_f32 {vr(u+2*h,2)}, {vr(u+2*h,2)}, {vr(c+2*h,2)}")
        for h in range(2): a(f"v_cvt_pk_bf16_f32 v{O+2*dt+h}, v{u+2*h}, v{u+2*h+1}")
        if dt in (1, 3): a(f"buffer_store_dwordx4 {vr(O+2*dt-2,4)}, v{vO}, s[20:23], s45 offen offset:{64*(dt>>1)}")
        if dt == 4: a(f"buffer_store_dwordx2 {vr(O+8,2)}, v{vO4}, s[20:23], s45 offen offset:128")
    def slow():
        def cnt(k):
            if P.get("cnt"): a(f"s_load_dwordx2 s[56:57], s[0:1], {KA['dbg']}\nv_mov_b32 v2, 0\nv_mov_b32 v3, 1\ns_waitcnt lgkmcnt(0)\ns_mov_b64 exec, 1\nglobal_atomic_add v2, v3, s[56:57] offset:{4*k}\ns_mov_b64 exec, -1")
        a(f"G1_REDO:\ns_cmp_lg_u32 s6, 0\ns_cbranch_scc1 G1_CONT\ns_mov_b32 s6, {F_1L-F_1}")
        cnt(0)
        a("s_waitcnt vmcnt(0)\ns_barrier")
        w1f_setup(a, 22)
        a("s_branch P_WALL")
        a("G1_P:")
        poll(a, 8, 7)
        a("s_branch G1_PC")
        for j in range(4):
            a(f"G2_R{j}:")
            cnt(1 + j)
            poll(a, vF2, vT3)
            for x in hl[12*j:12*j+12]: a(x)
            a("s_waitcnt vmcnt(0)")
            for s in range(12):
                for dt in range(5):
                    d = vr(AC[j & 1] + 4 * dt, 4)
                    a(f"v_mfma_f32_16x16x32_bf16 {d}, {ar(20*s+4*dt,4)}, {vr(HB+48*j+4*s,4)}, {d if s else 0}")
            a(f"s_nop 7\ns_branch G2_C{j}")
    return slow

def gen_pk(name, stamp=0, P={}):
    P = {**DEF, **P}
    if "wsch" in P: P["nin"] = sum(P["wsch"]) // 3
    a = Asm(); MT[0] = P.get("mt", 0)
    sA = St(a, stamp == 1); sB = St(a, stamp == 2); sC = St(a, stamp > 0)
    a.l.append(kernel_head(name))
    a("s_cmp_ge_u32 s2, 256\ns_cbranch_scc1 P_END")
    sC(0)
    a(f"s_getpc_b64 s[68:69]\nP_PC:\ns_sub_u32 s68, s68, P_PC-{name}\ns_subb_u32 s69, s69, 0\ns_mov_b32 s70, P_END-{name}\ns_mov_b32 s71, 0x20000")
    a("s_lshr_b32 s31, s2, 3\ns_lshl_b32 s31, s31, 11\nv_lshlrev_b32 v2, 3, v0\nbuffer_load_dword v251, v2, s[68:71], s31 offen")
    a(f"s_load_dwordx16 s[8:23], s[0:1], 0\ns_load_dwordx2 s[4:5], s[0:1], {KA['ws']}\ns_load_dwordx4 s[40:43], s[0:1], {KA['wg']}")
    a("v_lshrrev_b32 v2, 6, v0\nv_and_b32 v1, 63, v0\ns_and_b32 s30, s2, 7\nv_readfirstlane_b32 s28, v2\ns_lshr_b32 s31, s2, 3")
    k1 = P.get("k1", 2); k2 = P.get("k2", 3)
    def mp(dlo, dhi, k, nlo):
        b = 3 - (nlo - k)
        a(f"s_lshr_b32 s32, s30, {b}\ns_lshl_b32 s32, s32, {k}\ns_and_b32 s33, s31, {(1<<k)-1}\ns_add_u32 s{dlo}, s32, s33")
        a(f"s_and_b32 s32, s30, {(1<<b)-1}\ns_lshl_b32 s32, s32, {5-k}\ns_lshr_b32 s33, s31, {k}\ns_add_u32 s{dhi}, s32, s33")
    mp(61, 60, k1, 4); mp(63, 62, k2, 3)
    a(f"s_lshl_b32 s32, s61, {1 if k1 <= 2 else 0}\ns_lshl_b32 s33, s60, {0 if k1 <= 2 else 1}\ns_add_u32 s32, s32, s33\ns_and_b32 s32, s32, 7\ns_mul_i32 s32, s32, 5\ns_lshr_b32 s3, s32, 1")
    if P.get("rotnb"): a("s_and_b32 s32, s61, 7\ns_mul_i32 s32, s32, 5\ns_lshr_b32 s3, s32, 1")
    a("s_mov_b32 s6, 0\ns_cmp_ge_u32 s2, 160\ns_cbranch_scc1 P_HELP")
    a("s_mul_i32 s29, s30, 20\ns_add_u32 s29, s29, s31")
    gen_conv(a, sA, P, St(a, stamp == 3))
    a("P_HELP:\ns_sub_u32 s29, s2, 160")
    gen_help(a, sA, St(a, stamp == 3), P)
    gen_mid1(a, sC, P)
    g1_main(a, sC, P)
    g1_epi(a, sC, P)
    slow = gen_g2(a, sB, P)
    if "spin" in P:
        i, j, wg = P["spin"]
        a(f"s_waitcnt vmcnt(0) lgkmcnt(0)\ns_memrealtime s[100:101]\ns_cmp_lg_u32 s2, {wg}\ns_cbranch_scc1 P_END\ns_waitcnt lgkmcnt(0)")
        a(f"s_sub_u32 s30, s{76+2*j}, s{76+2*i}\ns_lshl_b32 s30, s30, 2\ns_min_u32 s30, s30, 30000\nP_SPIN:\ns_memrealtime s[32:33]\ns_waitcnt lgkmcnt(0)\ns_sub_u32 s32, s32, s100\ns_cmp_lt_u32 s32, s30\ns_cbranch_scc1 P_SPIN")
    else: sC.flush()
    a("P_END:\ns_endpgm")
    slow()
    a("s_endpgm")
    return a.text(), kernel_desc(name, 256, sgpr=102 if stamp else 80, agpr=256), f"; @launch grid=(256,1,1) block=(256,1,1) lds=163840"
DEF = dict(k1=3, rw=3, wsch=[0,0,0,6,10,11,11,4], rotnb=1, gpos=[3,3,4,5,6,6,7,8], stj=23, pre2=16, nobar1=1, up=6, dbl=0, w2s=1, nopf2=1)
KN = "sequential_preLN__ssm_conv_s4d__geglu_ffn__prompt"
NOPAD = 0
if __name__ == "__main__":
    from build import assemble as asm0, add_pads
    assemble = lambda parts: add_pads(asm0(parts), KN + "_kernel", NOPAD)
    import sys
    for s in (0, 1, 2, 3): open(f"pk_s{s}.s", "w").write(assemble([gen_pk(KN + "_kernel", s)]))
    V = eval(open('V.txt').read())
    for n, pp in V.items():
        NOPAD = pp.get("nopad", 0)
        for s in (0, 1, 2, 3, 4): open(f"pk_{n}_{s}.s", "w").write(assemble([gen_pk(KN + "_kernel", s, pp)]))
    if len(sys.argv) > 1:
        for k, (i, j, wg) in enumerate(eval(sys.argv[1])):
            open(f"pk_spin{k}.s", "w").write(assemble([gen_pk(KN + "_kernel", int(sys.argv[2]), dict(spin=(i, j, wg)))]))
```

```python
from lib import *
import struct, math
fh = lambda x: hex(struct.unpack("<I", struct.pack("<f", x))[0])
FL_OFF = 0x1B00000
F_ST, F_W, F_1, F_2, F_2L, F_1L, F_C = 0x1000, 0x8000, 0x10000, 0x20000, 0x20000, 0x19000, 0x1F000
F_1R = 0xA0000
FS = [6]; PSC = ['sc1']
CSO = 128 * 49152
PSO = CSO + 64 * 3072
vN = 252
RW = 21792; K1O = 4640; UO = 9248; UBO = 4224; XO = 17696
WST = 87296
NOWN = 6
vL = 1; vT0, vT1, vT2, vT3 = 2, 3, 4, 5
vWd = [6, 7, 8]; vWa, vWb = 9, 10
LOG2E = 1.4426950408889634
TAG = "s59"

MT = [0]
class St:
    def __init__(s, a, on): s.a, s.on = a, on
    def __call__(s, i):
        if s.on: s.a(f"{'s_memtime' if MT[0] else 's_memrealtime'} s[{76+2*i}:{77+2*i}]")
    def flush(s):
        if not s.on: return
        a = s.a
        a("s_waitcnt vmcnt(0) lgkmcnt(0)"); s(12)
        a.srd(8, 4, ST_OFF, 256 * 256)
        a("s_lshl_b32 s12, s2, 2\ns_add_u32 s12, s12, s28\ns_lshl_b32 s12, s12, 6\ns_waitcnt lgkmcnt(0)\nv_mov_b32 v2, s12")
        for i in range(13): a(f"v_mov_b32 v3, s{76+2*i}\nbuffer_store_dword v3, v2, s[8:11], 0 offen offset:{4*i}")

def poll(a, va, vd, pre=None, one=False):
    L = a.label("PL"); D = a.label("PD")
    if one: a(one)
    if pre is not None:
        a(f"s_waitcnt vmcnt({pre})\nv_cmp_ne_u32 vcc, {TAG}, v{vd}\ns_cbranch_vccz {D}\ns_mov_b64 exec, vcc")
    a(f"s_movk_i32 s58, 0x7fff\n{L}:")
    a(f"buffer_load_dword v{vd}, v{va}, s[64:67], 0 offen {PSC[0]}\ns_waitcnt vmcnt(0)\nv_cmp_ne_u32 vcc, {TAG}, v{vd}\ns_cbranch_vccz {D}")
    a(f"s_mov_b64 exec, vcc\ns_sub_u32 s58, s58, 1\ns_cbranch_scc0 {L}\n{D}:\ns_mov_b64 exec, -1")
def poll2(a, va, vd, lim):
    L = a.label("PL"); D = a.label("PD")
    a(f"s_movk_i32 s58, 0x7fff\ns_mov_b64 s[44:45], -1\ns_mul_i32 s31, s2, 5\ns_lshr_b32 s31, s31, 5\ns_lshl_b64 s[42:43], -1, s31\n{L}:")
    a(f"buffer_load_dword v{vd}, v{va}, s[64:67], 0 offen sc1\ns_andn2_b64 s[44:45], s[44:45], exec\ns_waitcnt vmcnt(0)\nv_cmp_ne_u32 vcc, {TAG}, v{vd}")
    a(f"s_or_b64 s[44:45], s[44:45], vcc\ns_cbranch_scc0 {D}\ns_and_b64 s[40:41], vcc, s[42:43]\ns_cselect_b64 s[40:41], s[40:41], vcc\ns_ff1_i32_b64 s31, s[40:41]\ns_lshl_b64 s[40:41], 1, s31")
    a(f"s_bcnt1_i32_b64 s31, vcc\ns_cselect_b64 exec, vcc, s[44:45]\ns_cmp_gt_u32 s31, {lim}\ns_cselect_b64 exec, s[40:41], exec")
    a(f"s_sub_u32 s58, s58, 1\ns_cbranch_scc0 {L}\n{D}:\ns_mov_b64 exec, -1")
DG = [0]
def diag(a, k):
    if DG[0] == k:
        for _ in range(12): a("s_sleep 127")
def touch(a, n):
    a("s_mov_b64 exec, 0")
    for w in range(4): a(f"s_cmp_eq_u32 s28, {w}\ns_cbranch_scc1 PAD_{n}{w}")
    a(f"RET_{n}:\ns_mov_b64 exec, -1")
def setflag(a, soff):
    a(f"v_mov_b32 v{vT0}, 0\nv_mov_b32 v{vT1}, {TAG}\ns_mov_b64 exec, 1\nbuffer_store_dword v{vT1}, v{vT0}, s[64:67], {soff} offen sc1\ns_mov_b64 exec, -1")

def setflag64(a, soff):
    a(f"v_lshlrev_b32 v{vT0}, 4, v{vL}")
    for i in range(4): a(f"v_mov_b32 v{244+i}, {TAG}")
    a(f"s_mov_b64 exec, 15\nbuffer_store_dwordx4 v[244:247], v{vT0}, s[64:67], {soff} offen sc1\ns_mov_b64 exec, -1")
def cmul(d, x, w):
    return [f"v_pk_mul_f32 {vr(d,2)}, {vr(x,2)}, {vr(w,2)} op_sel_hi:[1,0]",
            f"v_pk_fma_f32 {vr(d,2)}, {vr(x,2)}, {vr(w,2)}, {vr(d,2)} op_sel:[1,1,0] op_sel_hi:[0,1,1] neg_lo:[1,0,0]"]

def w1_voff(a):
    for i in range(3):
        if i: a(f"v_add_u32 v{vT0}, {64*i}, v{vL}")
        s = vT0 if i else vL
        a(f"v_mul_u32_u24 v{vT1}, 5462, v{s}\nv_lshrrev_b32 v{vT1}, 16, v{vT1}\nv_mul_u32_u24 v{vT1}, {3072-192}, v{vT1}")
        a(f"v_lshl_add_u32 v{vWd[i]}, v{vL}, 4, v{vT1}")
def w1f_setup(a, vF):
    a.srd(12, 4, W1_OFF, 16 * 245760)
    a("s_mul_i32 s57, s61, 245760\ns_mul_i32 s31, s28, 3072\ns_add_u32 s57, s57, s31\ns_add_u32 s56, s57, 245760\ns_mul_i32 s39, s3, 12288\ns_add_u32 s39, s39, s57")
    a(f"v_min_u32 v{vF}, 19, v{vL}\nv_add_u32 v{vF}, s3, v{vF}\nv_subrev_u32 v{vWa}, 20, v{vF}\nv_min_u32 v{vF}, v{vF}, v{vWa}\nv_lshlrev_b32 v{vF}, 10, v{vF}\ns_lshl_b32 s31, s61, 6\ns_add_u32 s31, s31, {F_W}\nv_add_u32 v{vF}, s31, v{vF}\nv_lshlrev_b32 v{vWa}, 4, v{vL}")
def w1f_loads(c0, c1):
    o = []
    for c in range(c0, c1):
        for t in range(3):
            o.append(f"buffer_load_dwordx4 {ar(12*c+4*t,4)}, v{vWa}, s[12:15], s39 offen offset:{1024*t} sc1" +
                     ("\ns_add_u32 s39, s39, 12288\ns_cmp_eq_u32 s39, s56\ns_cselect_b32 s39, s57, s39" if t == 2 else ""))
    return o
def w1_addr(a, sbase):
    a(f"v_lshrrev_b32 v{vT0}, 2, v{vL}\nv_mul_u32_u24 v{vT0}, 192, v{vT0}\nv_add_u32 v{vT0}, {sbase}, v{vT0}")
    a(f"v_and_b32 v{vT1}, 3, v{vL}\nv_lshl_add_u32 v{vWa}, v{vT1}, 3, v{vT0}")
    a(f"v_bfe_u32 v{vT1}, v{vL}, 1, 1\nv_mul_u32_u24 v{vT1}, {6144-16}, v{vT1}\nv_add3_u32 v{vWb}, v{vWa}, v{vT1}, 32")
def w1_frag(dst, off):
    return [f"ds_read_b64_tr_b16 {dst(4*t+2*h)}, v{vWb if t == 2 else vWa} offset:{off+3072*h+(6144 if t == 1 else 0)}" for t in range(3) for h in range(2)]
def gen_conv(a, st, P0, sk):
    vA, vB, vK8, vK16, vK32, vKp, vUa, vKa, vXr, vTh, vSt, vFw, vD = 11, 12, 13, 14, 15, 16, 17, 18, 19, 20, 21, 22, 23
    XR, ST, ACC, FA, FB = 24, 40, 56, 72, 104
    W1, W8, W256, E, P, PK, PAR, vDt = 136, 138, 140, [142, 144], 146, 194, 210, 222
    a("s_lshl_b32 s30, s29, 2\ns_add_u32 s30, s30, s28")
    for i in range(12): a(f"v_mov_b32 v{PAR+i}, 0")
    a(f"v_lshlrev_b32 v{vT0}, 1, v{vL}\ns_mul_i32 s31, s30, 384\ns_and_b32 s32, s30, 0xfffffffe\ns_lshl_b32 s32, s32, 1")
    vG = 6
    a(f"v_mul_u32_u24 v{vG}, 10240, v0")
    a("s_waitcnt lgkmcnt(0)")
    a(f"s_add_u32 s64, s4, {FL_OFF}\ns_addc_u32 s65, s5, 0\ns_load_dword s59, s[64:65], 0\ns_load_dword s34, s[18:19], s32\ns_load_dword s35, s[20:21], s32")
    for k in range(P0.get("spf", 0)): a(f"s_load_dword s72, s[68:69], {4096*(k+1)-0x300}")
    a.srd(24, 8, 0, 2048 * 1280)
    for i in range(4): a.srd(36 if i == 0 else 40 + 4 * i, 10 + 2 * i, 0, 640 * 384)
    PS = [36, 44, 48, 52]
    for p in range(3):
        for i in range(4):
            a(f"buffer_load_short_d16_hi v{PAR+4*p+i}, v{vT0}, s[{PS[i]}:{PS[i]+3}], s31 offen offset:{128*p}{' nt' if P0.get('nt', 0) >= 3 else ''}")
    a(f"s_lshr_b32 s31, s2, 3\ns_lshl_b32 s31, s31, 2\ns_add_u32 s31, s31, s28\ns_mul_i32 s31, s31, 26\nv_lshrrev_b32 v{vT0}, 1, v{vL}\nv_min_u32 v{vT0}, 25, v{vT0}\nv_add_u32 v{vT0}, s31, v{vT0}\nv_min_u32 v{vT0}, 2047, v{vT0}")
    a(f"v_mul_u32_u24 v{vT0}, 1280, v{vT0}\nv_and_b32 v{vT1}, 1, v{vL}\nv_mul_u32_u24 v{vT1}, 156, v{vT1}\nv_add_u32 v{vT0}, v{vT0}, v{vT1}\ns_and_b32 s31, s2, 7\ns_mul_i32 s31, s31, 160")
    a(f"buffer_load_dword v250, v{vT0}, s[24:27], s31 offen")
    npf = P0.get("npf", 0)
    if npf:
        a.srd(68, 42, 0, 640 * 3072)
        a(f"v_min_u32 v{vT0}, 23, v{vL}\nv_mul_u32_u24 v{vT1}, 21846, v{vT0}\nv_lshrrev_b32 v{vT1}, 16, v{vT1}\nv_mul_u32_u24 v{vT1}, {3072-384}, v{vT1}\nv_lshl_add_u32 v{vT0}, v{vT0}, 7, v{vT1}")
        a(f"s_lshr_b32 s31, s2, 3\ns_lshl_b32 s31, s31, 2\ns_add_u32 s31, s31, s28\ns_mul_i32 s31, s31, {8*3072}\ns_and_b32 s33, s2, 7\ns_mul_i32 s33, s33, 384\ns_add_u32 s31, s31, s33")
        a(f"buffer_load_dword v249, v{vT0}, s[68:71], s31 offen")
        if npf > 1:
            a.srd(72, 40, 0, 640 * 3072)
            a(f"buffer_load_dword v248, v{vT0}, s[72:75], s31 offen")
    gath = [("s_add_u32 s17, s17, 3840\n" if i in (3, 6) else "") + f"buffer_load_dwordx2 {vr(XR+2*i,2)}, v{vG}, s[24:27], s17 offen offset:{1280*(i%3)}" for i in range(8)]
    a("s_lshl_b32 s17, s29, 3")
    a(f"v_lshlrev_b32 v{vWa}, 4, v{vL}\ns_lshl_b32 s7, s30, 12")
    for i in range(4): a(f"v_mov_b32 v{vN+i}, -1")
    clr = [f"buffer_store_dwordx4 {vr(vN,4)}, v{vWa}, s[8:11], s7 offen offset:{1024*Q} sc1" for Q in range(4)]
    a(f"s_mov_b32 s66, 0x200000\ns_mov_b32 s67, 0x20000\ns_mul_i32 s32, s28, {RW}\ns_movk_i32 s33, 272")
    a.srd(8, 4, HT_OFF, 640 * 4096)
    a(f"v_and_b32 v{vT1}, 31, v{vL}\nv_lshrrev_b32 v{vT2}, 5, v{vL}")
    a(f"v_lshl_add_u32 v{vA}, v{vT2}, 4, s32\nv_mad_u32_u24 v{vB}, v{vT1}, s33, v{vA}")
    tab = {9: 1, 12: 1, 13: 2, 19: 1, 23: 1}
    lo = sum(tab.get(r, 0) << (2 * r) for r in range(16)); hi = sum(tab.get(r + 16, 0) << (2 * r) for r in range(16))
    a(f"s_mov_b32 s46, {hex(lo)}\ns_mov_b32 s47, {hex(hi)}\nv_lshlrev_b32 v{vT0}, 1, v{vT1}\nv_lshrrev_b64 {vr(P,2)}, v{vT0}, s[46:47]")
    a(f"v_and_b32 v{P}, 3, v{P}\nv_sub_u32 v{P}, v{vT1}, v{P}\nv_mad_u32_u24 v{vA}, v{P}, s33, v{vA}")
    a(f"s_add_u32 s33, s32, 512\nv_lshl_add_u32 v{vT0}, v{vT1}, 4, s33\nv_lshl_add_u32 v{vK16}, v{vT2}, 9, v{vT0}\nv_lshl_add_u32 v{vK32}, v{vT2}, 10, v{vT0}")
    a(f"v_mul_u32_u24 v{vT3}, 24, v{vT2}\nv_add3_u32 v{vKp}, v{vT0}, v{vT3}, 6\nv_lshlrev_b32 v{vT3}, 3, v{vT2}\nv_sub_u32 v{vK8}, v{vT0}, v{vT3}\nv_add_u32 v{vK8}, 8, v{vK8}")
    a(f"v_and_b32 v{vT0}, 15, v{vL}\nv_lshrrev_b32 v{vT1}, 4, v{vL}\nv_and_b32 v{vT2}, 1, v{vL}\nv_lshlrev_b32 v{vT1}, 4, v{vT1}")
    a(f"s_add_u32 s33, s32, {UO+UBO+8}\nv_lshl_add_u32 v{vUa}, v{vT0}, 2, s33\nv_mul_u32_u24 v{vT3}, {UBO+4}, v{vT2}\nv_sub_u32 v{vUa}, v{vUa}, v{vT3}\nv_add_u32 v{vUa}, v{vUa}, v{vT1}")
    a(f"v_lshrrev_b32 v{vT0}, 1, v{vT0}\nv_lshlrev_b32 v{vT0}, 6, v{vT0}")
    a(f"s_add_u32 s33, s32, {512+48-448}\nv_mul_u32_u24 v{vT3}, {K1O}, v{vT2}\nv_add3_u32 v{vKa}, v{vT0}, v{vT3}, s33\nv_sub_u32 v{vKa}, v{vKa}, v{vT1}")
    a(f"s_add_u32 s33, s32, {XO}\nv_lshl_add_u32 v{vT3}, v{vT2}, 3, s33\nv_add3_u32 v{vXr}, v{vT0}, v{vT1}, v{vT3}")
    if P0.get("sco"): a(f"v_lshlrev_b32 v{vTh}, 4, v0\ns_lshl_b32 s33, s28, 12\ns_add_u32 s33, s33, {F_ST}\nv_lshl_add_u32 v{vSt}, v{vL}, 4, s33")
    else: a(f"v_lshlrev_b32 v{vTh}, 4, v0\nv_lshlrev_b32 v{vSt}, 6, v0\nv_add_u32 v{vSt}, {F_ST}, v{vSt}")
    a(f"v_cmp_eq_u32 s[68:69], 1, v{vT2}\nv_cmp_eq_u32 vcc, 0, v{vL}\ns_mov_b32 m0, s32")
    if P0.get("padA"): touch(a, "A")
    a("s_waitcnt lgkmcnt(0)")
    if P0.get("bar0"): a("s_barrier")
    a("s_add_u32 s59, s59, 1\ns_and_b32 s31, s30, 1\ns_lshl_b32 s31, s31, 4\ns_lshr_b32 s34, s34, s31\ns_lshl_b32 s34, s34, 16\ns_lshr_b32 s35, s35, s31\ns_lshl_b32 s35, s35, 16")
    a(f"v_mov_b32 v{vD}, s35\nv_cndmask_b32 v{vD}, 0, v{vD}, vcc\nv_mov_b32 v{vT0}, 0x3f80\nds_write_addtid_b32 v{vT0} offset:8704")
    a(f"v_mov_b32 v{vDt}, {fh(LOG2E)}\nv_mul_f32 v{vDt}, s34, v{vDt}\nv_exp_f32 v{vDt}, v{vDt}\ns_nop 0\nv_cvt_pk_bf16_f32 v{vDt}, 0, v{vDt}\nv_add_f32 v{vDt+1}, v{vDt}, v{vDt}")
    c = 1 / (2 * math.pi); chi = struct.unpack("<f", struct.pack("<f", c))[0]; clo = c - chi
    a(f"s_mov_b32 s12, {fh(chi)}\ns_mov_b32 s13, {fh(clo)}\ns_mov_b32 s14, {fh(LOG2E)}\ns_mov_b32 s15, 0x41000000\ns_mov_b32 s16, 0x43800000")
    if P0.get("stag"): a(f"s_waitcnt vmcnt(9)\ns_mul_i32 s31, s28, {P0['stag']}\nK_ST:\ns_nop 3\ns_sub_u32 s31, s31, 1\ns_cbranch_scc0 K_ST")
    st(1)
    def stat_loads():
        for k in range(4): a(f"buffer_load_dwordx4 {vr(ST+4*k,4)}, v{vSt}, s[64:67], 0 offen offset:{(1024 if P0.get('sco') else 16)*k} sc1")
    pend = []
    gpos = P0.get("gpos", [0, 0, 2, 2, 4, 4, 6, 6])
    cpos = P0.get("cpos", [])
    spos = 8 + (P0.get("stj", 15) >> 3)
    xcnt = 4 if max(gpos + cpos) <= spos else 0
    def late(k):
        for _ in range(gpos.count(k)): a(gath.pop(0).replace(f"v{vG},", f"v{vTh if P0.get('xg') else vG},"))
        if spos == k: stat_loads()
    for p in range(3):
        q = PAR + 4 * p; t = P
        sk(1 + 2 * p)
        a(f"s_waitcnt vmcnt({9+npf-4*p+sum(1 for g in gpos + cpos if g < 4*p)})")
        sk(2 + 2 * p)
        o = [f"v_mul_f32 v{q}, s14, v{q}", f"v_exp_f32 v{q}, v{q}", f"v_mul_f32 v{q+1}, v{q+1}, v{vDt}",
             f"v_mul_f32 v{t}, s12, v{q+1}", f"v_fma_f32 v{t+1}, v{q+1}, s12, -v{t}", f"v_cvt_pk_bf16_f32 v{q}, 0, v{q}",
             f"v_fma_f32 v{t+1}, v{q+1}, s13, v{t+1}", f"v_mul_f32 v{q}, v{q}, v{vDt}", f"v_fract_f32 v{t+2}, v{t}",
             f"v_mul_f32 v{q}, s14, v{q}",
             f"v_mul_f32 v{t+3}, s15, v{t+2}", f"v_mul_f32 v{t+4}, s16, v{t+2}", f"v_add_f32 v{t+2}, v{t+2}, v{t+1}",
             f"v_fract_f32 v{t+3}, v{t+3}", f"v_fract_f32 v{t+4}, v{t+4}",
             f"v_fma_f32 v{t+3}, v{t+1}, s15, v{t+3}", f"v_fma_f32 v{t+4}, v{t+1}, s16, v{t+4}",
             f"v_mul_f32 v{t+6}, s15, v{q}", f"v_mul_f32 v{t+8}, s16, v{q}",
             f"v_cos_f32 v{W8}, v{t+3}", f"v_sin_f32 v{W8+1}, v{t+3}", f"v_exp_f32 v{t+6}, -v{t+6}",
             f"v_cos_f32 v{W1}, v{t+2}", f"v_sin_f32 v{W1+1}, v{t+2}", f"v_exp_f32 v{t+10}, -v{q}",
             f"v_cos_f32 v{W256}, v{t+4}", f"v_sin_f32 v{W256+1}, v{t+4}", f"v_exp_f32 v{t+8}, -v{t+8}",
             f"v_mul_f32 v{E[0]}, v{q+2}, v{vDt+1}", f"v_mul_f32 v{E[0]+1}, v{q+3}, v{vDt+1}",
             f"v_mul_f32 v{W8}, v{W8}, v{t+6}", f"v_mul_f32 v{W8+1}, v{W8+1}, v{t+6}", f"v_mul_f32 v{W1}, v{W1}, v{t+10}", f"v_mul_f32 v{W1+1}, v{W1+1}, v{t+10}",
             f"v_mul_f32 v{W256}, v{W256}, v{t+8}", f"v_mul_f32 v{W256+1}, v{W256+1}, v{t+8}"]
        at = [1, 6, 12, 18, 21, 24, 27, 32]
        for i, x in enumerate(o):
            a(x)
            if pend and i in at and not P0.get("mw"): a(pend.pop(0))
        if pend: pend = [x.split("\n")[1] for x in pend]; pend[0] = "s_waitcnt lgkmcnt(0)\n" + pend[0]
        R = {1: W1, 8: W256, "w8": W8}
        nxt = P
        plan = {2: (1, W1), 3: (2, W1), 4: (3, W1), 5: (4, W1), 6: (5, W1), 7: (6, W1),
                10: (2, W256), 11: (4, W256), 14: (6, W256), 15: ("w8", W256),
                16: (8, W256), 17: (11, W256), 18: (15, W256), 20: (16, W256), 21: (17, W256), 22: (18, W256),
                24: (20, W256), 25: (22, W256), 26: (24, W256), 27: (25, W256), 28: (26, W256), 29: (27, W256), 30: (28, W256), 31: (29, W256)}
        wr = []
        for j in range(32):
            e = E[j & 1]; pk = PK + 2 * (j & 7)
            xm = []
            if j in plan:
                R[j] = nxt; nxt += 2; xm = cmul(R[j], R[plan[j][0]], plan[j][1])
            em = cmul(E[(j + 1) & 1], e, W8) if j < 31 else []
            if xm: a(xm[0])
            if em: a(em[0])
            if xm: a(xm[1])
            a(f"v_cvt_pk_bf16_f32 v{pk}, v{e}, v{e+1}")
            if em: a(em[1])
            wr.append(f"ds_write_addtid_b32 v{pk} offset:{272*j}")
            if j in R:
                a(f"v_cvt_pk_bf16_f32 v{pk+1}, v{R[j]}, -v{R[j]+1}")
                wr.append(f"ds_write_addtid_b32 v{pk+1} offset:{8704+272*j}")
            bs = P0.get("bs", 8)
            if j % bs == bs - 1:
                for k, x in enumerate(wr):
                    if pend and k % P0["mw"] == 0: a(pend.pop(0))
                    if not P0.get("xw"): a(x)
                wr = []
            if j & 7 == 7:
                for _ in range(gpos.count(4 * p + (j >> 3))): a(gath.pop(0).replace(f"v{vG},", f"v{vTh if P0.get('xg') else vG},"))
                for _ in range(cpos.count(4 * p + (j >> 3))): a(clr.pop(0))
                if p == 2 and j == P0.get("stj", 15): stat_loads()
        assert not pend
        for s in range(0 if P0.get("xr") else 8):
            a(f"ds_read_b128 {vr(FA+4*s,4)}, v{vA} offset:{8704+32*s}\nds_read_b128 {vr(FB+4*s,4)}, v{vB} offset:{32*s}")
        d = vr(ACC, 16)
        pend = [f"s_waitcnt lgkmcnt({14-2*s})\nv_mfma_f32_32x32x16_bf16 {d}, {vr(FA+4*s,4)}, {vr(FB+4*s,4)}, {d if (p or s) else 0}" for s in range(8)]
    st(3); sk(7)
    XF = P; XP = PK
    kf = P0.get("kf", 0)
    a(("" if kf else "s_waitcnt vmcnt(4)\n") + "s_mov_b32 s12, 0x05040100\ns_mov_b32 s13, 0x07060302")
    fl = []
    for ch in range(4):
        for k, (r0, r1) in enumerate(((0, 2), (4, 6), (1, 3), (5, 7))):
            fl.append(f"v_perm_b32 v{XP+4*ch+k}, v{XR+2*r1+(ch>>1)}, v{XR+2*r0+(ch>>1)}, s{12+(ch&1)}")
    for i in range(16): fl += [f"v_lshlrev_b32 v{XF+2*i}, 16, v{XR+i}", f"v_and_b32 v{XF+2*i+1}, 0xffff0000, v{XR+i}"]
    for s in range(8):
        a(pend[s])
        if not kf:
            for x in fl[6*s:6*s+6]: a(x)
    late(12)
    a(f"v_add_u32 v{vT3}, {XO}, v{vTh}\nv_mov_b32 v{FA}, 0\nv_mov_b32 v{FA+1}, 0\nv_lshl_add_u32 v{vT0}, v{vL}, 3, s32")
    a(f"v_bfe_u32 v{vT1}, v{vL}, 4, 1\nv_mul_u32_u24 v{vT1}, {UBO}, v{vT1}\nv_and_b32 v{vT2}, 15, v{vL}\nv_lshl_add_u32 v{vT1}, v{vT2}, 3, v{vT1}\nv_add_u32 v{vT1}, s32, v{vT1}")
    xw = [f"ds_write_b128 v{vT3}, {vr(XP+4*ch,4)} offset:{RW*ch}" for ch in range(4)]
    if not kf:
        for x in xw: a(x)
    a(f"ds_write_b64 v{vT0}, {vr(FA,2)}\nds_write_b64 v{vT0}, {vr(FA,2)} offset:{K1O}\nds_write_b64 v{vT1}, {vr(FA,2)} offset:{UO}")
    c = ACC; o = FB
    cv = lambda d, x, y: a(f"v_cvt_pk_bf16_f32 v{d}, v{x}, {'v%d' % y if y is not None else 0}")
    if kf: a("s_nop 7")
    a(f"v_add_f32 v{c}, v{c}, v{vD}")
    for i in range(2): a(f"v_cndmask_b32 v{vT0+i}, v{c+12+2*i}, v{c+13+2*i}, s[68:69]")
    cv(o, c+3, c+2); cv(o+1, c+1, c); cv(o+2, c+7, c+6); cv(o+3, c+5, c+4)
    cv(o+4, c+2, c+1); cv(o+5, c, None); cv(o+6, c+6, c+5); cv(o+7, c+4, c+4)
    cv(o+8, c+10, c+10); cv(o+9, c+9, c+9); cv(o+10, c+9, c+8); cv(o+11, c+8, c+8)
    cv(o+12, c+10, c+9); cv(o+13, c+9, c+9); cv(o+14, c+8, c+8); cv(o+15, c+8, c+8)
    for i in range(2):
        x = c + 12 + 2 * i; y = x + 1; b = o + 16 + 8 * i
        cv(b, y, y); cv(b+1, y, vT0+i); cv(b+2, x, x); cv(b+3, x, x)
        cv(b+4, y, y); cv(b+5, vT0+i, x); cv(b+6, x, x); cv(b+7, x, x)
    a(f"ds_write_b64 v{vK8}, {vr(o,2)} offset:{K1O}\nds_write_b64 v{vK8}, {vr(o+2,2)} offset:{K1O+512}")
    a(f"ds_write_b64 v{vK8}, {vr(o+4,2)}\nds_write_b64 v{vK8}, {vr(o+6,2)} offset:512\nds_write_b16 v{vKp}, v{o}")
    a(f"ds_write_b128 v{vK16}, {vr(o+8,4)} offset:{K1O+1024}\nds_write_b128 v{vK16}, {vr(o+12,4)} offset:1024")
    for i in range(2):
        a(f"ds_write_b128 v{vK32}, {vr(o+16+8*i,4)} offset:{K1O+2048+512*i}\nds_write_b128 v{vK32}, {vr(o+20+8*i,4)} offset:{2048+512*i}")
    if kf:
        late(13)
        if kf > 1: a("s_waitcnt lgkmcnt(0)\ns_barrier")
        late(14)
        a(f"s_waitcnt vmcnt({xcnt})")
        for k, x in enumerate(fl):
            a(x)
            if k in (7, 11, 15, 19): a(xw.pop(0))
    st(4)
    L = a.label("SL"); Dn = a.label("SD")
    a(f"s_movk_i32 s58, 0x7fff\n{L}:\ns_waitcnt vmcnt(0)")
    for k in range(8): a(f"v_xor_b32 v{ST+2*k+1}, {TAG}, v{ST+2*k+1}")
    a(f"v_or3_b32 v{vT0}, v{ST+1}, v{ST+3}, v{ST+5}\nv_or3_b32 v{vT1}, v{ST+7}, v{ST+9}, v{ST+11}\nv_or3_b32 v{vT0}, v{vT0}, v{ST+13}, v{ST+15}\nv_or_b32 v{vT0}, v{vT0}, v{vT1}")
    a(f"v_cmp_ne_u32 vcc, 0, v{vT0}\ns_cbranch_vccz {Dn}")
    diag(a, 5)
    stat_loads()
    a(f"s_sub_u32 s58, s58, 1\ns_cbranch_scc0 {L}\ns_waitcnt vmcnt(0)\n{Dn}:")
    st(5)
    for i in range(8): a(f"v_and_b32 v{ST+2*i+1}, 0xffff0000, v{ST+2*i}\nv_lshlrev_b32 v{ST+2*i}, 16, v{ST+2*i}")
    for i in range(8):
        for k in range(2): a(f"v_pk_add_f32 {vr(XF+4*i+2*k,2)}, {vr(XF+4*i+2*k,2)}, {vr(ST+2*i,2)} op_sel_hi:[1,0] neg_lo:[0,1] neg_hi:[0,1]")
        a(f"v_rcp_f32 v{ST+2*i+1}, v{ST+2*i+1}")
    for i in range(32): a(f"v_cvt_pk_bf16_f32 v{XF+i}, 0, v{XF+i}")
    for i in range(8):
        for k in range(2): a(f"v_pk_mul_f32 {vr(XF+4*i+2*k,2)}, {vr(XF+4*i+2*k,2)}, {vr(ST+2*i,2)} op_sel:[0,1] op_sel_hi:[1,1]")
    U = FA
    for ch in range(4):
        for k in range(4): cv(U + 6 * ch + k, XF + 8 * k + ch, XF + 8 * k + 4 + ch)
        for k in (1, 2): cv(U + 6 * ch + 3 + k, XF + 8 * k + ch, XF + 8 * k + 4 + ch)
    a(f"v_add_u32 v{vT0}, {UO+64}, v{vTh}")
    for ch in range(4): a(f"v_add_u32 v{XR+ch}, {UO+UBO+64+RW*ch}, v{vTh}")
    if kf < 2: a("s_waitcnt lgkmcnt(0)\ns_barrier")
    for ch in range(4):
        a(f"ds_write_b128 v{vT0}, {vr(U+6*ch,4)} offset:{RW*ch}\nds_write_b64 v{XR+ch}, {vr(U+6*ch+4,2)} offset:8")
        a(f"ds_write2_b32 v{XR+ch}, v{U+6*ch}, v{U+6*ch+3} offset0:1 offset1:4")
    rw = P0.get("rw", 3); nin = P0.get("nin", 20)
    w1f_setup(a, vFw)
    if rw < 2: a(f"buffer_load_dword v{vD}, v{vFw}, s[64:67], 0 offen sc1")
    a(f"s_lshl_b32 s33, s30, 12")
    if P0.get("r1"):
        z = P0["r1"][1]
        a(f"s_bfe_u32 s16, s29, 0x20001\ns_mul_i32 s16, s16, 40\ns_lshr_b32 s17, s29, 3\ns_lshl_b32 s17, s17, 1\ns_add_u32 s16, s16, s17\ns_and_b32 s17, s29, 1\ns_add_u32 s16, s16, s17\ns_lshl_b32 s16, s16, {z}\ns_add_u32 s16, s16, {F_1R}")
        a(f"v_mul_u32_u24 v{vTh}, {160 << z}, v{vL}\nv_mov_b32 v{vSt}, {TAG}")
        if P0.get("f1"):
            assert P0["r1"] == (8, 7)
            a(f"v_lshrrev_b32 v{vTh}, 3, v{vL}\nv_mul_u32_u24 v{vTh}, {160*128-128}, v{vTh}\nv_lshl_add_u32 v{vTh}, v{vL}, 4, v{vTh}")
            if P0["f1"] > 1:
                for i in range(4): a(f"v_not_b32 v{240+i}, {TAG}")
                a(f"s_cmp_lg_u32 s28, 0\ns_cbranch_scc1 C_NP\nbuffer_store_dwordx4 v[240:243], v{vTh}, s[64:67], s16 offen sc1\nC_NP:")
                if P0.get("f2"): a(f"s_cmp_lg_u32 s28, 1\ns_cbranch_scc1 C_NQ\ns_cmp_ge_u32 s2, 128\ns_cbranch_scc1 C_NQ\ns_lshl_b32 s17, s2, 10\ns_add_u32 s17, s17, {F_2}\nbuffer_store_dwordx4 v[240:243], v{vWa}, s[64:67], s17 offen sc1\nC_NQ:")
            for i in range(4): a(f"v_mov_b32 v{244+i}, {TAG}")
    a("s_waitcnt lgkmcnt(0)\ns_barrier")
    st(6)
    wl = w1f_loads(0, nin)
    if P0.get("skb"):
        for c in range(nin): wl[3*c] = f"s_bitcmp1_b32 s70, {c}\ns_cselect_b32 s14, 0, {16*245760}\n" + wl[3*c]
        wl[-1] += f"\ns_mov_b32 s14, {16*245760}"
    CA = 24; FT = [56, 120]; FG = [88, 152]; X = 184; XU = 200
    def reads(r):
        p = r & 1; o = []
        for i in range(8):
            o.append(f"ds_read_b128 {vr(FG[p]+4*i,4)}, v{vKa} offset:{512*i+64*(7-r)}")
            for hh in range(2): o.append(f"ds_read_b64 {vr(FT[p]+4*i+2*hh,2)}, v{vUa} offset:{512*i+64*r+8*hh}")
        return o
    if P0.get("force1"):
        a(f"s_lshl_b32 s31, s29, {FS[0]}\ns_add_u32 s31, s31, {F_1}")
        setflag(a, "s31")
    for x in reads(0): a(x)
    chk = P0["chk"]; CL = []; assert chk[0][4] == rw
    a("s_mov_b32 s70, 0")
    for r in range(8):
        p = r & 1
        mf = []
        for sg in range(8):
            for dl in range(8 - sg):
                d = vr(CA + 4 * (sg + dl), 4)
                mf.append(f"v_mfma_f32_16x16x32_bf16 {d}, {vr(FT[p]+4*sg,4)}, {vr(FG[p]+4*dl,4)}, {d if (r or sg) else 0}")
        fill = [[] for _ in range(36)]
        if r < 7:
            for i, x in enumerate(reads(r + 1)): fill[i].append(x)
        if r == 0:
            for i in range(26, 34, 2):
                if clr: fill[i].append(clr.pop(0))
        for k, (ri, si, rv, sv, s0) in enumerate(chk):
            c0 = -(-sum(P0["wsch"][:s0]) // 3); c1 = -(-sum(P0["wsch"][:chk[k+1][4]]) // 3) if k + 1 < len(chk) else 20
            m = hex((1 << c1) - (1 << c0))
            if r == ri: fill[si].append(f"s_mov_b64 exec, {m}\nbuffer_load_dword v{vD}, v{vFw}, s[64:67], 0 offen sc1 ;C{k}\ns_mov_b64 exec, -1")
            if r == rv: fill[sv] += [f"WAIT{k}", f"v_cmp_ne_u32 vcc, {TAG}, v{vD}"]; fill[sv + 1] += [f"s_and_b32 s71, vcc_lo, {m}", "s_or_b32 s70, s70, s71"]
        if r >= rw:
            re = P0.get("re", 8)
            n = -(-len(wl) // (re - r)) if r < re else 0
            if "wsch" in P0: n = P0["wsch"][r]
            for k in range(n): fill[(36 * k + 18) // n].append(wl.pop(0))
        if r == 6:
            for q in range(8): fill[24 + q].append(f"ds_read_b64 {vr(X+2*q,2)}, v{vXr} offset:{512*q}")
        if r == 7:
            for i in range(16): fill[i] += [f"v_lshlrev_b32 v{XU+2*i}, 16, v{X+i}", f"v_and_b32 v{XU+2*i+1}, 0xffff0000, v{X+i}"]
            done = {q: sum(8 - s for s in range(q)) + 8 for q in range(8)}
            ep = []
            for q in range(4):
                for k in range(4): ep.append((done[q], f"v_add_f32 v{CA+4*q+k}, v{CA+4*q+k}, v{XU+4*q+k}"))
                for k in range(2): ep.append((done[q], f"v_cvt_pk_bf16_f32 v{X+2*q+k}, v{CA+4*q+2*k}, v{CA+4*q+2*k+1}"))
            for i in range(16, 36):
                for _ in range(2):
                    if ep and ep[0][0] <= i: fill[i].append(ep.pop(0)[1])
            assert not ep
        CL.append("s_waitcnt lgkmcnt(0)")
        CL += interleave(mf, fill)
    for i, x in enumerate(CL):
        if x.startswith("WAIT"):
            j = [n for n, y in enumerate(CL) if f";C{x[4:]}" in y][0]
            x = f"s_waitcnt vmcnt({sum(y.count('buffer_') for y in CL[j+1:i])})"
        a(x.replace(" ;C0", "").replace(" ;C1", "").replace(" ;C2", "").replace(" ;C3", ""))
    assert not wl
    st(7)
    a(f"s_waitcnt vmcnt({min(40, 3*nin)})")
    for Q in range(2): a(f"buffer_store_dwordx4 {vr(X+4*Q,4)}, v{vWa}, s[8:11], s33 offen offset:{1024*Q} sc1")
    for q in range(4, 8):
        if q == 6: a("s_nop 0")
        for k in range(2): a(f"v_pk_add_f32 {vr(CA+4*q+2*k,2)}, {vr(CA+4*q+2*k,2)}, {vr(XU+4*q+2*k,2)}")
        for k in range(2): a(f"v_cvt_pk_bf16_f32 v{X+2*q+k}, v{CA+4*q+2*k}, v{CA+4*q+2*k+1}")
        if q & 1: a(f"buffer_store_dwordx4 {vr(X+2*q-2,4)}, v{vWa}, s[8:11], s33 offen offset:{512*(q-1)} sc1")
    a(f"s_lshl_b32 s31, s29, {FS[0]}\ns_add_u32 s31, s31, {F_1}")
    if P0.get("late1"): a("s_waitcnt vmcnt(0)")
    st(2)
    a("s_barrier\ns_cmp_lg_u32 s28, 0\ns_cbranch_scc1 M_NF")
    if P0.get("f1"): a(f"buffer_store_dwordx4 v[244:247], v{vTh}, s[64:67], s16 offen sc1")
    elif P0.get("r1"):
        R1 = P0["r1"][0]
        a(f"s_mov_b64 exec, {hex((1 << R1) - 1) if R1 < 64 else -1}\nbuffer_store_dword v{vSt}, v{vTh}, s[64:67], s16 offen sc1\ns_mov_b64 exec, -1".replace("exec, 0xffffffff\n", "exec, -1\ns_mov_b32 exec_hi, 0\n"))
    else: setflag(a, "s31")
    a("M_NF:")
    if P0.get("hold") == 1: a("s_barrier")
    if P0.get("hold") == 2: a("s_waitcnt vmcnt(0)\ns_barrier")
    a("s_cmp_eq_u32 s70, 0\ns_cbranch_scc1 P_MID")
    diag(a, 2)
    if P0.get("wl"): a(f"s_or_b32 s70, s70, {hex((1 << 20) - (1 << nin))}\ns_branch W_L0"); return
    poll(a, vFw, vD)
    a("s_mul_i32 s39, s3, 12288\ns_add_u32 s39, s39, s57")
    for c in range(nin):
        x = w1f_loads(c, c + 1); y = x[2].split("\n")
        a(f"s_bitcmp1_b32 s70, {c}\ns_cbranch_scc0 C_W{c}\n{x[0]}\n{x[1]}\n{y[0]}\nC_W{c}:\n" + "\n".join(y[1:]))
    a("s_branch P_MID")

def gen_help(a, st, sk, P={}):
    ntw = P.get('ntw', ' nt') if P.get('nt', 0) >= 1 else ''; ntx = ' nt' if P.get('nt', 0) >= 2 else ''
    vX, vFw = 11, 22
    S, M, RAW, XF = 24, 32, 36, 76
    if P.get("sco"): a(f"v_lshrrev_b32 v{vT1}, 4, v{vL}\nv_bfe_u32 v{vT0}, v{vL}, 3, 1\nv_lshl_add_u32 v{vT0}, v{vT1}, 3, v{vT0}")
    else: a(f"v_lshrrev_b32 v{vT0}, 3, v{vL}")
    a(f"v_and_b32 v{vT1}, 7, v{vL}\nv_lshlrev_b32 v{vT1}, 4, v{vT1}\ns_movk_i32 s33, 1280\nv_mad_u32_u24 v{vX}, v{vT0}, s33, v{vT1}")
    w2c = P.get("w2c")
    def w2_issue(n0=0, n1=15, ntw=ntw):
        vD = [12, 13, 14, 15, 16]
        if n0 == 0:
            a.srd(52, 44, 0, 1536 * 1280)
            a(f"s_lshr_b32 s48, s46, 3\ns_and_b32 s47, s46, 7\ns_mul_i32 s49, s48, {96*1280}\ns_mul_i32 s50, s47, 160\ns_add_u32 s49, s49, s50\ns_mul_i32 s51, s28, 15360\ns_add_u32 s51, s51, {WST}")
            if w2c: a(f"s_mul_i32 s50, s28, {24*1280-160}\ns_add_u32 s49, s49, s50")
            for j in range(5):
                a(f"v_add_u32 v{vT0}, {64*j}, v{vL}\nv_mul_u32_u24 v{vT1}, {1639 if w2c else 6554}, v{vT0}\nv_lshrrev_b32 v{vT1}, 16, v{vT1}\nv_mul_u32_u24 v{vT1}, {640 if w2c else 1280-160}, v{vT1}\nv_lshl_add_u32 v{vD[j]}, v{vT0}, 4, v{vT1}")
        for n in range(n0, n1):
            a(f"s_add_u32 m0, s51, {1024*n}\ns_nop 0\nbuffer_load_dwordx4 v{vD[n%5]}, s[52:55], s49 offen{ntw} lds")
            if n % 5 == 4: a(f"s_add_u32 s49, s49, {(8 if w2c else 32)*1280}")
    ro = P.get("ro")
    if ro:
        a("s_lshl_b32 s30, s29, 2\ns_add_u32 s30, s30, s28\ns_mov_b32 s46, s30\ns_movk_i32 s34, 40\ns_movk_i32 s56, 320\ns_cmp_lt_u32 s29, 32\ns_cbranch_scc1 H_RJ")
        a("s_lshr_b32 s34, s29, 3\ns_mul_i32 s34, s34, 5\ns_sub_u32 s34, s34, 16\ns_lshr_b32 s31, s34, 1\ns_lshl_b32 s31, s31, 3\ns_and_b32 s33, s29, 7\ns_add_u32 s31, s31, s33\ns_lshl_b32 s31, s31, 1\ns_and_b32 s33, s34, 1\ns_add_u32 s31, s31, s33")
        a(f"s_cmp_eq_u32 s28, {3 if ro > 1 else 0}\ns_cselect_b32 s56, s31, 320\ns_add_u32 s34, s34, s28\ns_sub_u32 s34, s34, 4\ns_movk_i32 s46, 128")
        if ro > 1: a("s_lshl_b32 s30, s29, 1\ns_add_u32 s30, s30, s28\ns_add_u32 s30, s30, 64\ns_cmp_lt_u32 s28, 2\ns_cselect_b32 s30, s30, 256\nH_RJ:")
        else: a("s_lshl_b32 s30, s29, 1\ns_add_u32 s30, s30, s28\ns_add_u32 s30, s30, 62\ns_cmp_lt_u32 s28, 2\ns_cselect_b32 s30, 256, s30\nH_RJ:")
    else:
        a("s_cmp_ge_u32 s29, 32\ns_cbranch_scc1 H_RB")
        a("s_lshr_b32 s34, s29, 3\ns_lshl_b32 s34, s34, 2\ns_add_u32 s34, s34, s28\ns_lshl_b32 s30, s29, 1\ns_add_u32 s30, s30, s28\ns_sub_u32 s46, s30, 2")
        if P.get("w2m"): a("s_lshl_b32 s46, s46, 1\ns_add_u32 s46, s46, 1")
        a("s_cmp_lt_u32 s28, 2\ns_cselect_b32 s30, s30, 256\ns_cselect_b32 s46, 128, s46\ns_branch H_RJ\nH_RB:")
        a("s_mul_i32 s31, s29, 3\ns_add_u32 s31, s31, s28\ns_lshr_b32 s34, s29, 3\ns_mul_i32 s34, s34, 3\ns_add_u32 s34, s34, s28\ns_add_u32 s34, s34, 4\ns_sub_u32 s30, s31, 33\ns_add_u32 s46, s29, 32")
        if P.get("w2m"): a("s_sub_u32 s46, s29, 32\ns_lshl_b32 s46, s46, 1")
        a("s_cmp_eq_u32 s28, 0\ns_cselect_b32 s30, 256, s30\ns_cmp_eq_u32 s28, 3\ns_cselect_b32 s34, 40, s34\ns_cselect_b32 s46, s46, 128\nH_RJ:")
    a("s_lshr_b32 s31, s34, 1\ns_lshl_b32 s31, s31, 3\ns_and_b32 s33, s29, 7\ns_add_u32 s31, s31, s33\ns_lshl_b32 s31, s31, 1\ns_and_b32 s34, s34, 1\ns_add_u32 s34, s34, s31")
    a(f"s_load_dwordx2 s[44:45], s[0:1], {KA['wd']}\ns_mul_i32 s31, s30, 10240\ns_mul_i32 s32, s28, {RW}")
    if P.get("sco"): a("s_and_b32 s33, s30, 3\ns_mul_i32 s33, s33, 7680\ns_sub_u32 s31, s31, s33")
    w1_voff(a)
    sk(1)
    a("s_waitcnt lgkmcnt(0)")
    sk(2)
    a(f"s_add_u32 s64, s4, {FL_OFF}\ns_addc_u32 s65, s5, 0\ns_load_dword s59, s[64:65], 0\ns_mov_b32 s66, 0x200000\ns_mov_b32 s67, 0x20000")
    a.srd(24, 8, 0, 2048 * 1280)
    a.srd(12, 40, 0, 640 * 3072); a.srd(16, 42, 0, 640 * 3072)
    a("s_cmp_ge_u32 s30, 256\ns_cbranch_scc1 H_NX")
    for i in range(10): a(f"buffer_load_dwordx4 {vr(RAW+4*i,4)}, v{vX}, s[24:27], s31 offen offset:{128*i}{ntx}")
    a("H_NX:")
    sk(3)
    if not P.get("we"): a("s_waitcnt lgkmcnt(0)\ns_barrier\ns_add_u32 s59, s59, 1")
    sk(4)
    hpw = P.get("hpw", 0)
    if hpw:
        a(f"s_lshr_b32 s47, s30, 6\ns_lshl_b32 s47, s47, 12\ns_and_b32 s33, s30, 3\ns_lshl_b32 s33, s33, 10\ns_add_u32 s47, s47, s33\ns_bfe_u32 s33, s30, 0x40002\ns_lshl_b32 s33, s33, 6\ns_add_u32 s47, s47, s33\ns_add_u32 s47, s47, {F_ST}")
        a(f"s_lshl_b32 s48, s34, 6\ns_add_u32 s48, s48, {F_W}\ns_lshl_b32 s49, s46, 6\ns_add_u32 s49, s49, {F_W+320*64}")
        a("s_cmp_lt_u32 s34, 320\ns_cselect_b32 s48, s48, s49\ns_cmp_lt_u32 s46, 128\ns_cselect_b32 s49, s49, s48\ns_cmp_lt_u32 s30, 256\ns_cselect_b32 s47, s47, s48")
        if ro: a(f"s_lshl_b32 s50, s56, 6\ns_add_u32 s50, s50, {F_W}\ns_cmp_lt_u32 s56, 320\ns_cselect_b32 s49, s50, s49")
        a(f"v_mov_b32 v{vT0}, s47\nv_mov_b32 v{vT1}, s48\nv_mov_b32 v{vT2}, s49\nv_cmp_gt_u32 vcc, 4, v{vL}\nv_cndmask_b32 v{vT1}, v{vT2}, v{vT1}, vcc\nv_cmp_gt_u32 vcc, 8, v{vL}\nv_cndmask_b32 v{vT1}, v{vT0}, v{vT1}, vcc")
        a(f"v_and_b32 v{vT0}, 3, v{vL}\nv_lshl_add_u32 v17, v{vT0}, 4, v{vT1}")
        for i in range(4): a(f"v_not_b32 v{240+i}, {TAG}")
    pw = f"s_mov_b64 exec, {0xfff if hpw > 1 else 0xff}\nbuffer_store_dwordx4 v[240:243], v17, s[64:67], 0 offen sc1\ns_mov_b64 exec, -1"
    if hpw: a(pw)
    a("s_cmp_ge_u32 s34, 320\ns_cbranch_scc1 H_NW")
    def w1_issue(u, l, o):
        a(f"s_lshr_b32 {o}, {u}, 4\ns_and_b32 s36, {u}, 15\ns_mul_i32 s37, {o}, 98304\ns_mul_i32 s38, s36, 192\ns_add_u32 s37, s37, s38\ns_add_u32 s38, s37, {16*3072}")
        for g in range(4):
            a(f"s_add_u32 m0, {l}, {3072*g}\ns_nop 0")
            for i in range(3): a(f"buffer_load_dwordx4 v{vWd[i]}, s[{12+4*(g>>1)}:{15+4*(g>>1)}], s{37+(g&1)} offen offset:{1024*i}{ntw} lds")
        a(f"s_mul_i32 s36, s36, 245760\ns_mul_i32 {o}, {o}, 12288\ns_add_u32 {o}, {o}, s36")
    if ro == 3: a("s_cmp_lt_u32 s30, 256\ns_cbranch_scc1 H_B2\ns_barrier\nH_B2:")
    w1_issue("s34", "s32", "s35")
    if ro == 3: a("s_cmp_ge_u32 s30, 256\ns_cbranch_scc1 H_B3\ns_barrier\nH_B3:")
    if ro:
        a(f"s_cmp_ge_u32 s56, 320\ns_cbranch_scc1 H_J1\ns_mov_b32 s51, {WST}")
        w1_issue("s56", "s51", "s57")
    if P.get("w2a") == 2:
        a("s_cmp_ge_u32 s46, 128\ns_cbranch_scc1 H_J1")
        w2_issue()
    a("s_branch H_J1\nH_NW:")
    if P.get("w2e"): w2_issue(0, 12)
    else: a("s_waitcnt vmcnt(0)")
    a("H_J1:")
    if P.get("we"): a("s_waitcnt lgkmcnt(0)\ns_barrier\ns_add_u32 s59, s59, 1")
    st(1)
    a("s_cmp_ge_u32 s30, 256\ns_cbranch_scc1 H_NOST")
    for i in range(10):
        a(f"s_waitcnt vmcnt({12+9-i+(1 if hpw else 0)})")
        if i == 0: st(2)
        for k in range(4):
            a(f"v_lshlrev_b32 v{XF+8*i+2*k}, 16, v{RAW+4*i+k}\nv_and_b32 v{XF+8*i+2*k+1}, 0xffff0000, v{RAW+4*i+k}")
        for k in range(4):
            if i == 1: a(f"v_pk_add_f32 {vr(S+2*k,2)}, {vr(XF+2*k,2)}, {vr(XF+8+2*k,2)}")
            elif i > 1: a(f"v_pk_add_f32 {vr(S+2*k,2)}, {vr(S+2*k,2)}, {vr(XF+8*i+2*k,2)}")
    def red():
        a(f"v_pk_add_f32 {vr(S,2)}, {vr(S,2)}, {vr(S+2,2)}\nv_pk_add_f32 {vr(S+4,2)}, {vr(S+4,2)}, {vr(S+6,2)}\nv_pk_add_f32 {vr(S,2)}, {vr(S,2)}, {vr(S+4,2)}\nv_add_f32 v{S}, v{S}, v{S+1}")
        for m in ("quad_perm:[1,0,3,2]", "quad_perm:[2,3,0,1]", "row_half_mirror"):
            a(f"s_nop 1\nv_add_f32_dpp v{S}, v{S}, v{S} {m} row_mask:0xf bank_mask:0xf")
        a(f"v_mul_f32 v{S}, 0x3acccccd, v{S}")
    red()
    a(f"v_mov_b32 v{M}, v{S}")
    for i in range(41):
        if i < 40:
            x = vr(XF + 2 * i, 2); a(f"v_pk_add_f32 {x}, {x}, {vr(M,2)} op_sel_hi:[1,0] neg_lo:[0,1] neg_hi:[0,1]")
        if i >= 1:
            k = i - 1; y = vr(XF + 2 * k, 2); s = vr(S + 2 * (k & 3), 2)
            a(f"v_pk_mul_f32 {s}, {y}, {y}" if k < 4 else f"v_pk_fma_f32 {s}, {y}, {y}, {s}")
    red()
    a(f"v_cvt_pk_bf16_f32 v{S}, 0, v{S}\nv_add_f32 v{S}, 0x3727c5ac, v{S}\nv_cvt_pk_bf16_f32 v{S}, 0, v{S}\nv_sqrt_f32 v{S}, v{S}")
    a(f"v_mov_b32 v{S+3}, {TAG}\nv_cvt_pk_bf16_f32 v{S+2}, v{M}, v{S}\ns_lshl_b32 s31, s30, 6\ns_add_u32 s31, s31, {F_ST}")
    if P.get("sco"): a(f"s_lshr_b32 s31, s30, 6\ns_lshl_b32 s31, s31, 12\ns_and_b32 s33, s30, 3\ns_lshl_b32 s33, s33, 10\ns_add_u32 s31, s31, s33\ns_bfe_u32 s33, s30, 0x40002\ns_lshl_b32 s33, s33, 6\ns_add_u32 s31, s31, s33\ns_add_u32 s31, s31, {F_ST}")
    if hpw: a("s_waitcnt vmcnt(12)")
    a(f"s_mov_b32 exec_lo, 0x01010101\ns_mov_b32 exec_hi, 0x01010101\nbuffer_store_dwordx2 {vr(S+2,2)}, v{vL}, s[64:67], s31 offen sc1\ns_mov_b64 exec, -1")
    a("s_branch H_S1\nH_NOST:\ns_waitcnt vmcnt(0)\nH_S1:" if P.get("hw") else "H_NOST:")
    st(3)
    FR = 24
    a(f"v_lshlrev_b32 v{vX}, 4, v{vL}\ns_cmp_ge_u32 s34, 320\ns_cbranch_scc1 H_W2D")
    w1_addr(a, "s32")
    a.srd(12, 4, W1_OFF, 16 * 245760)
    def w1_proc(FR, o):
        for ww in range(4):
            for x in w1_frag(lambda k: vr(FR + 12 * ww + k, 2), 48 * ww): a(x)
            if ww == 1: a("s_waitcnt lgkmcnt(3)")
        for f in range(12):
            if f % 3 == 0: a(f"s_waitcnt lgkmcnt({min(12, 18-2*f)})")
            a(f"buffer_store_dwordx4 {vr(FR+4*f,4)}, v{vX}, s[12:15], {o} offen offset:{1024*(f&3)} sc1")
            if f & 3 == 3: a(f"s_add_u32 {o}, {o}, 4096")
    if ro:
        a("s_cmp_ge_u32 s56, 320\ns_cbranch_scc1 H_ONE\ns_waitcnt vmcnt(12)")
        w1_proc(76, "s35")
        w1_addr(a, "s51")
        a("s_waitcnt vmcnt(12)")
        w1_proc(FR, "s57")
        a(f"s_lshl_b32 s34, s34, 6\ns_add_u32 s34, s34, {F_W}\ns_waitcnt vmcnt(12)")
        setflag64(a, "s34")
        a("s_mov_b32 s34, s56\ns_branch H_FIN\nH_ONE:")
    a(f"s_waitcnt vmcnt({1 if P.get('hw') else 0})")
    sk(5)
    w1_proc(FR, "s35")
    a("H_FIN:")
    sk(6)
    a(f"s_lshl_b32 s34, s34, 6\ns_add_u32 s34, s34, {F_W}")
    if P.get("w2a") == 1:
        a("s_cmp_ge_u32 s46, 128\ns_cbranch_scc1 H_WA")
        w2_issue()
        a("s_waitcnt vmcnt(15)\ns_branch H_WB\nH_WA:\ns_waitcnt vmcnt(0)\nH_WB:")
    else: a("s_waitcnt vmcnt(0)")
    sk(7)
    (setflag64 if P.get("fw") else setflag)(a, "s34")
    a("H_W2B:")
    st(4)
    a("s_cmp_ge_u32 s46, 128\ns_cbranch_scc1 H_J2")
    if P.get("hb") == 2: a("s_barrier\ns_mov_b32 s30, 999")
    if not P.get("w2a"): w2_issue()
    a("s_branch H_W2C\nH_W2D:")
    w2_issue(12 if P.get("w2e") else 0, 15, "" if P.get("w2m") or P.get("w2n") else ntw)
    if P.get("w2m") == 2:
        a(f"s_sub_u32 s49, s49, {96*1280-192}\nv_mul_u32_u24 v{vT0}, 1280, v{vL}\nbuffer_load_dword v248, v{vT0}, s[52:55], s49 offen\ns_add_u32 s49, s49, {32*1280}\nbuffer_load_dword v249, v{vT0}, s[52:55], s49 offen")
    a("H_W2C:")
    a("s_mul_i32 s35, s47, 245760\ns_mul_i32 s36, s48, 15360\ns_add_u32 s35, s35, s36")
    a.srd(12, 4, W2_OFF, 8 * 245760)
    vR = 12
    a(f"v_lshrrev_b32 v{vT0}, 4, v{vL}\nv_lshlrev_b32 v{vT0}, 3, v{vT0}\nv_bfe_u32 v{vT1}, v{vL}, 2, 2\nv_and_b32 v{vT2}, 3, v{vL}\nv_lshlrev_b32 v{vT2}, 3, v{vT2}\ns_movk_i32 s33, 160")
    if w2c: assert ro; a(f"s_movk_i32 s33, 640\ns_mul_i32 s51, s28, 160\ns_add_u32 s51, s51, {WST}")
    for q in range(3):
        for h in range(2):
            tb = 0
            for kq in range(4):
                sl = 4 * q + kq; ww, i = sl // 3, sl % 3
                tb |= (24 * ww + (4 * i + 8 * h if i < 2 else 16 + 4 * h)) << (8 * kq)
            r = vR + 4 * q + 2 * h
            a(f"s_mov_b32 s36, {hex(tb)}\nv_bfe_u32 v{vT3}, s36, v{vT0}, 8\nv_add_u32 v{vT3}, v{vT3}, v{vT1}\nv_mad_u32_u24 v{vT3}, v{vT3}, s33, v{vT2}")
            a(f"v_add_u32 v{r+1}, s51, v{vT3}\nv_add_u32 v{r}, v{r+1}, v{vT2}")
    sk(4)
    a("s_waitcnt vmcnt(0)")
    if w2c: a("s_barrier")
    sk(5)
    for q in range(3):
        for dt in range(5):
            for h in range(2):
                r = vR + 4 * q + 2 * h
                a(f"ds_read_b64_tr_b16 {vr(FR+20*q+4*dt+2*h,2)}, v{r if dt < 4 else r+1} offset:{64*(dt>>1)+8*(dt&1)}")
        a("s_waitcnt lgkmcnt(0)")
        for dt in range(5):
            f = 5 * q + dt
            a(f"buffer_store_dwordx4 {vr(FR+4*f,4)}, v{vX}, s[12:15], s35 offen offset:{1024*(f&3)} {P.get('wst', 'sc1')}")
            if f & 3 == 3: a("s_add_u32 s35, s35, 4096")
    sk(6)
    if P.get("w2f"):
        assert w2c and P.get("wl")
        w1f_setup(a, vFw)
        a(f"buffer_load_dword v23, v22, s[64:67], 0 offen sc1\ns_lshl_b32 s34, s46, 6\ns_add_u32 s34, s34, {F_W+320*64}\ns_barrier\ns_waitcnt vmcnt(0)")
        setflag64(a, "s34")
        st(5); st(6); st(7)
        a("s_mov_b32 s70, 0xfffff\ns_movk_i32 s58, 0x7fff\ns_mov_b32 s71, 0\ns_mov_b64 exec, s[70:71]\ns_branch W_L1")
    a(f"s_lshl_b32 s34, s46, 6\ns_add_u32 s34, s34, {F_W+320*64}\ns_waitcnt vmcnt(0)")
    sk(7)
    (setflag64 if P.get("fw") else setflag)(a, "s34")
    a("H_J2:")
    st(5)
    w1f_setup(a, vFw)
    if not P.get("hb"): a("s_barrier")
    if P.get("hb") == 2: a("s_cmp_eq_u32 s30, 999\ns_cbranch_scc1 H_NB\ns_barrier\nH_NB:")
    st(6)
    if P.get("hp1"):
        a(f"s_cmp_lg_u32 s28, {P['hp1']-1}\ns_cbranch_scc1 H_P1")
        poll(a, 22, 23)
        a("H_P1:\ns_barrier")
    st(7)
    if P.get("hp1"): a("s_branch P_WL2")

vH = [11, 12]; vB = 16; vO1, vO2, vPw, vPr, vPp, vF1, vL16 = 13, 14, 15, 24, 25, 26, 27
SUM, SQ, CS, ACC, FB, TMP = 28, 36, 44, 60, [156, 188], 220
def g1_setup(a, P):
    a.srd(8, 4, HT_OFF, 640 * 4096)
    a.srd(16, 4, HH_OFF, PSO + 256 * 4096)
    a(f"v_lshrrev_b32 v{vT0}, 4, v{vL}\nv_and_b32 v{vT1}, 15, v{vL}\nv_lshlrev_b32 v{vT2}, 1, v{vT0}\nv_xor_b32 v{vT2}, v{vT1}, v{vT2}")
    a(f"v_lshlrev_b32 v{vT2}, 4, v{vT2}\nv_lshl_add_u32 v{vH[0]}, v{vT0}, 12, v{vT2}\nv_xor_b32 v{vH[1]}, 128, v{vH[0]}\nv_add_u32 v{vH[1]}, {4*4096-1024}, v{vH[1]}")
    a(f"s_lshl_b32 s20, s28, 15\ns_lshl_b32 s25, s60, 8\ns_add_u32 s20, s20, s25\ns_lshl_b32 s26, s28, 11\ns_add_u32 s21, s20, {20*131072}\ns_lshl_b32 s24, s3, 17\ns_add_u32 s24, s24, s20")
    a.srd(48, 4, W2_OFF, 8 * 245760)
    a("s_and_b32 s55, s62, 3\ns_lshr_b32 s31, s63, 2\ns_add_u32 s55, s55, s31\ns_sub_u32 s31, s55, 3\ns_cselect_b32 s55, s55, s31")
    if P.get("norot2"): a("s_mov_b32 s55, 0")
    a(f"v_lshrrev_b32 v{vT2}, 3, v{vL}\nv_and_b32 v{vT3}, 7, v{vL}\nv_lshlrev_b32 v{vT3}, 4, v{vT3}\nv_lshl_add_u32 v6, v{vT2}, 12, v{vT3}")
    a("s_mul_i32 s46, s63, 80\ns_mul_i32 s47, s28, 24\ns_add_u32 s46, s46, s47\ns_lshl_b32 s46, s46, 12\ns_lshl_b32 s47, s62, 7\ns_add_u32 s46, s46, s47\ns_mul_i32 s47, s28, 3072")
    a("s_mul_i32 s54, s63, 245760\ns_mul_i32 s31, s28, 61440\ns_add_u32 s54, s54, s31\ns_add_u32 s53, s54, 61440\ns_mul_i32 s52, s55, 20480\ns_add_u32 s52, s52, s54")
    a(f"v_lshrrev_b32 v{vT2}, 2, v{vL}\nv_and_b32 v{vT3}, 7, v{vT2}\ns_lshl_b32 s27, s28, 1\nv_xor_b32 v{vT3}, s27, v{vT3}\nv_lshlrev_b32 v{vT3}, 5, v{vT3}")
    a(f"v_lshl_add_u32 v{vT3}, v{vT2}, 8, v{vT3}\nv_and_b32 v{vT2}, 3, v{vL}\nv_lshl_add_u32 v{vB}, v{vT2}, 3, v{vT3}")
    for i in range(1, 8): a(f"v_xor_b32 v{vB+i}, {32*i}, v{vB}")
    a(f"v_lshlrev_b32 v{vT1}, 4, v{vT1}\nv_lshrrev_b32 v{vT2}, 5, v{vL}\nv_and_b32 v{vT3}, 1, v{vT0}")
    a(f"s_mov_b32 s38, 49152\nv_mad_u32_u24 v{vO2}, v{vT2}, s38, v{vT1}\nv_lshl_add_u32 v{vO1}, v{vT3}, 8, v{vO2}")
    a(f"s_and_b32 s30, s28, 1\nv_xor_b32 v{vT3}, s30, v{vT3}\nv_mul_u32_u24 v{vT3}, 98304, v{vT3}\nv_add3_u32 v{vO2}, v{vO2}, v{vT3}, s38\nv_subrev_u32 v{vO2}, {49152-512}, v{vO2}")
    a("s_mul_i32 s30, s60, 393216\ns_mul_i32 s31, s61, 3072\ns_add_u32 s30, s30, s31\ns_mul_i32 s31, s28, 768\ns_add_u32 s30, s30, s31")
    for p in range(4): a(f"s_xor_b32 s31, s28, {p}\ns_mul_i32 s31, s31, 98304\ns_add_u32 s{32+p}, s30, s31")
    for q in range(2): a(f"s_lshr_b32 s31, s28, 1\ns_xor_b32 s31, s31, {q}\ns_mul_i32 s31, s31, 196608\ns_add_u32 s{36+q}, s30, s31")
    a(f"s_lshl_b32 s31, s28, 9\nv_add_u32 v{vPr}, s31, v{vT1}\nv_lshl_add_u32 v{vPp}, v{vT2}, 8, v{vPr}")
    a(f"v_lshrrev_b32 v{vT2}, 2, v{vL}\nv_xor_b32 v{vT2}, v{vT2}, v{vT0}\nv_and_b32 v{vT2}, 1, v{vT2}\nv_lshl_add_u32 v{vPw}, v{vT2}, 11, v{vPp}")
    a(f"v_and_b32 v{vT2}, 1, v{vT0}\nv_lshl_add_u32 v10, v{vT2}, 14, v{vPp}\ns_lshl_b32 s25, s60, 4\ns_add_u32 s25, s25, s61\ns_lshl_b32 s25, s25, 12\ns_add_u32 s25, s25, {PSO}")
    a("s_and_b32 s27, s61, 7\ns_lshl_b32 s27, s27, 12\ns_sub_u32 s27, s25, s27")
    a(f"v_lshrrev_b32 v{vT0}, 1, v{vL}\nv_and_b32 v{vT1}, 1, v{vL}\nv_lshl_add_u32 v{vT0}, v{vT0}, 3, v{vT1}\ns_lshl_b32 s31, s28, {FS[0]+1}\ns_add_u32 s31, s31, {F_1}\ns_add_u32 s31, s31, s6\nv_lshl_add_u32 v{vT0}, v{vT0}, {FS[0]}, s31")
    if P.get("r1"):
        R1, z = P["r1"]
        a(f"s_cmp_lg_u32 s6, 0\ns_cbranch_scc1 M_R1\ns_and_b32 s31, s2, {R1-1}\ns_lshl_b32 s31, s31, 2\ns_add_u32 s31, s31, s28\ns_mul_i32 s31, s31, {40 << z}\ns_add_u32 s31, s31, {F_1R}\nv_lshl_add_u32 v{vT0}, v{vL}, {z}, s31\nM_R1:")
    a(f"s_lshl_b32 s31, s28, 5\ns_add_u32 s31, s31, s63\ns_lshl_b32 s31, s31, 6\ns_add_u32 s31, s31, {F_W+320*64}\nv_and_b32 v{vT1}, 3, v{vL}\nv_lshl_add_u32 v{vT1}, v{vT1}, 9, s31")
    a(f"v_cmp_gt_u32 vcc, 40, v{vL}\ns_mov_b32 s68, 0xaaaaaaaa\ns_mov_b32 s69, s68\nv_cndmask_b32 v{vF1}, v{vT1}, v{vT0}, vcc")
    a("s_mov_b32 s70, 0xcccccccc\ns_mov_b32 s71, s70\ns_mov_b32 s72, 0xff00ff00\ns_mov_b32 s73, s72\ns_mov_b32 s74, 0\ns_mov_b32 s75, -1")
    a(f"s_mul_i32 s31, s63, {20<<FS[0]}\ns_add_u32 s31, s31, {F_1L}\nv_lshl_add_u32 v8, v{vL}, {FS[0]}, s31")
    a(f"s_lshl_b32 s31, s61, 2\ns_add_u32 s31, s31, s28\ns_mul_i32 s22, s31, 3072\ns_add_u32 s22, s22, {CSO}\ns_lshl_b32 s23, s31, 6\ns_add_u32 s23, s23, {F_C}")
    a(f"v_mov_b32 v7, s23\nv_cmp_gt_u32 vcc, 20, v{vL}\nv_cndmask_b32 v8, v7, v8, vcc")
    if P.get("wf2"):
        a(f"s_lshl_b32 s31, s62, 3\ns_add_u32 s31, s31, s63\ns_lshl_b32 s31, s31, 2\ns_add_u32 s31, s31, s28\ns_lshl_b32 s31, s31, {P['rep']-2}\ns_add_u32 s31, s31, {F_2}\nbuffer_load_dword v{vT0}, off, s[64:67], s31 sc1")
    for i in range(4): a(f"v_mov_b32 v{vN+i}, -1")
    for i in range(4): a(f"v_mov_b32 v{TMP+i}, 0x3f803f80")
    a("s_nop 1")
def cs_mf(s):
    return [f"v_mfma_f32_16x16x32_bf16 {vr(CS+4*t,4)}, {ar(12*s+4*t,4)}, {vr(TMP,4)}, {vr(CS+4*t,4) if s else 0}" for t in range(3)]
def gen_mid1(a, st, P):
    nin = P.get("nin", 20); nin0 = 0
    a("P_WALL:")
    if P.get("wl"):
        a(f"s_mov_b32 s70, 0xfffff\nW_L0:\ns_movk_i32 s58, 0x7fff\ns_mov_b32 s71, 0\nW_L:\ns_mov_b64 exec, s[70:71]\nbuffer_load_dword v23, v22, s[64:67], 0 offen sc1")
        a(f"s_mul_i32 s39, s3, 12288\ns_add_u32 s39, s39, s57\ns_waitcnt vmcnt(0)\nW_L1:\nv_cmp_eq_u32 vcc, {TAG}, v23\ns_mov_b64 exec, -1\ns_cbranch_vccz W_N\ns_andn2_b32 s70, s70, vcc_lo")
        for c in range(20):
            x = w1f_loads(c, c + 1); y = x[2].split("\n")
            a(f"s_bitcmp1_b32 vcc_lo, {c}\ns_cbranch_scc0 W_S{c}\n{x[0]}\n{x[1]}\n{y[0]}\nW_S{c}:\n" + "\n".join(y[1:]))
        a("s_cmp_eq_u32 s70, 0\ns_cbranch_scc1 P_MID2\nW_N:\ns_sub_u32 s58, s58, 1\ns_cbranch_scc0 W_L\ns_branch P_MID2")
        nin0 = nin
    else: poll(a, 22, 23)
    a("P_WL2:")
    if P.get("tch"):
        t0, tw = P["tch"]
        a(f"s_mul_i32 s31, s3, 12288\ns_mul_i32 s40, s28, {tw}\ns_add_u32 s31, s31, s40\ns_add_u32 s31, s31, {t0}\nv_lshl_add_u32 v{vT0}, v{vL}, 7, s31\ns_mul_i32 s40, s61, 245760")
        for k in range(-(-tw // 8192)):
            a(f"v_subrev_u32 v{vT1}, 245760, v{vT0}\nv_min_u32 v{vT1}, v{vT1}, v{vT0}\nbuffer_load_dword v{240+k}, v{vT1}, s[12:15], s40 offen sc1\nv_add_u32 v{vT0}, 8192, v{vT0}")
    for x in w1f_loads(nin0, nin): a(x)
    a("s_waitcnt vmcnt(0)\nP_MID:")
    nd = sum(P.get("wd", [])) // 3
    for x in w1f_loads(nin, 20 - nd): a(x)
    a("P_MID2:")
    st(8)
    g1_setup(a, P)
    touch(a, "B")
    if True:
        a(f"s_cmp_lt_u32 s2, {192 if P.get('ska') else 160}\ns_cbranch_scc1 M_P2")
        assert P["k1"] == 3
        a("s_and_b32 s31, s2, 0xc3\ns_cmp_lg_u32 s31, 0xc0\ns_cbranch_scc1 M_P1\ns_mov_b32 s40, s39")
        for x in w1f_loads(20 - nd, 20): a(x)
        a("s_mov_b32 s39, s40\ns_waitcnt vmcnt(0)")
        for s in range(20):
            for x in cs_mf(s): a(x)
        a("s_nop 7")
        for t in range(3): a(f"buffer_store_dwordx4 {vr(CS+4*t,4)}, v{vWa}, s[16:19], s22 offen offset:{1024*t} sc1")
        if P.get("csx") == 2: a("s_branch M_P3" if P.get("hb") == 1 and not P.get("hp1") else "s_branch M_P2")
        else:
            a("s_waitcnt vmcnt(0)")
            setflag(a, "s23")
            if P.get("csx"): a("s_branch M_P2")
        a("M_P1:")
        if not P.get("nopf2"):
            a(f"v_lshlrev_b32 v{vT2}, 6, v{vL}\nv_add_u32 v{vT2}, {F_W+320*64}, v{vT2}")
            poll(a, vT2, vT3)
            a(f"v_add_u32 v{vT2}, 4096, v{vT2}")
            poll(a, vT2, vT3)
            a(f"v_lshrrev_b32 v{vT3}, 3, v{vL}\nv_lshlrev_b32 v{vT3}, 12, v{vT3}\nv_lshl_add_u32 v{vT2}, v{vL}, 7, v{vT3}\ns_lshr_b32 s31, s29, 3\ns_lshl_b32 s31, s31, 2\ns_add_u32 s31, s31, s28\ns_mul_i32 s31, s31, 40960")
            for k in P.get("pf2", (0, 2)): a(f"buffer_load_dword v{250+k}, v{vT2}, s[48:51], s31 offen offset:{1024*k} sc1")
        if P.get("pp") == 1:
            a("s_and_b32 s31, s29, 3\ns_cmp_lg_u32 s31, s28\ns_cbranch_scc1 M_P3")
            if P.get("ppm"): poll(a, vF1, vT3, one=f"s_lshr_b32 s31, s29, 2\ns_lshl_b64 exec, {P['ppm']}, s31".replace("exec, 585", "exec, 0x249"))
            for k in range(0 if P.get("ppm") else P.get("npp", 1)): poll(a, vF1, vT3, one=f"s_lshr_b32 s31, s29, 2\ns_lshl_b64 exec, {1<<(3*k)}, s31")
            a("M_P3:\ns_barrier")
        elif P.get("pp") == 2: poll(a, vF1, vT3, one="s_mul_i32 s31, s29, 27\ns_lshr_b32 s31, s31, 6\ns_lshl_b64 exec, 1, s31")
        else: poll(a, vF1, vT3, one="s_mov_b64 exec, 1")
        a("M_P2:")
    for k in range(P.get("cpp", 0)): poll(a, vF1, vT3, one=f"s_lshr_b32 s31, s2, 3\ns_lshl_b64 exec, {1<<(4*k)}, s31")
    if P.get("lim"): poll2(a, vF1, vT3, P["lim"])
    else: poll(a, vF1, vT3)
    if P.get("csx") == 2:
        a("s_and_b32 s31, s2, 0xc3\ns_cmp_lg_u32 s31, 0xc0\ns_cbranch_scc1 M_NC")
        setflag(a, "s23")
        a("M_NC:")
    st(9)
    if not P.get("nobar1"): a("s_barrier")
def h_dma(s):
    return [f"s_add_u32 m0, s26, {8192*s}", "s_nop 0", f"buffer_load_dwordx4 v{vH[0]}, s[8:11], s24 offen sc1 lds",
            f"buffer_load_dwordx4 v{vH[1]}, s[8:11], s24 offen offset:1024 sc1 lds", "s_add_u32 s24, s24, 131072", "s_cmp_eq_u32 s24, s21", "s_cselect_b32 s24, s20, s24"]
def w2f_load(f):
    x = f"buffer_load_dwordx4 {ar(4*f,4)}, v{vWa}, s[48:51], s52 offen offset:{1024*(f&3)} sc1"
    if f & 3 == 3 and f < 59: x += "\ns_add_u32 s52, s52, 4096"
    if f in (19, 39): x += "\ns_cmp_eq_u32 s52, s53\ns_cselect_b32 s52, s54, s52"
    return x
RES = 8192; RED = 24576
PL = 224; TS = 240; PR = FB[0]; PR2 = SUM
def st_mf(fb, first):
    o = []
    for ti in range(2):
        o.append(f"v_mfma_f32_16x16x32_bf16 {vr(SQ+4*ti,4)}, {vr(fb+4*ti,4)}, {vr(fb+4*ti,4)}, {0 if first else vr(SQ+4*ti,4)}")
        o.append(f"v_mfma_f32_16x16x32_bf16 {vr(SUM+4*ti,4)}, {vr(TMP,4)}, {vr(fb+4*ti,4)}, {0 if first else vr(SUM+4*ti,4)}")
    return o
def st_extract(dS, dQ):
    q = SQ; S = SUM
    return [f"v_cndmask_b32 v{q}, v{q}, v{q+1}, s[68:69]", f"v_cndmask_b32 v{q+2}, v{q+2}, v{q+3}, s[68:69]",
            f"v_cndmask_b32 v{q+4}, v{q+4}, v{q+5}, s[68:69]", f"v_cndmask_b32 v{q+6}, v{q+6}, v{q+7}, s[68:69]",
            f"v_cndmask_b32 v{q}, v{q}, v{q+2}, s[70:71]", f"v_cndmask_b32 v{q+4}, v{q+4}, v{q+6}, s[70:71]",
            f"v_cndmask_b32 v{dS}, v{S}, v{S+4}, s[74:75]", "s_nop 0", f"v_permlane32_swap_b32 v{q}, v{q+4}", "s_nop 0",
            f"v_cndmask_b32 v{dQ}, v{q}, v{q+4}, s[72:73]"]
def pl_loads(): return [f"buffer_load_dwordx4 {vr(PL+4*i,4)}, v10, s[16:19], s{(27, 30, 38, 45)[i]} offen sc1" for i in range(4)]
def pl_check(): return [f"v_sad_u32 v2, v{PL+1}, {TAG}, 0"] + [f"v_sad_u32 v2, v{PL+2*i+1}, {TAG}, v2 clamp" for i in range(1, 8)] + ["v_cmp_ne_u32 vcc, 0, v2"]
def g1_main(a, st, P):
    up = P.get("up", 10); bars = P.get("bars", [0, 1, 2, 4, 6, 8, 10, 12, 14, 16, 18])
    q = []
    def emit(x):
        if isinstance(x, str): a(x)
        elif x[0] == "vm": q.append(x[2]); a(x[1])
        else:
            n = len(q) - 1 - max(i for i, c in enumerate(q) if c == x[1]); assert n < 62
            a(f"s_waitcnt vmcnt({n})")
    for s in range(up):
        for x in h_dma(s): a(x)
        q += [s, s]
    a("s_add_u32 s30, s27, 4096\ns_add_u32 s38, s27, 8192\ns_add_u32 s45, s27, 12288")
    def reads(s):
        p = s & 1
        return [f"ds_read_b64_tr_b16 {vr(FB[p]+4*i+2*h,2)}, v{vB+i} offset:{8192*(s&7)+4096*h}" for i in range(8) for h in range(2)]
    issued = up
    def sync(s):
        nb = min([b for b in bars if b > s] + [20])
        assert issued >= nb, (s, issued, nb)
        return [("w", nb - 1), "s_barrier"]
    nw2 = 0
    wd = P.get("wd", []); wdl = w1f_loads(20 - sum(wd) // 3, 20)
    for x in sync(0): emit(x)
    st(10)
    for x in reads(0): a(x)
    a(f"s_cmp_lg_u32 s28, 0\ns_cbranch_scc1 M_NE\ns_cmp_ge_u32 s2, 160\ns_cbranch_scc1 M_NE\ns_lshl_b32 s31, s29, {FS[0]}\ns_add_u32 s31, s31, {F_1L}")
    setflag(a, "s31")
    a("s_cmp_lg_u32 s2, 0\ns_cbranch_scc1 M_NE")
    setflag(a, "0")
    a("M_NE:")
    hclr = [f"buffer_store_dwordx4 {vr(vN,4)}, v{vO1 if k < 4 else vO2}, s[16:19], s{32+k} offen sc1" for k in range(6)]
    if P.get("late2"): hclr = []
    K1 = -LOG2E * 1.5957691216057308
    t = TS; S = PL; Q = PL + 2
    sp = P.get("sp", 12)
    vser = {3: st_extract(t, t + 2) + [f"v_mov_b32 v{t+1}, {TAG}", f"v_mov_b32 v{t+3}, {TAG}"],
            17: [f"v_add_f32 v{S}, v{S}, v{S+4}", f"v_add_f32 v{Q}, v{Q}, v{Q+4}", f"v_add_f32 v{S+8}, v{S+8}, v{S+12}", f"v_add_f32 v{Q+8}, v{Q+8}, v{Q+12}",
                 f"v_add_f32 v{S}, v{S}, v{S+8}", f"v_add_f32 v{Q}, v{Q}, v{Q+8}", f"v_mov_b32 v{S+1}, v{S}", f"v_mov_b32 v{Q+1}, v{Q}", "s_nop 0",
                 f"v_permlane16_swap_b32 v{S}, v{S+1}", f"v_permlane16_swap_b32 v{Q}, v{Q+1}", "s_nop 0", f"v_add_f32 v{S}, v{S}, v{S+1}", f"v_add_f32 v{Q}, v{Q}, v{Q+1}",
                 "s_cmp_lg_u32 s6, 0\ns_cbranch_scc1 G1_LS\nG1_LSC:"],
            18: [f"v_mul_f32 v{S}, 0x3acccccd, v{S}", f"v_mul_f32 v{Q}, 0x3acccccd, v{Q}", f"v_cvt_pk_bf16_f32 v{t+2}, 0, v{S}",
                 f"v_fma_f32 v{Q}, -v{S}, v{S}, v{Q}", f"v_max_f32 v{Q}, 0, v{Q}",
                 f"v_cvt_pk_bf16_f32 v{Q}, 0, v{Q}", f"v_add_f32 v{Q}, 0x3727c5ac, v{Q}", f"v_cvt_pk_bf16_f32 v{Q}, 0, v{Q}",
                 f"v_sqrt_f32 v{Q}, v{Q}", f"v_cvt_pk_bf16_f32 v{Q}, 0, v{Q}", f"v_rcp_f32 v{t}, v{Q}", f"v_mul_f32 v{t+3}, v{Q}, v{Q}",
                 f"v_mul_f32 v{t+1}, v{t}, v{t}", f"v_mul_f32 v{t+1}, v{t+1}, v{t}", f"v_mul_f32 v{t}, {fh(K1)}, v{t}"],
            16: [("w", "pl")] + pl_check() + ["s_cbranch_vccnz G1_Q\nG1_QC:"]}
    for s in range(20):
        p = s & 1
        mf = []
        for i, tt in ([(i, tt) for tt in (2, 0, 1) for i in range(8)] if s == 19 else [(i, tt) for i in range(8) for tt in range(3)]):
            d = vr(ACC + 12 * i + 4 * tt, 4)
            mf.append(f"v_mfma_f32_16x16x32_bf16 {d}, {ar(12*s+4*tt,4)}, {vr(FB[p]+4*i,4)}, {d if s else 0}")
        fill = [[] for _ in range(24)]
        if P.get("cyc") and s in (0, 4, 8, 12, 16): a(f"s_memtime s[{78+2*(s//4)}:{79+2*(s//4)}]")
        a("s_waitcnt lgkmcnt(0)")
        if s == 2: a("s_bitcmp1_b32 s61, 0\ns_cbranch_scc0 G1_S2")
        if s < 3:
            for x in st_mf(FB[p], s == 0): a(x)
        if s == 2: a("G1_S2:")
        if s < 19:
            if s + 1 in bars: fill[0] += sync(s + 1)
            for i, x in enumerate(reads(s + 1)):
                if (s + 1) % 8 == 0 and i % 2 == 0: fill[i].append(f"v_add_u32 v{vB+i//2}, 0x10000, v{vB+i//2}")
                fill[i].append(x)
            for k, x in enumerate(vser.get(s, [])):
                if x != "s_nop 0": fill[1 + k].append(x)
            if issued < 20:
                d = h_dma(issued); issued += 1
                fill[17].append(d[0]); fill[18].append(("vm", d[2], issued - 1)); fill[20] += [("vm", d[3], issued - 1), d[4]]; fill[21] += d[5:]
            for k in (16, 19, 22, 23)[:P.get("w2sch", [0] + [3] * 18)[s]]: fill[k].append(("vm", w2f_load(nw2), -1)); nw2 += 1
            assert nw2 <= 3 * s
            if s < len(wd):
                for k in (22, 23, 21, 15, 13, 11)[:wd[s]]: fill[k].append("WD")
                for f in fill:
                    if "WD" in f: f[f.index("WD")] = ("vm", wdl.pop(0), -1)
            if s == 3: fill[23].append(("vm", f"buffer_store_dwordx4 {vr(t,4)}, v{vPw}, s[16:19], s25 offen sc1", -1))
            if s >= 4 and hclr: fill[23].append(("vm", hclr.pop(0), "clr"))
            if s == 11: fill[23].append(("vm", "buffer_load_dword v7, v8, s[64:67], 0 offen sc1", "fl"))
            if s in (sp, sp + 1):
                for k in range(2): fill[(21, 23)[k]].append(("vm", pl_loads()[2 * (s - sp) + k], "pl"))
            if s == 14: fill[17] += [("w", "fl"), f"v_cmp_ne_u32 vcc, {TAG}, v7\ns_cbranch_vccnz G1_P\nG1_PC:"]; assert not hclr
            if s in (15, 16):
                for i in (18, 20):
                    c = 2 * (s - 15) + (i == 20)
                    fill[i].append(("vm", f"buffer_load_dwordx4 {vr(CS+4*c,4)}, v{vWa}, s[16:19], s22 offen offset:{1024*min(c,2)} sc1", "cs"))
            rs = lambda k: ("vm", f"buffer_load_dwordx4 v6, s[8:11], s46 offen sc1 lds\ns_add_u32 s46, s46, {8*4096}", -1)
            if s == 17: fill[17].append(f"s_add_u32 m0, s47, {RES}"); fill[18].append(rs(0)); fill[20].append(f"s_add_u32 m0, s47, {RES+1024}"); fill[21].append(rs(1))
            if s == 18: fill[17].append(f"s_add_u32 m0, s47, {RES+2048}"); fill[18].append(rs(2)); fill[20].append(f"v_mul_f32 v{t+1}, {fh(K1*0.044715)}, v{t+1}")
            if s == 12 and P.get("force2"):
                fill[23].append(f"s_waitcnt vmcnt(0)\ns_barrier\ns_lshl_b32 s31, s60, 4\ns_add_u32 s31, s31, s61\ns_lshl_b32 s31, s31, 6\ns_add_u32 s31, s31, {F_2}\nv_mov_b32 v2, 0\nv_mov_b32 v3, s59\nbuffer_store_dword v3, v2, s[64:67], s31 offen sc1")
        else:
            c = [ACC + 12 * i + 8 for i in range(8)]
            for i in range(1, 4): fill[i - 1] += [f"v_xor_b32 v{vB+i}, {512*i}, v{vPr}", f"v_xor_b32 v{vB+4+i}, {512*i}, v{vPp}"]
            for k in range(3): fill[3 + k].append(("vm", w2f_load(nw2 + k), -1))
            fill[6] += [("w", "cs"), f"v_fma_f32 v2, v{c[0]}, v{c[1]}, v{c[2]}"]; fill[9].append(f"v_fma_f32 v2, v{c[3]}, v{c[4]}, v2")
            fill[10].append(f"v_fma_f32 v2, v{c[5]}, v{c[6]}, v2"); fill[11] += [f"v_add_f32 v2, v{c[7]}, v2", f"v_fma_f32 v{t+2}, v2, 0, v{t+2}"]
            fill[12].append(f"ds_write_b128 v{vPw}, {vr(t,4)}"); fill[14] += ["s_waitcnt lgkmcnt(0)", "s_barrier"]
            rd = []
            for pp in range(4):
                r = vPr if pp == 0 else vB + pp; r2 = vPp if pp == 0 else vB + 4 + pp
                rd += [f"ds_read_b128 {vr(PR+8*pp,4)}, v{r}", f"ds_read_b128 {vr(PR+8*pp+4,4)}, v{r} offset:256", f"ds_read_b128 {vr(PR2+4*pp,4)}, v{r2}"]
            for k in range(6): fill[15 + k] += rd[2*k:2*k+2]
            sw = [f"v_permlane32_swap_b32 v{CS+8+i}, v{CS+12+i}" for i in range(4)] + [f"v_permlane32_swap_b32 v{ACC+24*pp+8+i}, v{ACC+24*pp+20+i}" for pp in range(4) for i in range(4)]
            for k in (7, 8, 9, 10, 13, 21, 22, 23): fill[k].append(sw.pop(0))
        for x in interleave(mf, fill): emit(x)
    if P.get("cyc"): a("s_memtime s[88:89]")
    st(11)
    for x in sw[:4]: a(x)
    for k in range(nw2 + 3, 60): a(w2f_load(k))
    for x in sw[4:]: a(x)
def g1_slow(a):
    a("G1_P:"); diag(a, 3)
    poll(a, 8, 7)
    a("s_branch G1_PC\nG1_Q:"); diag(a, 4)
    a("s_movk_i32 s58, 0x7fff\nG1_QL:")
    for x in pl_loads(): a(x)
    a("s_waitcnt vmcnt(0)")
    for x in pl_check(): a(x)
    a("s_cbranch_vccz G1_QC\ns_sub_u32 s58, s58, 1\ns_cbranch_scc0 G1_QL\ns_branch G1_QC")
    a(f"G1_LS:\ns_waitcnt vmcnt(0)\ns_barrier\nv_and_b32 v2, 0xffff, v{vB}\nv_and_b32 v3, 0xffff, v{vB+1}\ns_movk_i32 s58, 19")
    for i in range(16): a(f"v_mov_b32 v{SUM+i}, 0")
    a("G1_LL:")
    for i in range(2):
        for h in range(2): a(f"ds_read_b64_tr_b16 {vr(PL+8+4*i+2*h,2)}, v{2+i} offset:{4096*h}")
    a("v_add_u32 v2, 8192, v2\nv_add_u32 v3, 8192, v3\ns_waitcnt lgkmcnt(0)")
    for x in st_mf(PL + 8, False): a(x)
    a("s_nop 7\ns_sub_u32 s58, s58, 1\ns_cbranch_scc0 G1_LL\ns_nop 7")
    for x in st_extract(PL, PL + 2): a(x.replace("s_nop 0", "s_nop 1"))
    a("s_barrier\ns_branch G1_LSC")
def g1_epi(a, st, P):
    E = TMP; O = TMP + 12; Z = TMP + 20
    m = [PR + 4 * i + 2 for i in range(8)]
    a(f"s_waitcnt lgkmcnt(0)\nv_fma_f32 v2, v{m[0]}, v{m[1]}, v{m[2]}\nv_fma_f32 v3, v{m[3]}, v{m[4]}, v{m[5]}\nv_fma_f32 v2, v{m[6]}, v{m[7]}, v2\nv_cmp_u_f32 vcc, v2, v3\ns_cbranch_vccnz G1_REDO\nG1_CONT:")
    def grp(items):
        def each(f):
            for k, it in enumerate(items):
                for j in (0, 2): f(it, E + 4 * k, j)
        each(lambda it, e, j: a(f"v_pk_fma_f32 {vr(it[0]+j,2)}, {vr(it[4]+2,2)}, {vr(it[2]+j,2)}, {vr(it[0]+j,2)} op_sel_hi:[0,1,1] neg_lo:[1,0,0] neg_hi:[1,0,0]"))
        each(lambda it, e, j: a(f"v_pk_mul_f32 {vr(e+j,2)}, {vr(it[0]+j,2)}, {vr(it[0]+j,2)}"))
        each(lambda it, e, j: a(f"v_pk_fma_f32 {vr(e+j,2)}, {vr(e+j,2)}, {vr(it[4],2)}, {vr(it[4],2)} op_sel:[0,1,0] op_sel_hi:[1,1,0]"))
        each(lambda it, e, j: a(f"v_pk_mul_f32 {vr(e+j,2)}, {vr(e+j,2)}, {vr(it[0]+j,2)}"))
        each(lambda it, e, j: a(f"v_exp_f32 v{e+j}, v{e+j}\nv_exp_f32 v{e+j+1}, v{e+j+1}\nv_pk_fma_f32 {vr(it[1]+j,2)}, {vr(it[4]+2,2)}, {vr(it[3]+j,2)}, {vr(it[1]+j,2)} op_sel_hi:[0,1,1] neg_lo:[1,0,0] neg_hi:[1,0,0]"))
        each(lambda it, e, j: a(f"v_pk_fma_f32 {vr(e+j,2)}, {vr(e+j,2)}, {vr(it[4]+2,2)}, {vr(it[4]+2,2)} op_sel:[0,1,1] op_sel_hi:[1,1,1]"))
        each(lambda it, e, j: a(f"v_rcp_f32 v{e+j}, v{e+j}\nv_rcp_f32 v{e+j+1}, v{e+j+1}\nv_pk_mul_f32 {vr(it[0]+j,2)}, {vr(it[0]+j,2)}, {vr(it[1]+j,2)}"))
        each(lambda it, e, j: a(f"v_pk_mul_f32 {vr(it[0]+j,2)}, {vr(it[0]+j,2)}, {vr(e+j,2)}"))
        each(lambda it, e, j: a(f"v_cvt_pk_bf16_f32 v{it[5]+j//2}, v{it[0]+j}, v{it[0]+j+1}"))
    for p in range(4):
        c = ACC + 24 * p; o = O + 4 * (p & 1); z = Z + 4 * (p >> 1)
        grp([(c, c + 4, CS, CS + 4, PR + 8 * p, o), (c + 12, c + 16, CS, CS + 4, PR + 8 * p + 4, o + 2), (c + 8, c + 20, CS + 8, CS + 12, PR2 + 4 * p, z + 2 * (p & 1))])
        a(f"v_permlane32_swap_b32 v{o}, v{o+2}\nv_permlane32_swap_b32 v{o+1}, v{o+3}")
        if p & 1: a(f"v_permlane16_swap_b32 v{z}, v{z+2}\nv_permlane16_swap_b32 v{z+1}, v{z+3}")
        a(f"buffer_store_dwordx4 {vr(o,4)}, v{vO1}, s[16:19], s{32+p} offen sc1")
        if p & 1: a(f"buffer_store_dwordx4 {vr(z,4)}, v{vO2}, s[16:19], s{36+(p>>1)} offen sc1")

def gen_g2(a, st, P):
    vHo = [6, 7, 8]; vWr = [9, 10, 11]; vRd, vTr, vTr4, vO, vO4, vR, vF2 = 12, 13, 14, 15, 16, 17, 18
    AC = [24, 44]; HB = 64
    vB16 = 19
    st(1)
    a(f"s_load_dwordx2 s[6:7], s[0:1], {KA['out']}")
    a(f"s_lshl_b32 s39, s60, 4\ns_add_u32 s39, s39, s61\ns_lshl_b32 s39, s39, {P.get('fs2', 6)}\ns_add_u32 s39, s39, {F_2}")
    rep = P.get("rep", 0)
    if rep:
        a(f"s_lshl_b32 s39, s60, {rep+4}\ns_lshl_b32 s38, s61, {rep-4}\ns_add_u32 s39, s39, s38\ns_add_u32 s39, s39, {F_2}\nv_lshlrev_b32 v20, {rep}, v{vL}\nv_mov_b32 v21, {TAG}")
    def pub():
        a("s_barrier\ns_cmp_lg_u32 s28, 0\ns_cbranch_scc1 G_NF")
        if rep: a("s_mov_b64 exec, 0xffff\nbuffer_store_dword v21, v20, s[64:67], s39 offen sc1\ns_mov_b64 exec, -1")
        else: setflag(a, "s39")
        a("G_NF:")
    if not P.get("late2"): pub()
    a("s_add_u32 s44, s28, s63\ns_and_b32 s44, s44, 3")
    if P.get("norot3"): a("s_mov_b32 s44, s28")
    a(f"v_lshlrev_b32 v{vB16}, 4, v{vL}")
    a(f"s_lshr_b32 s31, s62, 1\ns_lshl_b32 s31, s31, 2\ns_add_u32 s31, s31, s28\ns_lshl_b32 s31, s31, {P.get('fs2', 6)+2}\ns_add_u32 s31, s31, {F_2}\nv_and_b32 v{vT2}, 3, v{vL}\nv_lshl_add_u32 v{vF2}, v{vT2}, {P.get('fs2', 6)}, s31")
    if rep: a(f"s_lshl_b32 s31, s62, 3\ns_add_u32 s31, s31, s63\ns_lshl_b32 s31, s31, 2\ns_add_u32 s31, s31, s28\ns_lshl_b32 s31, s31, {rep-2}\ns_add_u32 s31, s31, {F_2}\nv_lshl_add_u32 v{vF2}, v{vT2}, {rep-4}, s31")
    for g in range(3):
        a(f"s_add_u32 s37, s55, {g}\ns_sub_u32 s38, s37, 3\ns_cselect_b32 s37, s37, s38\ns_lshl_b32 s37, s37, 12\nv_add_u32 v{vHo[g]}, s37, v{vB16}")
    a("s_lshl_b32 s35, s62, 2\ns_mul_i32 s36, s28, 12288")
    for j in range(4):
        a(f"s_add_u32 s37, s44, {j+1}\ns_and_b32 s37, s37, 3\ns_add_u32 s38, s37, s35\ns_mul_i32 s38, s38, 49152\ns_add_u32 s{40+j}, s38, s36")
        if j < 3: a(f"s_mul_i32 s37, s37, 15360\ns_add_u32 s37, s37, {RED+j*5120}\nv_add_u32 v{vWr[j]}, s37, v{vB16}")
    a(f"s_mul_i32 s37, s44, 15360\ns_add_u32 s37, s37, {RED}\nv_add_u32 v{vRd}, s37, v{vB16}")
    a(f"v_lshrrev_b32 v{vT0}, 4, v{vL}\nv_bfe_u32 v{vT1}, v{vL}, 2, 2\nv_lshlrev_b32 v{vO}, 3, v{vT2}\nv_lshl_add_u32 v{vO}, v{vT1}, 7, v{vO}\ns_lshl_b32 s37, s44, 5\ns_add_u32 s37, s37, {RES}\nv_add_u32 v{vO}, s37, v{vO}")
    a(f"v_lshl_add_u32 v{vTr}, v{vT0}, 10, v{vO}\nv_lshl_add_u32 v{vTr4}, v{vT0}, 9, v{vO}")
    a(f"v_and_b32 v{vO}, 1, v{vT1}\nv_lshlrev_b32 v{vO}, 8, v{vO}\nv_lshl_add_u32 v{vO}, v{vT2}, 1, v{vO}\nv_lshrrev_b32 v{vT1}, 1, v{vT1}\nv_add_u32 v{vO}, v{vO}, v{vT1}\nv_mul_u32_u24 v{vT1}, 1280, v{vO}")
    a(f"v_lshl_add_u32 v{vO}, v{vT0}, 4, v{vT1}\nv_lshl_add_u32 v{vO4}, v{vT0}, 3, v{vT1}")
    a("s_lshr_b32 s37, s62, 3\ns_lshl_b32 s37, s37, 9\ns_and_b32 s38, s62, 1\ns_lshl_b32 s38, s38, 2\ns_add_u32 s38, s38, s44\ns_lshl_b32 s38, s38, 5\ns_add_u32 s37, s37, s38")
    a("s_bfe_u32 s38, s62, 0x20001\ns_lshl_b32 s38, s38, 3\ns_add_u32 s37, s37, s38\ns_mul_i32 s37, s37, 1280\ns_mul_i32 s38, s63, 160\ns_add_u32 s45, s37, s38")
    a("s_waitcnt lgkmcnt(0)")
    a.srd(20, 6, 0, 2048 * 1280)
    st(2)
    if P.get("late2"): a("s_waitcnt vmcnt(0)"); pub()
    st(3)
    if P.get("w0"): a("s_waitcnt vmcnt(0)\ns_barrier")
    poll(a, vF2, vT3)
    st(4)
    if not P.get("nobar2"): a("s_barrier")
    hl = [f"buffer_load_dwordx4 {vr(HB+48*j+4*s,4)}, v{vHo[s>>2]}, s[16:19], s{40+j} offen offset:{1024*(s&3)} sc1" for j in range(4) for s in range(12)]
    pre2 = P.get("pre2", 16); niss = pre2
    for x in hl[:pre2]: a(x)
    if not P.get("late2"):
        a(f"v_add_u32 v{vF2}, {F_2L-F_2}, v{vF2}\ns_cmp_lg_u32 s28, 0\ns_cbranch_scc1 G_NL\ns_add_u32 s39, s39, {F_2L-F_2}")
        setflag(a, "s39")
        a("G_NL:")
    chk = lambda j: "" if P.get("late2") else f"v_cmp_u_f32 vcc, v{AC[j&1]}, v{AC[j&1]}\ns_cbranch_vccnz G2_R{j}\nG2_C{j}:"
    st(5)
    X = HB; Hh = HB + 60; HU = HB + 72
    for j in range(4):
        c = AC[j & 1]
        fill = [[] for _ in range(60)]
        if j:
            fill[2].append(chk(j - 1))
            for dt in range(5): fill[4 + 2 * dt].append(f"ds_write_b128 v{vWr[j-1]}, {vr(AC[(j-1)&1]+4*dt,4)} offset:{1024*dt}")
        if j == 3:
            fill[16] += ["s_waitcnt lgkmcnt(0)", "s_barrier"]
            rd = []
            for dt in range(5):
                rd.append(f"ds_read_b64_tr_b16 {vr(Hh+2*dt,2)}, v{vTr} offset:{(32*(dt>>1)+4*(dt&1))*128}" if dt < 4 else f"ds_read_b64_tr_b16 {vr(Hh+2*dt,2)}, v{vTr4} offset:{64*128}")
                for k in range(3): rd.append(f"ds_read_b128 {vr(X+12*dt+4*k,4)}, v{vRd} offset:{5120*k+1024*dt}")
            for i in range(10): fill[16 + i] += rd[2*i:2*i+2]
            vs = []
            for dt in range(5):
                x = X + 12 * dt; u = HU + 4 * dt
                o = []
                for h in range(2): o += [f"v_lshlrev_b32 v{u+2*h}, 16, v{Hh+2*dt+h}", f"v_and_b32 v{u+2*h+1}, 0xffff0000, v{Hh+2*dt+h}"]
                for k in range(4): o.append(f"v_add_f32 v{x+k}, v{x+k}, v{x+4+k}")
                for k in range(4): o.append(f"v_add_f32 v{u+k}, v{u+k}, v{x+8+k}")
                for k in range(4): o.append(f"v_add_f32 v{u+k}, v{u+k}, v{x+k}")
                o[0] = f"s_waitcnt lgkmcnt({min(12, 16-4*dt)})\n" + o[0]
                vs += o
            for i in range(26, 60):
                for _ in range(2):
                    if vs: fill[i].append(vs.pop(0))
        mf = []
        for s in range(12):
            for dt in range(5):
                d = vr(c + 4 * dt, 4)
                if dt == 1 + P.get("hp", 0) and niss < 48: fill[5 * s + dt - 1].append(hl[niss]); niss += 1
                mf.append((f"s_waitcnt vmcnt({niss-1-12*j-s})\n" if dt == 0 else "") + f"v_mfma_f32_16x16x32_bf16 {d}, {ar(20*s+4*dt,4)}, {vr(HB+48*j+4*s,4)}, {d if s else 0}")
        for k, x in enumerate(interleave(mf, fill)):
            a(x)
            if j == 0 and k == 0: st(6)
    for x in vs: a(x)
    a(chk(3))
    st(7)
    O = X
    for dt in range(5):
        c = AC[1] + 4 * dt; u = HU + 4 * dt
        for h in range(2): a(f"v_pk_add_f32 {vr(u+2*h,2)}, {vr(u+2*h,2)}, {vr(c+2*h,2)}")
        for h in range(2): a(f"v_cvt_pk_bf16_f32 v{O+2*dt+h}, v{u+2*h}, v{u+2*h+1}")
        if dt in (1, 3): a(f"buffer_store_dwordx4 {vr(O+2*dt-2,4)}, v{vO}, s[20:23], s45 offen offset:{64*(dt>>1)}{P.get('osc', '')}")
        if dt == 4: a(f"buffer_store_dwordx2 {vr(O+8,2)}, v{vO4}, s[20:23], s45 offen offset:128{P.get('osc', '')}")
    def slow():
        def cnt(k):
            if P.get("cnt"): a(f"s_load_dwordx2 s[56:57], s[0:1], {KA['dbg']}\nv_mov_b32 v2, 0\nv_mov_b32 v3, 1\ns_waitcnt lgkmcnt(0)\ns_mov_b64 exec, 1\nglobal_atomic_add v2, v3, s[56:57] offset:{4*k}\ns_mov_b64 exec, -1")
        a(f"G1_REDO:\ns_cmp_lg_u32 s6, 0\ns_cbranch_scc1 G1_CONT\ns_mov_b32 s6, {F_1L-F_1}")
        cnt(0); diag(a, 1)
        a("s_waitcnt vmcnt(0)\ns_barrier")
        w1f_setup(a, 22)
        a("s_branch P_WALL")
        g1_slow(a)
        for j in range(0 if P.get("late2") else 4):
            a(f"G2_R{j}:")
            cnt(1 + j)
            poll(a, vF2, vT3)
            for x in hl[12*j:12*j+12]: a(x)
            a("s_waitcnt vmcnt(0)")
            for s in range(12):
                for dt in range(5):
                    d = vr(AC[j & 1] + 4 * dt, 4)
                    a(f"v_mfma_f32_16x16x32_bf16 {d}, {ar(20*s+4*dt,4)}, {vr(HB+48*j+4*s,4)}, {d if s else 0}")
            a(f"s_nop 7\ns_branch G2_C{j}")
    return slow

def gen_pk(name, stamp=0, P={}):
    P = {**DEF, **P}
    if "wsch" in P: P["nin"] = sum(P["wsch"]) // 3
    a = Asm(); MT[0] = P.get("mt", 0); DG[0] = P.get("dg", 0); FS[0] = P.get("fs", 6); PSC[0] = P.get("psc", "sc1"); assert P.get("late2")
    sA = St(a, stamp == 1); sB = St(a, stamp == 2); sC = St(a, stamp > 0)
    a.l.append(kernel_head(name))
    a("s_cmp_ge_u32 s2, 256\ns_cbranch_scc1 P_END")
    sC(0)
    a(f"s_getpc_b64 s[68:69]\nP_PC:\ns_sub_u32 s68, s68, P_PC-{name}\ns_subb_u32 s69, s69, 0\ns_mov_b32 s70, P_END-{name}\ns_mov_b32 s71, 0x20000")
    a("s_lshr_b32 s31, s2, 3\ns_lshl_b32 s31, s31, 11\nv_lshlrev_b32 v2, 3, v0\nbuffer_load_dword v251, v2, s[68:71], s31 offen")
    a(f"s_load_dwordx16 s[8:23], s[0:1], 0\ns_load_dwordx2 s[4:5], s[0:1], {KA['ws']}\ns_load_dwordx4 s[40:43], s[0:1], {KA['wg']}")
    a("v_lshrrev_b32 v2, 6, v0\nv_and_b32 v1, 63, v0\ns_and_b32 s30, s2, 7\nv_readfirstlane_b32 s28, v2\ns_lshr_b32 s31, s2, 3")
    k1 = P.get("k1", 2); k2 = P.get("k2", 3)
    def mp(dlo, dhi, k, nlo):
        b = 3 - (nlo - k)
        a(f"s_lshr_b32 s32, s30, {b}\ns_lshl_b32 s32, s32, {k}\ns_and_b32 s33, s31, {(1<<k)-1}\ns_add_u32 s{dlo}, s32, s33")
        a(f"s_and_b32 s32, s30, {(1<<b)-1}\ns_lshl_b32 s32, s32, {5-k}\ns_lshr_b32 s33, s31, {k}\ns_add_u32 s{dhi}, s32, s33")
    mp(61, 60, k1, 4); mp(63, 62, k2, 3)
    a(f"s_lshl_b32 s32, s61, {1 if k1 <= 2 else 0}\ns_lshl_b32 s33, s60, {0 if k1 <= 2 else 1}\ns_add_u32 s32, s32, s33\ns_and_b32 s32, s32, 7\ns_mul_i32 s32, s32, 5\ns_lshr_b32 s3, s32, 1")
    if P.get("rotnb"): a("s_and_b32 s32, s61, 7\ns_mul_i32 s32, s32, 5\ns_lshr_b32 s3, s32, 1")
    a("s_mov_b32 s6, 0\ns_cmp_ge_u32 s2, 160\ns_cbranch_scc1 P_HELP")
    a("s_mul_i32 s29, s30, 20\ns_add_u32 s29, s29, s31")
    gen_conv(a, sA, P, St(a, stamp == 3))
    a("P_HELP:\ns_sub_u32 s29, s2, 160")
    gen_help(a, sA, St(a, stamp == 3), P)
    gen_mid1(a, sC, P)
    g1_main(a, sC, P)
    g1_epi(a, sC, P)
    slow = gen_g2(a, sB, P)
    if "spin" in P:
        i, j, wg = P["spin"]
        a(f"s_waitcnt vmcnt(0) lgkmcnt(0)\ns_memrealtime s[100:101]\ns_cmp_lg_u32 s2, {wg}\ns_cbranch_scc1 P_END\ns_waitcnt lgkmcnt(0)")
        a(f"s_sub_u32 s30, s{76+2*j}, s{76+2*i}\ns_lshl_b32 s30, s30, 2\ns_min_u32 s30, s30, 30000\nP_SPIN:\ns_memrealtime s[32:33]\ns_waitcnt lgkmcnt(0)\ns_sub_u32 s32, s32, s100\ns_cmp_lt_u32 s32, s30\ns_cbranch_scc1 P_SPIN")
    else: sC.flush()
    a("P_END:\ns_endpgm")
    slow()
    a("s_endpgm")
    return a.text(), kernel_desc(name, 256, sgpr=102 if stamp else 80, agpr=256), f"; @launch grid=(256,1,1) block=(256,1,1) lds=163840"
DEF = dict(ro=3, w2c=1, f2=1, hpw=2, f1=2, fw=1, wl=1, nt=2, ppm=0x249, chk=[(1,25,2,33,3),(2,30,3,33,4)], r1=(8,7), rep=9, csx=2, kf=2, sco=1, mw=5, k1=3, rw=3, wsch=[0,0,0,9,12,12,12,3], rotnb=1, gpos=[3,3,4,5,6,7,8,9], stj=40, pre2=12, nobar2=1, fs2=7, nobar1=1, up=8, dbl=0, w2s=1, nopf2=1, late2=1, pp=1, npp=4, fs=7, lim=4, w2sch=[0,2,2,2,2,2,2,2,3,3,3,3,3,4,4,4,4,4,4])
KN = "sequential_preLN__ssm_conv_s4d__geglu_ffn__prompt"
NOPAD = 0
if __name__ == "__main__":
    from build import assemble as asm0, add_pads
    assemble = lambda parts: add_pads(asm0(parts), KN + "_kernel", NOPAD)
    import sys
    for s in (0, 1, 2, 3): open(f"pk_s{s}.s", "w").write(assemble([gen_pk(KN + "_kernel", s)]))
    V = eval(open('V.txt').read())
    for n, pp in V.items():
        NOPAD = pp.get("nopad", 0)
        for s in (0, 1, 2, 3, 4): open(f"pk_{n}_{s}.s", "w").write(assemble([gen_pk(KN + "_kernel", s, pp)]))
    if len(sys.argv) > 1:
        for k, (i, j, wg) in enumerate(eval(sys.argv[1])):
            open(f"pk_spin{k}.s", "w").write(assemble([gen_pk(KN + "_kernel", int(sys.argv[2]), dict(spin=(i, j, wg)))]))
```

```python
from lib import *
import struct, math
fh = lambda x: hex(struct.unpack("<I", struct.pack("<f", x))[0])
FL_OFF = 0x1B00000
F_ST, F_W, F_1, F_2, F_2L, F_1L, F_C = 0x1000, 0x8000, 0x10000, 0x20000, 0x20000, 0x19000, 0x1F000
F_1R = 0xA0000
FS = [6]; PSC = ['sc1']
CSO = 128 * 49152
PSO = CSO + 64 * 3072
vN = 252
RW = 21792; K1O = 4640; UO = 9248; UBO = 4224; XO = 17696
WST = 87296
NOWN = 6
vL = 1; vT0, vT1, vT2, vT3 = 2, 3, 4, 5
vWd = [6, 7, 8]; vWa, vWb = 9, 10
LOG2E = 1.4426950408889634
TAG = "s59"

MT = [0]
class St:
    def __init__(s, a, on): s.a, s.on = a, on
    def __call__(s, i):
        if s.on: s.a(f"{'s_memtime' if MT[0] else 's_memrealtime'} s[{76+2*i}:{77+2*i}]")
    def flush(s):
        if not s.on: return
        a = s.a
        a("s_waitcnt vmcnt(0) lgkmcnt(0)"); s(12)
        a.srd(8, 4, ST_OFF, 256 * 256)
        a("s_lshl_b32 s12, s2, 2\ns_add_u32 s12, s12, s28\ns_lshl_b32 s12, s12, 6\ns_waitcnt lgkmcnt(0)\nv_mov_b32 v2, s12")
        for i in range(13): a(f"v_mov_b32 v3, s{76+2*i}\nbuffer_store_dword v3, v2, s[8:11], 0 offen offset:{4*i}")

def poll(a, va, vd, pre=None, one=False):
    L = a.label("PL"); D = a.label("PD")
    if one: a(one)
    if pre is not None:
        a(f"s_waitcnt vmcnt({pre})\nv_cmp_ne_u32 vcc, {TAG}, v{vd}\ns_cbranch_vccz {D}\ns_mov_b64 exec, vcc")
    a(f"s_movk_i32 s58, 0x7fff\n{L}:")
    a(f"buffer_load_dword v{vd}, v{va}, s[64:67], 0 offen {PSC[0]}\ns_waitcnt vmcnt(0)\nv_cmp_ne_u32 vcc, {TAG}, v{vd}\ns_cbranch_vccz {D}")
    a(f"s_mov_b64 exec, vcc\ns_sub_u32 s58, s58, 1\ns_cbranch_scc0 {L}\n{D}:\ns_mov_b64 exec, -1")
def poll2(a, va, vd, lim):
    L = a.label("PL"); D = a.label("PD")
    a(f"s_movk_i32 s58, 0x7fff\ns_mov_b64 s[44:45], -1\ns_mul_i32 s31, s2, 5\ns_lshr_b32 s31, s31, 5\ns_lshl_b64 s[42:43], -1, s31\n{L}:")
    a(f"buffer_load_dword v{vd}, v{va}, s[64:67], 0 offen sc1\ns_andn2_b64 s[44:45], s[44:45], exec\ns_waitcnt vmcnt(0)\nv_cmp_ne_u32 vcc, {TAG}, v{vd}")
    a(f"s_or_b64 s[44:45], s[44:45], vcc\ns_cbranch_scc0 {D}\ns_and_b64 s[40:41], vcc, s[42:43]\ns_cselect_b64 s[40:41], s[40:41], vcc\ns_ff1_i32_b64 s31, s[40:41]\ns_lshl_b64 s[40:41], 1, s31")
    a(f"s_bcnt1_i32_b64 s31, vcc\ns_cselect_b64 exec, vcc, s[44:45]\ns_cmp_gt_u32 s31, {lim}\ns_cselect_b64 exec, s[40:41], exec")
    a(f"s_sub_u32 s58, s58, 1\ns_cbranch_scc0 {L}\n{D}:\ns_mov_b64 exec, -1")
DG = [0]
def diag(a, k):
    if DG[0] == k:
        for _ in range(12): a("s_sleep 127")
def touch(a, n):
    a("s_mov_b64 exec, 0")
    for w in range(4): a(f"s_cmp_eq_u32 s28, {w}\ns_cbranch_scc1 PAD_{n}{w}")
    a(f"RET_{n}:\ns_mov_b64 exec, -1")
def setflag(a, soff):
    a(f"v_mov_b32 v{vT0}, 0\nv_mov_b32 v{vT1}, {TAG}\ns_mov_b64 exec, 1\nbuffer_store_dword v{vT1}, v{vT0}, s[64:67], {soff} offen sc1\ns_mov_b64 exec, -1")

def setflag64(a, soff):
    a(f"v_lshlrev_b32 v{vT0}, 4, v{vL}")
    for i in range(4): a(f"v_mov_b32 v{244+i}, {TAG}")
    a(f"s_mov_b64 exec, 15\nbuffer_store_dwordx4 v[244:247], v{vT0}, s[64:67], {soff} offen sc1\ns_mov_b64 exec, -1")
def cmul(d, x, w):
    return [f"v_pk_mul_f32 {vr(d,2)}, {vr(x,2)}, {vr(w,2)} op_sel_hi:[1,0]",
            f"v_pk_fma_f32 {vr(d,2)}, {vr(x,2)}, {vr(w,2)}, {vr(d,2)} op_sel:[1,1,0] op_sel_hi:[0,1,1] neg_lo:[1,0,0]"]

def w1_voff(a):
    for i in range(3):
        if i: a(f"v_add_u32 v{vT0}, {64*i}, v{vL}")
        s = vT0 if i else vL
        a(f"v_mul_u32_u24 v{vT1}, 5462, v{s}\nv_lshrrev_b32 v{vT1}, 16, v{vT1}\nv_mul_u32_u24 v{vT1}, {3072-192}, v{vT1}")
        a(f"v_lshl_add_u32 v{vWd[i]}, v{vL}, 4, v{vT1}")
def w1f_setup(a, vF):
    a.srd(12, 4, W1_OFF, 16 * 245760)
    a("s_mul_i32 s57, s61, 245760\ns_mul_i32 s31, s28, 3072\ns_add_u32 s57, s57, s31\ns_add_u32 s56, s57, 245760\ns_mul_i32 s39, s3, 12288\ns_add_u32 s39, s39, s57")
    a(f"v_min_u32 v{vF}, 19, v{vL}\nv_add_u32 v{vF}, s3, v{vF}\nv_subrev_u32 v{vWa}, 20, v{vF}\nv_min_u32 v{vF}, v{vF}, v{vWa}\nv_lshlrev_b32 v{vF}, 10, v{vF}\ns_lshl_b32 s31, s61, 6\ns_add_u32 s31, s31, {F_W}\nv_add_u32 v{vF}, s31, v{vF}\nv_lshlrev_b32 v{vWa}, 4, v{vL}")
def w1f_loads(c0, c1):
    o = []
    for c in range(c0, c1):
        for t in range(3):
            o.append(f"buffer_load_dwordx4 {ar(12*c+4*t,4)}, v{vWa}, s[12:15], s39 offen offset:{1024*t} sc1" +
                     ("\ns_add_u32 s39, s39, 12288\ns_cmp_eq_u32 s39, s56\ns_cselect_b32 s39, s57, s39" if t == 2 else ""))
    return o
def w1_addr(a, sbase):
    a(f"v_lshrrev_b32 v{vT0}, 2, v{vL}\nv_mul_u32_u24 v{vT0}, 192, v{vT0}\nv_add_u32 v{vT0}, {sbase}, v{vT0}")
    a(f"v_and_b32 v{vT1}, 3, v{vL}\nv_lshl_add_u32 v{vWa}, v{vT1}, 3, v{vT0}")
    a(f"v_bfe_u32 v{vT1}, v{vL}, 1, 1\nv_mul_u32_u24 v{vT1}, {6144-16}, v{vT1}\nv_add3_u32 v{vWb}, v{vWa}, v{vT1}, 32")
def w1_frag(dst, off):
    return [f"ds_read_b64_tr_b16 {dst(4*t+2*h)}, v{vWb if t == 2 else vWa} offset:{off+3072*h+(6144 if t == 1 else 0)}" for t in range(3) for h in range(2)]
def gen_conv(a, st, P0, sk):
    vA, vB, vK8, vK16, vK32, vKp, vUa, vKa, vXr, vTh, vSt, vFw, vD = 11, 12, 13, 14, 15, 16, 17, 18, 19, 20, 21, 22, 23
    XR, ST, ACC, FA, FB = 24, 40, 56, 72, 104
    W1, W8, W256, E, P, PK, PAR, vDt = 136, 138, 140, [142, 144], 146, 194, 210, 222
    a("s_lshl_b32 s30, s29, 2\ns_add_u32 s30, s30, s28")
    for i in range(12): a(f"v_mov_b32 v{PAR+i}, 0")
    a(f"v_lshlrev_b32 v{vT0}, 1, v{vL}\ns_mul_i32 s31, s30, 384\ns_and_b32 s32, s30, 0xfffffffe\ns_lshl_b32 s32, s32, 1")
    vG = 6
    a(f"v_mul_u32_u24 v{vG}, 10240, v0")
    a("s_waitcnt lgkmcnt(0)")
    a(f"s_add_u32 s64, s4, {FL_OFF}\ns_addc_u32 s65, s5, 0\ns_load_dword s59, s[64:65], 0\ns_load_dword s34, s[18:19], s32\ns_load_dword s35, s[20:21], s32")
    for k in range(P0.get("spf", 0)): a(f"s_load_dword s72, s[68:69], {4096*(k+1)-0x300}")
    a.srd(24, 8, 0, 2048 * 1280)
    for i in range(4): a.srd(36 if i == 0 else 40 + 4 * i, 10 + 2 * i, 0, 640 * 384)
    PS = [36, 44, 48, 52]
    for p in range(3):
        for i in range(4):
            a(f"buffer_load_short_d16_hi v{PAR+4*p+i}, v{vT0}, s[{PS[i]}:{PS[i]+3}], s31 offen offset:{128*p}{' nt' if P0.get('nt', 0) >= 3 else ''}")
    a(f"s_lshr_b32 s31, s2, 3\ns_lshl_b32 s31, s31, 2\ns_add_u32 s31, s31, s28\ns_mul_i32 s31, s31, 26\nv_lshrrev_b32 v{vT0}, 1, v{vL}\nv_min_u32 v{vT0}, 25, v{vT0}\nv_add_u32 v{vT0}, s31, v{vT0}\nv_min_u32 v{vT0}, 2047, v{vT0}")
    a(f"v_mul_u32_u24 v{vT0}, 1280, v{vT0}\nv_and_b32 v{vT1}, 1, v{vL}\nv_mul_u32_u24 v{vT1}, 156, v{vT1}\nv_add_u32 v{vT0}, v{vT0}, v{vT1}\ns_and_b32 s31, s2, 7\ns_mul_i32 s31, s31, 160")
    a(f"buffer_load_dword v250, v{vT0}, s[24:27], s31 offen")
    npf = P0.get("npf", 0)
    if npf:
        a.srd(68, 42, 0, 640 * 3072)
        a(f"v_min_u32 v{vT0}, 23, v{vL}\nv_mul_u32_u24 v{vT1}, 21846, v{vT0}\nv_lshrrev_b32 v{vT1}, 16, v{vT1}\nv_mul_u32_u24 v{vT1}, {3072-384}, v{vT1}\nv_lshl_add_u32 v{vT0}, v{vT0}, 7, v{vT1}")
        a(f"s_lshr_b32 s31, s2, 3\ns_lshl_b32 s31, s31, 2\ns_add_u32 s31, s31, s28\ns_mul_i32 s31, s31, {8*3072}\ns_and_b32 s33, s2, 7\ns_mul_i32 s33, s33, 384\ns_add_u32 s31, s31, s33")
        a(f"buffer_load_dword v249, v{vT0}, s[68:71], s31 offen")
        if npf > 1:
            a.srd(72, 40, 0, 640 * 3072)
            a(f"buffer_load_dword v248, v{vT0}, s[72:75], s31 offen")
    gath = [("s_add_u32 s17, s17, 3840\n" if i in (3, 6) else "") + f"buffer_load_dwordx2 {vr(XR+2*i,2)}, v{vG}, s[24:27], s17 offen offset:{1280*(i%3)}" for i in range(8)]
    a("s_lshl_b32 s17, s29, 3")
    a(f"v_lshlrev_b32 v{vWa}, 4, v{vL}\ns_lshl_b32 s7, s30, 12")
    for i in range(4): a(f"v_mov_b32 v{vN+i}, -1")
    clr = [f"buffer_store_dwordx4 {vr(vN,4)}, v{vWa}, s[8:11], s7 offen offset:{1024*Q} sc1" for Q in range(4)]
    a(f"s_mov_b32 s66, 0x200000\ns_mov_b32 s67, 0x20000\ns_mul_i32 s32, s28, {RW}\ns_movk_i32 s33, 272")
    a.srd(8, 4, HT_OFF, 640 * 4096)
    a(f"v_and_b32 v{vT1}, 31, v{vL}\nv_lshrrev_b32 v{vT2}, 5, v{vL}")
    a(f"v_lshl_add_u32 v{vA}, v{vT2}, 4, s32\nv_mad_u32_u24 v{vB}, v{vT1}, s33, v{vA}")
    tab = {9: 1, 12: 1, 13: 2, 19: 1, 23: 1}
    lo = sum(tab.get(r, 0) << (2 * r) for r in range(16)); hi = sum(tab.get(r + 16, 0) << (2 * r) for r in range(16))
    a(f"s_mov_b32 s46, {hex(lo)}\ns_mov_b32 s47, {hex(hi)}\nv_lshlrev_b32 v{vT0}, 1, v{vT1}\nv_lshrrev_b64 {vr(P,2)}, v{vT0}, s[46:47]")
    a(f"v_and_b32 v{P}, 3, v{P}\nv_sub_u32 v{P}, v{vT1}, v{P}\nv_mad_u32_u24 v{vA}, v{P}, s33, v{vA}")
    a(f"s_add_u32 s33, s32, 512\nv_lshl_add_u32 v{vT0}, v{vT1}, 4, s33\nv_lshl_add_u32 v{vK16}, v{vT2}, 9, v{vT0}\nv_lshl_add_u32 v{vK32}, v{vT2}, 10, v{vT0}")
    a(f"v_mul_u32_u24 v{vT3}, 24, v{vT2}\nv_add3_u32 v{vKp}, v{vT0}, v{vT3}, 6\nv_lshlrev_b32 v{vT3}, 3, v{vT2}\nv_sub_u32 v{vK8}, v{vT0}, v{vT3}\nv_add_u32 v{vK8}, 8, v{vK8}")
    a(f"v_and_b32 v{vT0}, 15, v{vL}\nv_lshrrev_b32 v{vT1}, 4, v{vL}\nv_and_b32 v{vT2}, 1, v{vL}\nv_lshlrev_b32 v{vT1}, 4, v{vT1}")
    a(f"s_add_u32 s33, s32, {UO+UBO+8}\nv_lshl_add_u32 v{vUa}, v{vT0}, 2, s33\nv_mul_u32_u24 v{vT3}, {UBO+4}, v{vT2}\nv_sub_u32 v{vUa}, v{vUa}, v{vT3}\nv_add_u32 v{vUa}, v{vUa}, v{vT1}")
    a(f"v_lshrrev_b32 v{vT0}, 1, v{vT0}\nv_lshlrev_b32 v{vT0}, 6, v{vT0}")
    a(f"s_add_u32 s33, s32, {512+48-448}\nv_mul_u32_u24 v{vT3}, {K1O}, v{vT2}\nv_add3_u32 v{vKa}, v{vT0}, v{vT3}, s33\nv_sub_u32 v{vKa}, v{vKa}, v{vT1}")
    a(f"s_add_u32 s33, s32, {XO}\nv_lshl_add_u32 v{vT3}, v{vT2}, 3, s33\nv_add3_u32 v{vXr}, v{vT0}, v{vT1}, v{vT3}")
    if P0.get("sco"): a(f"v_lshlrev_b32 v{vTh}, 4, v0\ns_lshl_b32 s33, s28, 12\ns_add_u32 s33, s33, {F_ST}\nv_lshl_add_u32 v{vSt}, v{vL}, 4, s33")
    else: a(f"v_lshlrev_b32 v{vTh}, 4, v0\nv_lshlrev_b32 v{vSt}, 6, v0\nv_add_u32 v{vSt}, {F_ST}, v{vSt}")
    a(f"v_cmp_eq_u32 s[68:69], 1, v{vT2}\nv_cmp_eq_u32 vcc, 0, v{vL}\ns_mov_b32 m0, s32")
    if P0.get("padA"): touch(a, "A")
    a("s_waitcnt lgkmcnt(0)")
    if P0.get("bar0"): a("s_barrier")
    a("s_add_u32 s59, s59, 1\ns_and_b32 s31, s30, 1\ns_lshl_b32 s31, s31, 4\ns_lshr_b32 s34, s34, s31\ns_lshl_b32 s34, s34, 16\ns_lshr_b32 s35, s35, s31\ns_lshl_b32 s35, s35, 16")
    a(f"v_mov_b32 v{vD}, s35\nv_cndmask_b32 v{vD}, 0, v{vD}, vcc\nv_mov_b32 v{vT0}, 0x3f80\nds_write_addtid_b32 v{vT0} offset:8704")
    a(f"v_mov_b32 v{vDt}, {fh(LOG2E)}\nv_mul_f32 v{vDt}, s34, v{vDt}\nv_exp_f32 v{vDt}, v{vDt}\ns_nop 0\nv_cvt_pk_bf16_f32 v{vDt}, 0, v{vDt}\nv_add_f32 v{vDt+1}, v{vDt}, v{vDt}")
    c = 1 / (2 * math.pi); chi = struct.unpack("<f", struct.pack("<f", c))[0]; clo = c - chi
    a(f"s_mov_b32 s12, {fh(chi)}\ns_mov_b32 s13, {fh(clo)}\ns_mov_b32 s14, {fh(LOG2E)}\ns_mov_b32 s15, 0x41000000\ns_mov_b32 s16, 0x43800000")
    if P0.get("stag"): a(f"s_waitcnt vmcnt(9)\ns_mul_i32 s31, s28, {P0['stag']}\nK_ST:\ns_nop 3\ns_sub_u32 s31, s31, 1\ns_cbranch_scc0 K_ST")
    st(1)
    def stat_loads():
        for k in range(4): a(f"buffer_load_dwordx4 {vr(ST+4*k,4)}, v{vSt}, s[64:67], 0 offen offset:{(1024 if P0.get('sco') else 16)*k} sc1")
    pend = []
    gpos = P0.get("gpos", [0, 0, 2, 2, 4, 4, 6, 6])
    cpos = P0.get("cpos", [])
    spos = 8 + (P0.get("stj", 15) >> 3)
    xcnt = 4 if max(gpos + cpos) <= spos else 0
    def late(k):
        for _ in range(gpos.count(k)): a(gath.pop(0).replace(f"v{vG},", f"v{vTh if P0.get('xg') else vG},"))
        if spos == k: stat_loads()
    for p in range(3):
        q = PAR + 4 * p; t = P
        sk(1 + 2 * p)
        a(f"s_waitcnt vmcnt({9+npf-4*p+sum(1 for g in gpos + cpos if g < 4*p)})")
        sk(2 + 2 * p)
        o = [f"v_mul_f32 v{q}, s14, v{q}", f"v_exp_f32 v{q}, v{q}", f"v_mul_f32 v{q+1}, v{q+1}, v{vDt}",
             f"v_mul_f32 v{t}, s12, v{q+1}", f"v_fma_f32 v{t+1}, v{q+1}, s12, -v{t}", f"v_cvt_pk_bf16_f32 v{q}, 0, v{q}",
             f"v_fma_f32 v{t+1}, v{q+1}, s13, v{t+1}", f"v_mul_f32 v{q}, v{q}, v{vDt}", f"v_fract_f32 v{t+2}, v{t}",
             f"v_mul_f32 v{q}, s14, v{q}",
             f"v_mul_f32 v{t+3}, s15, v{t+2}", f"v_mul_f32 v{t+4}, s16, v{t+2}", f"v_add_f32 v{t+2}, v{t+2}, v{t+1}",
             f"v_fract_f32 v{t+3}, v{t+3}", f"v_fract_f32 v{t+4}, v{t+4}",
             f"v_fma_f32 v{t+3}, v{t+1}, s15, v{t+3}", f"v_fma_f32 v{t+4}, v{t+1}, s16, v{t+4}",
             f"v_mul_f32 v{t+6}, s15, v{q}", f"v_mul_f32 v{t+8}, s16, v{q}",
             f"v_cos_f32 v{W8}, v{t+3}", f"v_sin_f32 v{W8+1}, v{t+3}", f"v_exp_f32 v{t+6}, -v{t+6}",
             f"v_cos_f32 v{W1}, v{t+2}", f"v_sin_f32 v{W1+1}, v{t+2}", f"v_exp_f32 v{t+10}, -v{q}",
             f"v_cos_f32 v{W256}, v{t+4}", f"v_sin_f32 v{W256+1}, v{t+4}", f"v_exp_f32 v{t+8}, -v{t+8}",
             f"v_mul_f32 v{E[0]}, v{q+2}, v{vDt+1}", f"v_mul_f32 v{E[0]+1}, v{q+3}, v{vDt+1}",
             f"v_mul_f32 v{W8}, v{W8}, v{t+6}", f"v_mul_f32 v{W8+1}, v{W8+1}, v{t+6}", f"v_mul_f32 v{W1}, v{W1}, v{t+10}", f"v_mul_f32 v{W1+1}, v{W1+1}, v{t+10}",
             f"v_mul_f32 v{W256}, v{W256}, v{t+8}", f"v_mul_f32 v{W256+1}, v{W256+1}, v{t+8}"]
        at = [1, 6, 12, 18, 21, 24, 27, 32]
        for i, x in enumerate(o):
            a(x)
            if pend and i in at and not P0.get("mw"): a(pend.pop(0))
        if pend: pend = [x.split("\n")[1] for x in pend]; pend[0] = "s_waitcnt lgkmcnt(0)\n" + pend[0]
        R = {1: W1, 8: W256, "w8": W8}
        nxt = P
        plan = {2: (1, W1), 3: (2, W1), 4: (3, W1), 5: (4, W1), 6: (5, W1), 7: (6, W1),
                10: (2, W256), 11: (4, W256), 14: (6, W256), 15: ("w8", W256),
                16: (8, W256), 17: (11, W256), 18: (15, W256), 20: (16, W256), 21: (17, W256), 22: (18, W256),
                24: (20, W256), 25: (22, W256), 26: (24, W256), 27: (25, W256), 28: (26, W256), 29: (27, W256), 30: (28, W256), 31: (29, W256)}
        wr = []
        for j in range(32):
            e = E[j & 1]; pk = PK + 2 * (j & 7)
            xm = []
            if j in plan:
                R[j] = nxt; nxt += 2; xm = cmul(R[j], R[plan[j][0]], plan[j][1])
            em = cmul(E[(j + 1) & 1], e, W8) if j < 31 else []
            if xm: a(xm[0])
            if em: a(em[0])
            if xm: a(xm[1])
            a(f"v_cvt_pk_bf16_f32 v{pk}, v{e}, v{e+1}")
            if em: a(em[1])
            wr.append(f"ds_write_addtid_b32 v{pk} offset:{272*j}")
            if j in R:
                a(f"v_cvt_pk_bf16_f32 v{pk+1}, v{R[j]}, -v{R[j]+1}")
                wr.append(f"ds_write_addtid_b32 v{pk+1} offset:{8704+272*j}")
            bs = P0.get("bs", 8)
            if j % bs == bs - 1:
                for k, x in enumerate(wr):
                    if pend and k % P0["mw"] == 0: a(pend.pop(0))
                    if not P0.get("xw"): a(x)
                wr = []
            if j & 7 == 7:
                for _ in range(gpos.count(4 * p + (j >> 3))): a(gath.pop(0).replace(f"v{vG},", f"v{vTh if P0.get('xg') else vG},"))
                for _ in range(cpos.count(4 * p + (j >> 3))): a(clr.pop(0))
                if p == 2 and j == P0.get("stj", 15): stat_loads()
        assert not pend
        for s in range(0 if P0.get("xr") else 8):
            a(f"ds_read_b128 {vr(FA+4*s,4)}, v{vA} offset:{8704+32*s}\nds_read_b128 {vr(FB+4*s,4)}, v{vB} offset:{32*s}")
        d = vr(ACC, 16)
        pend = [f"s_waitcnt lgkmcnt({14-2*s})\nv_mfma_f32_32x32x16_bf16 {d}, {vr(FA+4*s,4)}, {vr(FB+4*s,4)}, {d if (p or s) else 0}" for s in range(8)]
    st(3); sk(7)
    XF = P; XP = PK
    kf = P0.get("kf", 0)
    a(("" if kf else "s_waitcnt vmcnt(4)\n") + "s_mov_b32 s12, 0x05040100\ns_mov_b32 s13, 0x07060302")
    fl = []
    for ch in range(4):
        for k, (r0, r1) in enumerate(((0, 2), (4, 6), (1, 3), (5, 7))):
            fl.append(f"v_perm_b32 v{XP+4*ch+k}, v{XR+2*r1+(ch>>1)}, v{XR+2*r0+(ch>>1)}, s{12+(ch&1)}")
    for i in range(16): fl += [f"v_lshlrev_b32 v{XF+2*i}, 16, v{XR+i}", f"v_and_b32 v{XF+2*i+1}, 0xffff0000, v{XR+i}"]
    for s in range(8):
        a(pend[s])
        if not kf:
            for x in fl[6*s:6*s+6]: a(x)
    late(12)
    a(f"v_add_u32 v{vT3}, {XO}, v{vTh}\nv_mov_b32 v{FA}, 0\nv_mov_b32 v{FA+1}, 0\nv_lshl_add_u32 v{vT0}, v{vL}, 3, s32")
    a(f"v_bfe_u32 v{vT1}, v{vL}, 4, 1\nv_mul_u32_u24 v{vT1}, {UBO}, v{vT1}\nv_and_b32 v{vT2}, 15, v{vL}\nv_lshl_add_u32 v{vT1}, v{vT2}, 3, v{vT1}\nv_add_u32 v{vT1}, s32, v{vT1}")
    xw = [f"ds_write_b128 v{vT3}, {vr(XP+4*ch,4)} offset:{RW*ch}" for ch in range(4)]
    if not kf:
        for x in xw: a(x)
    a(f"ds_write_b64 v{vT0}, {vr(FA,2)}\nds_write_b64 v{vT0}, {vr(FA,2)} offset:{K1O}\nds_write_b64 v{vT1}, {vr(FA,2)} offset:{UO}")
    c = ACC; o = FB
    cv = lambda d, x, y: a(f"v_cvt_pk_bf16_f32 v{d}, v{x}, {'v%d' % y if y is not None else 0}")
    if kf: a("s_nop 7")
    a(f"v_add_f32 v{c}, v{c}, v{vD}")
    for i in range(2): a(f"v_cndmask_b32 v{vT0+i}, v{c+12+2*i}, v{c+13+2*i}, s[68:69]")
    cv(o, c+3, c+2); cv(o+1, c+1, c); cv(o+2, c+7, c+6); cv(o+3, c+5, c+4)
    cv(o+4, c+2, c+1); cv(o+5, c, None); cv(o+6, c+6, c+5); cv(o+7, c+4, c+4)
    cv(o+8, c+10, c+10); cv(o+9, c+9, c+9); cv(o+10, c+9, c+8); cv(o+11, c+8, c+8)
    cv(o+12, c+10, c+9); cv(o+13, c+9, c+9); cv(o+14, c+8, c+8); cv(o+15, c+8, c+8)
    for i in range(2):
        x = c + 12 + 2 * i; y = x + 1; b = o + 16 + 8 * i
        cv(b, y, y); cv(b+1, y, vT0+i); cv(b+2, x, x); cv(b+3, x, x)
        cv(b+4, y, y); cv(b+5, vT0+i, x); cv(b+6, x, x); cv(b+7, x, x)
    a(f"ds_write_b64 v{vK8}, {vr(o,2)} offset:{K1O}\nds_write_b64 v{vK8}, {vr(o+2,2)} offset:{K1O+512}")
    a(f"ds_write_b64 v{vK8}, {vr(o+4,2)}\nds_write_b64 v{vK8}, {vr(o+6,2)} offset:512\nds_write_b16 v{vKp}, v{o}")
    a(f"ds_write_b128 v{vK16}, {vr(o+8,4)} offset:{K1O+1024}\nds_write_b128 v{vK16}, {vr(o+12,4)} offset:1024")
    for i in range(2):
        a(f"ds_write_b128 v{vK32}, {vr(o+16+8*i,4)} offset:{K1O+2048+512*i}\nds_write_b128 v{vK32}, {vr(o+20+8*i,4)} offset:{2048+512*i}")
    if kf:
        late(13)
        if kf > 1: a("s_waitcnt lgkmcnt(0)\ns_barrier")
        late(14)
        a(f"s_waitcnt vmcnt({xcnt})")
        for k, x in enumerate(fl):
            a(x)
            if k in (7, 11, 15, 19): a(xw.pop(0))
    st(4)
    L = a.label("SL"); Dn = a.label("SD")
    a(f"s_movk_i32 s58, 0x7fff\n{L}:\ns_waitcnt vmcnt(0)")
    for k in range(8): a(f"v_xor_b32 v{ST+2*k+1}, {TAG}, v{ST+2*k+1}")
    a(f"v_or3_b32 v{vT0}, v{ST+1}, v{ST+3}, v{ST+5}\nv_or3_b32 v{vT1}, v{ST+7}, v{ST+9}, v{ST+11}\nv_or3_b32 v{vT0}, v{vT0}, v{ST+13}, v{ST+15}\nv_or_b32 v{vT0}, v{vT0}, v{vT1}")
    a(f"v_cmp_ne_u32 vcc, 0, v{vT0}\ns_cbranch_vccz {Dn}")
    diag(a, 5)
    stat_loads()
    a(f"s_sub_u32 s58, s58, 1\ns_cbranch_scc0 {L}\ns_waitcnt vmcnt(0)\n{Dn}:")
    st(5)
    for i in range(8): a(f"v_and_b32 v{ST+2*i+1}, 0xffff0000, v{ST+2*i}\nv_lshlrev_b32 v{ST+2*i}, 16, v{ST+2*i}")
    for i in range(8):
        for k in range(2): a(f"v_pk_add_f32 {vr(XF+4*i+2*k,2)}, {vr(XF+4*i+2*k,2)}, {vr(ST+2*i,2)} op_sel_hi:[1,0] neg_lo:[0,1] neg_hi:[0,1]")
        a(f"v_rcp_f32 v{ST+2*i+1}, v{ST+2*i+1}")
    for i in range(32): a(f"v_cvt_pk_bf16_f32 v{XF+i}, 0, v{XF+i}")
    for i in range(8):
        for k in range(2): a(f"v_pk_mul_f32 {vr(XF+4*i+2*k,2)}, {vr(XF+4*i+2*k,2)}, {vr(ST+2*i,2)} op_sel:[0,1] op_sel_hi:[1,1]")
    U = FA
    for ch in range(4):
        for k in range(4): cv(U + 6 * ch + k, XF + 8 * k + ch, XF + 8 * k + 4 + ch)
        for k in (1, 2): cv(U + 6 * ch + 3 + k, XF + 8 * k + ch, XF + 8 * k + 4 + ch)
    a(f"v_add_u32 v{vT0}, {UO+64}, v{vTh}")
    for ch in range(4): a(f"v_add_u32 v{XR+ch}, {UO+UBO+64+RW*ch}, v{vTh}")
    if kf < 2: a("s_waitcnt lgkmcnt(0)\ns_barrier")
    for ch in range(4):
        a(f"ds_write_b128 v{vT0}, {vr(U+6*ch,4)} offset:{RW*ch}\nds_write_b64 v{XR+ch}, {vr(U+6*ch+4,2)} offset:8")
        a(f"ds_write2_b32 v{XR+ch}, v{U+6*ch}, v{U+6*ch+3} offset0:1 offset1:4")
    rw = P0.get("rw", 3); nin = P0.get("nin", 20)
    w1f_setup(a, vFw)
    if rw < 2: a(f"buffer_load_dword v{vD}, v{vFw}, s[64:67], 0 offen sc1")
    a(f"s_lshl_b32 s33, s30, 12")
    if P0.get("r1"):
        z = P0["r1"][1]
        a(f"s_bfe_u32 s16, s29, 0x20001\ns_mul_i32 s16, s16, 40\ns_lshr_b32 s17, s29, 3\ns_lshl_b32 s17, s17, 1\ns_add_u32 s16, s16, s17\ns_and_b32 s17, s29, 1\ns_add_u32 s16, s16, s17\ns_lshl_b32 s16, s16, {z}\ns_add_u32 s16, s16, {F_1R}")
        a(f"v_mul_u32_u24 v{vTh}, {160 << z}, v{vL}\nv_mov_b32 v{vSt}, {TAG}")
        if P0.get("f1"):
            assert P0["r1"] == (8, 7)
            a(f"v_lshrrev_b32 v{vTh}, 3, v{vL}\nv_mul_u32_u24 v{vTh}, {160*128-128}, v{vTh}\nv_lshl_add_u32 v{vTh}, v{vL}, 4, v{vTh}")
            if P0["f1"] > 1:
                for i in range(4): a(f"v_not_b32 v{240+i}, {TAG}")
                a(f"s_cmp_lg_u32 s28, 0\ns_cbranch_scc1 C_NP\nbuffer_store_dwordx4 v[240:243], v{vTh}, s[64:67], s16 offen sc1\nC_NP:")
                if P0.get("f2"): a(f"s_cmp_lg_u32 s28, 1\ns_cbranch_scc1 C_NQ\ns_cmp_ge_u32 s2, 128\ns_cbranch_scc1 C_NQ\ns_lshl_b32 s17, s2, 10\ns_add_u32 s17, s17, {F_2}\nbuffer_store_dwordx4 v[240:243], v{vWa}, s[64:67], s17 offen sc1\nC_NQ:")
            for i in range(4): a(f"v_mov_b32 v{244+i}, {TAG}")
    a("s_waitcnt lgkmcnt(0)\ns_barrier")
    st(6)
    wl = w1f_loads(0, nin)
    if P0.get("skb"):
        for c in range(nin): wl[3*c] = f"s_bitcmp1_b32 s70, {c}\ns_cselect_b32 s14, 0, {16*245760}\n" + wl[3*c]
        wl[-1] += f"\ns_mov_b32 s14, {16*245760}"
    CA = 24; FT = [56, 120]; FG = [88, 152]; X = 184; XU = 200
    def reads(r):
        p = r & 1; o = []
        for i in range(8):
            o.append(f"ds_read_b128 {vr(FG[p]+4*i,4)}, v{vKa} offset:{512*i+64*(7-r)}")
            for hh in range(2): o.append(f"ds_read_b64 {vr(FT[p]+4*i+2*hh,2)}, v{vUa} offset:{512*i+64*r+8*hh}")
        return o
    if P0.get("force1"):
        a(f"s_cmp_lg_u32 s28, 0\ns_cbranch_scc1 C_F1\nbuffer_store_dwordx4 v[244:247], v{vTh}, s[64:67], s16 offen sc1\nC_F1:")
    for x in reads(0): a(x)
    chk = P0["chk"]; CL = []; assert chk[0][4] == rw
    a("s_mov_b32 s70, 0")
    for r in range(8):
        p = r & 1
        mf = []
        for sg in range(8):
            for dl in range(8 - sg):
                d = vr(CA + 4 * (sg + dl), 4)
                mf.append(f"v_mfma_f32_16x16x32_bf16 {d}, {vr(FT[p]+4*sg,4)}, {vr(FG[p]+4*dl,4)}, {d if (r or sg) else 0}")
        fill = [[] for _ in range(36)]
        if r < 7:
            for i, x in enumerate(reads(r + 1)): fill[i].append(x)
        if r == 0:
            for i in range(26, 34, 2):
                if clr: fill[i].append(clr.pop(0))
        for k, (ri, si, rv, sv, s0) in enumerate(chk):
            c0 = -(-sum(P0["wsch"][:s0]) // 3); c1 = -(-sum(P0["wsch"][:chk[k+1][4]]) // 3) if k + 1 < len(chk) else 20
            m = hex((1 << c1) - (1 << c0))
            if r == ri: fill[si].append(f"s_mov_b64 exec, {m}\nbuffer_load_dword v{vD}, v{vFw}, s[64:67], 0 offen sc1 ;C{k}\ns_mov_b64 exec, -1")
            if r == rv: fill[sv] += [f"WAIT{k}", f"v_cmp_ne_u32 vcc, {TAG}, v{vD}"]; fill[sv + 1] += [f"s_and_b32 s71, vcc_lo, {m}", "s_or_b32 s70, s70, s71"]
        if r >= rw:
            re = P0.get("re", 8)
            n = -(-len(wl) // (re - r)) if r < re else 0
            if "wsch" in P0: n = P0["wsch"][r]
            for k in range(n): fill[(36 * k + 18) // n].append(wl.pop(0))
        if r == 6:
            for q in range(8): fill[24 + q].append(f"ds_read_b64 {vr(X+2*q,2)}, v{vXr} offset:{512*q}")
        if r == 7:
            for i in range(16): fill[i] += [f"v_lshlrev_b32 v{XU+2*i}, 16, v{X+i}", f"v_and_b32 v{XU+2*i+1}, 0xffff0000, v{X+i}"]
            done = {q: sum(8 - s for s in range(q)) + 8 for q in range(8)}
            ep = []
            for q in range(4):
                for k in range(4): ep.append((done[q], f"v_add_f32 v{CA+4*q+k}, v{CA+4*q+k}, v{XU+4*q+k}"))
                for k in range(2): ep.append((done[q], f"v_cvt_pk_bf16_f32 v{X+2*q+k}, v{CA+4*q+2*k}, v{CA+4*q+2*k+1}"))
            for i in range(16, 36):
                for _ in range(2):
                    if ep and ep[0][0] <= i: fill[i].append(ep.pop(0)[1])
            assert not ep
        CL.append("s_waitcnt lgkmcnt(0)")
        CL += interleave(mf, fill)
    for i, x in enumerate(CL):
        if x.startswith("WAIT"):
            j = [n for n, y in enumerate(CL) if f";C{x[4:]}" in y][0]
            x = f"s_waitcnt vmcnt({sum(y.count('buffer_') for y in CL[j+1:i])})"
        a(x.replace(" ;C0", "").replace(" ;C1", "").replace(" ;C2", "").replace(" ;C3", ""))
    assert not wl
    st(7)
    diag(a, 6)
    a(f"s_waitcnt vmcnt({min(40, 3*nin)})")
    for Q in range(2): a(f"buffer_store_dwordx4 {vr(X+4*Q,4)}, v{vWa}, s[8:11], s33 offen offset:{1024*Q} sc1")
    for q in range(4, 8):
        if q == 6: a("s_nop 0")
        for k in range(2): a(f"v_pk_add_f32 {vr(CA+4*q+2*k,2)}, {vr(CA+4*q+2*k,2)}, {vr(XU+4*q+2*k,2)}")
        for k in range(2): a(f"v_cvt_pk_bf16_f32 v{X+2*q+k}, v{CA+4*q+2*k}, v{CA+4*q+2*k+1}")
        if q & 1: a(f"buffer_store_dwordx4 {vr(X+2*q-2,4)}, v{vWa}, s[8:11], s33 offen offset:{512*(q-1)} sc1")
    a(f"s_lshl_b32 s31, s29, {FS[0]}\ns_add_u32 s31, s31, {F_1}")
    if P0.get("late1"): a("s_waitcnt vmcnt(0)")
    st(2)
    a("s_barrier\ns_cmp_lg_u32 s28, 0\ns_cbranch_scc1 M_NF")
    if P0.get("f1"): a(f"buffer_store_dwordx4 v[244:247], v{vTh}, s[64:67], s16 offen sc1")
    elif P0.get("r1"):
        R1 = P0["r1"][0]
        a(f"s_mov_b64 exec, {hex((1 << R1) - 1) if R1 < 64 else -1}\nbuffer_store_dword v{vSt}, v{vTh}, s[64:67], s16 offen sc1\ns_mov_b64 exec, -1".replace("exec, 0xffffffff\n", "exec, -1\ns_mov_b32 exec_hi, 0\n"))
    else: setflag(a, "s31")
    a("M_NF:")
    if P0.get("hold") == 1: a("s_barrier")
    if P0.get("hold") == 2: a("s_waitcnt vmcnt(0)\ns_barrier")
    a("s_cmp_eq_u32 s70, 0\ns_cbranch_scc1 P_MID")
    diag(a, 2)
    if P0.get("wl"): a(f"s_or_b32 s70, s70, {hex((1 << 20) - (1 << nin))}\ns_branch W_L0"); return
    poll(a, vFw, vD)
    a("s_mul_i32 s39, s3, 12288\ns_add_u32 s39, s39, s57")
    for c in range(nin):
        x = w1f_loads(c, c + 1); y = x[2].split("\n")
        a(f"s_bitcmp1_b32 s70, {c}\ns_cbranch_scc0 C_W{c}\n{x[0]}\n{x[1]}\n{y[0]}\nC_W{c}:\n" + "\n".join(y[1:]))
    a("s_branch P_MID")

def gen_help(a, st, sk, P={}):
    ntw = P.get('ntw', ' nt') if P.get('nt', 0) >= 1 else ''; ntx = ' nt' if P.get('nt', 0) >= 2 else ''
    vX, vFw = 11, 22
    S, M, RAW, XF = 24, 32, 36, 76
    if P.get("sco"): a(f"v_lshrrev_b32 v{vT1}, 4, v{vL}\nv_bfe_u32 v{vT0}, v{vL}, 3, 1\nv_lshl_add_u32 v{vT0}, v{vT1}, 3, v{vT0}")
    else: a(f"v_lshrrev_b32 v{vT0}, 3, v{vL}")
    a(f"v_and_b32 v{vT1}, 7, v{vL}\nv_lshlrev_b32 v{vT1}, 4, v{vT1}\ns_movk_i32 s33, 1280\nv_mad_u32_u24 v{vX}, v{vT0}, s33, v{vT1}")
    w2c = P.get("w2c")
    def w2_issue(n0=0, n1=15, ntw=ntw):
        vD = [12, 13, 14, 15, 16]
        if n0 == 0:
            a.srd(52, 44, 0, 1536 * 1280)
            a(f"s_lshr_b32 s48, s46, 3\ns_and_b32 s47, s46, 7\ns_mul_i32 s49, s48, {96*1280}\ns_mul_i32 s50, s47, 160\ns_add_u32 s49, s49, s50\ns_mul_i32 s51, s28, 15360\ns_add_u32 s51, s51, {WST}")
            if w2c: a(f"s_mul_i32 s50, s28, {24*1280-160}\ns_add_u32 s49, s49, s50")
            for j in range(5):
                a(f"v_add_u32 v{vT0}, {64*j}, v{vL}\nv_mul_u32_u24 v{vT1}, {1639 if w2c else 6554}, v{vT0}\nv_lshrrev_b32 v{vT1}, 16, v{vT1}\nv_mul_u32_u24 v{vT1}, {640 if w2c else 1280-160}, v{vT1}\nv_lshl_add_u32 v{vD[j]}, v{vT0}, 4, v{vT1}")
        for n in range(n0, n1):
            a(f"s_add_u32 m0, s51, {1024*n}\ns_nop 0\nbuffer_load_dwordx4 v{vD[n%5]}, s[52:55], s49 offen{ntw} lds")
            if n % 5 == 4: a(f"s_add_u32 s49, s49, {(8 if w2c else 32)*1280}")
    ro = P.get("ro")
    if ro:
        a("s_lshl_b32 s30, s29, 2\ns_add_u32 s30, s30, s28\ns_mov_b32 s46, s30\ns_movk_i32 s34, 40\ns_movk_i32 s56, 320\ns_cmp_lt_u32 s29, 32\ns_cbranch_scc1 H_RJ")
        a("s_lshr_b32 s34, s29, 3\ns_mul_i32 s34, s34, 5\ns_sub_u32 s34, s34, 16\ns_lshr_b32 s31, s34, 1\ns_lshl_b32 s31, s31, 3\ns_and_b32 s33, s29, 7\ns_add_u32 s31, s31, s33\ns_lshl_b32 s31, s31, 1\ns_and_b32 s33, s34, 1\ns_add_u32 s31, s31, s33")
        a(f"s_cmp_eq_u32 s28, {3 if ro > 1 else 0}\ns_cselect_b32 s56, s31, 320\ns_add_u32 s34, s34, s28\ns_sub_u32 s34, s34, 4\ns_movk_i32 s46, 128")
        if ro > 1: a("s_lshl_b32 s30, s29, 1\ns_add_u32 s30, s30, s28\ns_add_u32 s30, s30, 64\ns_cmp_lt_u32 s28, 2\ns_cselect_b32 s30, s30, 256\nH_RJ:")
        else: a("s_lshl_b32 s30, s29, 1\ns_add_u32 s30, s30, s28\ns_add_u32 s30, s30, 62\ns_cmp_lt_u32 s28, 2\ns_cselect_b32 s30, 256, s30\nH_RJ:")
    else:
        a("s_cmp_ge_u32 s29, 32\ns_cbranch_scc1 H_RB")
        a("s_lshr_b32 s34, s29, 3\ns_lshl_b32 s34, s34, 2\ns_add_u32 s34, s34, s28\ns_lshl_b32 s30, s29, 1\ns_add_u32 s30, s30, s28\ns_sub_u32 s46, s30, 2")
        if P.get("w2m"): a("s_lshl_b32 s46, s46, 1\ns_add_u32 s46, s46, 1")
        a("s_cmp_lt_u32 s28, 2\ns_cselect_b32 s30, s30, 256\ns_cselect_b32 s46, 128, s46\ns_branch H_RJ\nH_RB:")
        a("s_mul_i32 s31, s29, 3\ns_add_u32 s31, s31, s28\ns_lshr_b32 s34, s29, 3\ns_mul_i32 s34, s34, 3\ns_add_u32 s34, s34, s28\ns_add_u32 s34, s34, 4\ns_sub_u32 s30, s31, 33\ns_add_u32 s46, s29, 32")
        if P.get("w2m"): a("s_sub_u32 s46, s29, 32\ns_lshl_b32 s46, s46, 1")
        a("s_cmp_eq_u32 s28, 0\ns_cselect_b32 s30, 256, s30\ns_cmp_eq_u32 s28, 3\ns_cselect_b32 s34, 40, s34\ns_cselect_b32 s46, s46, 128\nH_RJ:")
    a("s_lshr_b32 s31, s34, 1\ns_lshl_b32 s31, s31, 3\ns_and_b32 s33, s29, 7\ns_add_u32 s31, s31, s33\ns_lshl_b32 s31, s31, 1\ns_and_b32 s34, s34, 1\ns_add_u32 s34, s34, s31")
    a(f"s_load_dwordx2 s[44:45], s[0:1], {KA['wd']}\ns_mul_i32 s31, s30, 10240\ns_mul_i32 s32, s28, {RW}")
    if P.get("sco"): a("s_and_b32 s33, s30, 3\ns_mul_i32 s33, s33, 7680\ns_sub_u32 s31, s31, s33")
    w1_voff(a)
    sk(1)
    a("s_waitcnt lgkmcnt(0)")
    sk(2)
    a(f"s_add_u32 s64, s4, {FL_OFF}\ns_addc_u32 s65, s5, 0\ns_load_dword s59, s[64:65], 0\ns_mov_b32 s66, 0x200000\ns_mov_b32 s67, 0x20000")
    a.srd(24, 8, 0, 2048 * 1280)
    a.srd(12, 40, 0, 640 * 3072); a.srd(16, 42, 0, 640 * 3072)
    a("s_cmp_ge_u32 s30, 256\ns_cbranch_scc1 H_NX")
    for i in range(10): a(f"buffer_load_dwordx4 {vr(RAW+4*i,4)}, v{vX}, s[24:27], s31 offen offset:{128*i}{ntx}")
    a("H_NX:")
    sk(3)
    if not P.get("we"): a("s_waitcnt lgkmcnt(0)\ns_barrier\ns_add_u32 s59, s59, 1")
    sk(4)
    hpw = P.get("hpw", 0)
    if hpw:
        a(f"s_lshr_b32 s47, s30, 6\ns_lshl_b32 s47, s47, 12\ns_and_b32 s33, s30, 3\ns_lshl_b32 s33, s33, 10\ns_add_u32 s47, s47, s33\ns_bfe_u32 s33, s30, 0x40002\ns_lshl_b32 s33, s33, 6\ns_add_u32 s47, s47, s33\ns_add_u32 s47, s47, {F_ST}")
        a(f"s_lshl_b32 s48, s34, 6\ns_add_u32 s48, s48, {F_W}\ns_lshl_b32 s49, s46, 6\ns_add_u32 s49, s49, {F_W+320*64}")
        a("s_cmp_lt_u32 s34, 320\ns_cselect_b32 s48, s48, s49\ns_cmp_lt_u32 s46, 128\ns_cselect_b32 s49, s49, s48\ns_cmp_lt_u32 s30, 256\ns_cselect_b32 s47, s47, s48")
        if ro: a(f"s_lshl_b32 s50, s56, 6\ns_add_u32 s50, s50, {F_W}\ns_cmp_lt_u32 s56, 320\ns_cselect_b32 s49, s50, s49")
        a(f"v_mov_b32 v{vT0}, s47\nv_mov_b32 v{vT1}, s48\nv_mov_b32 v{vT2}, s49\nv_cmp_gt_u32 vcc, 4, v{vL}\nv_cndmask_b32 v{vT1}, v{vT2}, v{vT1}, vcc\nv_cmp_gt_u32 vcc, 8, v{vL}\nv_cndmask_b32 v{vT1}, v{vT0}, v{vT1}, vcc")
        a(f"v_and_b32 v{vT0}, 3, v{vL}\nv_lshl_add_u32 v17, v{vT0}, 4, v{vT1}")
        for i in range(4): a(f"v_not_b32 v{240+i}, {TAG}")
    pw = f"s_mov_b64 exec, {0xfff if hpw > 1 else 0xff}\nbuffer_store_dwordx4 v[240:243], v17, s[64:67], 0 offen sc1\ns_mov_b64 exec, -1"
    if hpw: a(pw)
    a("s_cmp_ge_u32 s34, 320\ns_cbranch_scc1 H_NW")
    def w1_issue(u, l, o):
        a(f"s_lshr_b32 {o}, {u}, 4\ns_and_b32 s36, {u}, 15\ns_mul_i32 s37, {o}, 98304\ns_mul_i32 s38, s36, 192\ns_add_u32 s37, s37, s38\ns_add_u32 s38, s37, {16*3072}")
        for g in range(4):
            a(f"s_add_u32 m0, {l}, {3072*g}\ns_nop 0")
            for i in range(3): a(f"buffer_load_dwordx4 v{vWd[i]}, s[{12+4*(g>>1)}:{15+4*(g>>1)}], s{37+(g&1)} offen offset:{1024*i}{ntw} lds")
        a(f"s_mul_i32 s36, s36, 245760\ns_mul_i32 {o}, {o}, 12288\ns_add_u32 {o}, {o}, s36")
    if ro == 3: a("s_cmp_lt_u32 s30, 256\ns_cbranch_scc1 H_B2\ns_barrier\nH_B2:")
    w1_issue("s34", "s32", "s35")
    if ro == 3: a("s_cmp_ge_u32 s30, 256\ns_cbranch_scc1 H_B3\ns_barrier\nH_B3:")
    if ro:
        a(f"s_cmp_ge_u32 s56, 320\ns_cbranch_scc1 H_J1\ns_mov_b32 s51, {WST}")
        w1_issue("s56", "s51", "s57")
    if P.get("w2a") == 2:
        a("s_cmp_ge_u32 s46, 128\ns_cbranch_scc1 H_J1")
        w2_issue()
    a("s_branch H_J1\nH_NW:")
    if P.get("w2e"): w2_issue(0, 12)
    else: a("s_waitcnt vmcnt(0)")
    a("H_J1:")
    if P.get("we"): a("s_waitcnt lgkmcnt(0)\ns_barrier\ns_add_u32 s59, s59, 1")
    st(1)
    a("s_cmp_ge_u32 s30, 256\ns_cbranch_scc1 H_NOST")
    for i in range(10):
        a(f"s_waitcnt vmcnt({12+9-i+(1 if hpw else 0)})")
        if i == 0: st(2)
        for k in range(4):
            a(f"v_lshlrev_b32 v{XF+8*i+2*k}, 16, v{RAW+4*i+k}\nv_and_b32 v{XF+8*i+2*k+1}, 0xffff0000, v{RAW+4*i+k}")
        for k in range(4):
            if i == 1: a(f"v_pk_add_f32 {vr(S+2*k,2)}, {vr(XF+2*k,2)}, {vr(XF+8+2*k,2)}")
            elif i > 1: a(f"v_pk_add_f32 {vr(S+2*k,2)}, {vr(S+2*k,2)}, {vr(XF+8*i+2*k,2)}")
    def red():
        a(f"v_pk_add_f32 {vr(S,2)}, {vr(S,2)}, {vr(S+2,2)}\nv_pk_add_f32 {vr(S+4,2)}, {vr(S+4,2)}, {vr(S+6,2)}\nv_pk_add_f32 {vr(S,2)}, {vr(S,2)}, {vr(S+4,2)}\nv_add_f32 v{S}, v{S}, v{S+1}")
        for m in ("quad_perm:[1,0,3,2]", "quad_perm:[2,3,0,1]", "row_half_mirror"):
            a(f"s_nop 1\nv_add_f32_dpp v{S}, v{S}, v{S} {m} row_mask:0xf bank_mask:0xf")
        a(f"v_mul_f32 v{S}, 0x3acccccd, v{S}")
    red()
    a(f"v_mov_b32 v{M}, v{S}")
    for i in range(41):
        if i < 40:
            x = vr(XF + 2 * i, 2); a(f"v_pk_add_f32 {x}, {x}, {vr(M,2)} op_sel_hi:[1,0] neg_lo:[0,1] neg_hi:[0,1]")
        if i >= 1:
            k = i - 1; y = vr(XF + 2 * k, 2); s = vr(S + 2 * (k & 3), 2)
            a(f"v_pk_mul_f32 {s}, {y}, {y}" if k < 4 else f"v_pk_fma_f32 {s}, {y}, {y}, {s}")
    red()
    a(f"v_cvt_pk_bf16_f32 v{S}, 0, v{S}\nv_add_f32 v{S}, 0x3727c5ac, v{S}\nv_cvt_pk_bf16_f32 v{S}, 0, v{S}\nv_sqrt_f32 v{S}, v{S}")
    a(f"v_mov_b32 v{S+3}, {TAG}\nv_cvt_pk_bf16_f32 v{S+2}, v{M}, v{S}\ns_lshl_b32 s31, s30, 6\ns_add_u32 s31, s31, {F_ST}")
    if P.get("sco"): a(f"s_lshr_b32 s31, s30, 6\ns_lshl_b32 s31, s31, 12\ns_and_b32 s33, s30, 3\ns_lshl_b32 s33, s33, 10\ns_add_u32 s31, s31, s33\ns_bfe_u32 s33, s30, 0x40002\ns_lshl_b32 s33, s33, 6\ns_add_u32 s31, s31, s33\ns_add_u32 s31, s31, {F_ST}")
    if hpw: a("s_waitcnt vmcnt(12)")
    a(f"s_mov_b32 exec_lo, 0x01010101\ns_mov_b32 exec_hi, 0x01010101\nbuffer_store_dwordx2 {vr(S+2,2)}, v{vL}, s[64:67], s31 offen sc1\ns_mov_b64 exec, -1")
    a("s_branch H_S1\nH_NOST:\ns_waitcnt vmcnt(0)\nH_S1:" if P.get("hw") else "H_NOST:")
    st(3)
    FR = 24
    a(f"v_lshlrev_b32 v{vX}, 4, v{vL}\ns_cmp_ge_u32 s34, 320\ns_cbranch_scc1 H_W2D")
    w1_addr(a, "s32")
    a.srd(12, 4, W1_OFF, 16 * 245760)
    def w1_proc(FR, o):
        for ww in range(4):
            for x in w1_frag(lambda k: vr(FR + 12 * ww + k, 2), 48 * ww): a(x)
            if ww == 1: a("s_waitcnt lgkmcnt(3)")
        for f in range(12):
            if f % 3 == 0: a(f"s_waitcnt lgkmcnt({min(12, 18-2*f)})")
            a(f"buffer_store_dwordx4 {vr(FR+4*f,4)}, v{vX}, s[12:15], {o} offen offset:{1024*(f&3)} sc1")
            if f & 3 == 3: a(f"s_add_u32 {o}, {o}, 4096")
    if ro:
        a("s_cmp_ge_u32 s56, 320\ns_cbranch_scc1 H_ONE\ns_waitcnt vmcnt(12)")
        w1_proc(76, "s35")
        w1_addr(a, "s51")
        a("s_waitcnt vmcnt(12)")
        w1_proc(FR, "s57")
        a(f"s_lshl_b32 s34, s34, 6\ns_add_u32 s34, s34, {F_W}\ns_waitcnt vmcnt(12)")
        setflag64(a, "s34")
        a("s_mov_b32 s34, s56\ns_branch H_FIN\nH_ONE:")
    a(f"s_waitcnt vmcnt({1 if P.get('hw') else 0})")
    sk(5)
    w1_proc(FR, "s35")
    a("H_FIN:")
    sk(6)
    a(f"s_lshl_b32 s34, s34, 6\ns_add_u32 s34, s34, {F_W}")
    if P.get("w2a") == 1:
        a("s_cmp_ge_u32 s46, 128\ns_cbranch_scc1 H_WA")
        w2_issue()
        a("s_waitcnt vmcnt(15)\ns_branch H_WB\nH_WA:\ns_waitcnt vmcnt(0)\nH_WB:")
    else: a("s_waitcnt vmcnt(0)")
    sk(7)
    (setflag64 if P.get("fw") else setflag)(a, "s34")
    a("H_W2B:")
    st(4)
    a("s_cmp_ge_u32 s46, 128\ns_cbranch_scc1 H_J2")
    if P.get("hb") == 2: a("s_barrier\ns_mov_b32 s30, 999")
    if not P.get("w2a"): w2_issue()
    a("s_branch H_W2C\nH_W2D:")
    w2_issue(12 if P.get("w2e") else 0, 15, "" if P.get("w2m") or P.get("w2n") else ntw)
    if P.get("w2m") == 2:
        a(f"s_sub_u32 s49, s49, {96*1280-192}\nv_mul_u32_u24 v{vT0}, 1280, v{vL}\nbuffer_load_dword v248, v{vT0}, s[52:55], s49 offen\ns_add_u32 s49, s49, {32*1280}\nbuffer_load_dword v249, v{vT0}, s[52:55], s49 offen")
    a("H_W2C:")
    a("s_mul_i32 s35, s47, 245760\ns_mul_i32 s36, s48, 15360\ns_add_u32 s35, s35, s36")
    a.srd(12, 4, W2_OFF, 8 * 245760)
    vR = 12
    a(f"v_lshrrev_b32 v{vT0}, 4, v{vL}\nv_lshlrev_b32 v{vT0}, 3, v{vT0}\nv_bfe_u32 v{vT1}, v{vL}, 2, 2\nv_and_b32 v{vT2}, 3, v{vL}\nv_lshlrev_b32 v{vT2}, 3, v{vT2}\ns_movk_i32 s33, 160")
    if w2c: assert ro; a(f"s_movk_i32 s33, 640\ns_mul_i32 s51, s28, 160\ns_add_u32 s51, s51, {WST}")
    for q in range(3):
        for h in range(2):
            tb = 0
            for kq in range(4):
                sl = 4 * q + kq; ww, i = sl // 3, sl % 3
                tb |= (24 * ww + (4 * i + 8 * h if i < 2 else 16 + 4 * h)) << (8 * kq)
            r = vR + 4 * q + 2 * h
            a(f"s_mov_b32 s36, {hex(tb)}\nv_bfe_u32 v{vT3}, s36, v{vT0}, 8\nv_add_u32 v{vT3}, v{vT3}, v{vT1}\nv_mad_u32_u24 v{vT3}, v{vT3}, s33, v{vT2}")
            a(f"v_add_u32 v{r+1}, s51, v{vT3}\nv_add_u32 v{r}, v{r+1}, v{vT2}")
    sk(4)
    a("s_waitcnt vmcnt(0)")
    if w2c: a("s_barrier")
    sk(5)
    for q in range(3):
        for dt in range(5):
            for h in range(2):
                r = vR + 4 * q + 2 * h
                a(f"ds_read_b64_tr_b16 {vr(FR+20*q+4*dt+2*h,2)}, v{r if dt < 4 else r+1} offset:{64*(dt>>1)+8*(dt&1)}")
        a("s_waitcnt lgkmcnt(0)")
        for dt in range(5):
            f = 5 * q + dt
            a(f"buffer_store_dwordx4 {vr(FR+4*f,4)}, v{vX}, s[12:15], s35 offen offset:{1024*(f&3)} {P.get('wst', 'sc1')}")
            if f & 3 == 3: a("s_add_u32 s35, s35, 4096")
    sk(6)
    if P.get("w2f"):
        assert w2c and P.get("wl")
        w1f_setup(a, vFw)
        a(f"buffer_load_dword v23, v22, s[64:67], 0 offen sc1\ns_lshl_b32 s34, s46, 6\ns_add_u32 s34, s34, {F_W+320*64}\ns_barrier\ns_waitcnt vmcnt(0)")
        setflag64(a, "s34")
        st(5); st(6); st(7)
        a("s_mov_b32 s70, 0xfffff\ns_movk_i32 s58, 0x7fff\ns_mov_b32 s71, 0\ns_mov_b64 exec, s[70:71]\ns_branch W_L1")
    a(f"s_lshl_b32 s34, s46, 6\ns_add_u32 s34, s34, {F_W+320*64}\ns_waitcnt vmcnt(0)")
    sk(7)
    (setflag64 if P.get("fw") else setflag)(a, "s34")
    a("H_J2:")
    st(5)
    w1f_setup(a, vFw)
    if not P.get("hb"): a("s_barrier")
    if P.get("hb") == 2: a("s_cmp_eq_u32 s30, 999\ns_cbranch_scc1 H_NB\ns_barrier\nH_NB:")
    st(6)
    if P.get("hp1"):
        a(f"s_cmp_lg_u32 s28, {P['hp1']-1}\ns_cbranch_scc1 H_P1")
        poll(a, 22, 23)
        a("H_P1:\ns_barrier")
    st(7)
    if P.get("hp1"): a("s_branch P_WL2")

vH = [11, 12]; vB = 16; vO1, vO2, vPw, vPr, vPp, vF1, vL16 = 13, 14, 15, 24, 25, 26, 27
SUM, SQ, CS, ACC, FB, TMP = 28, 36, 44, 60, [156, 188], 220
def g1_setup(a, P):
    a.srd(8, 4, HT_OFF, 640 * 4096)
    a.srd(16, 4, HH_OFF, PSO + 256 * 4096)
    a(f"v_lshrrev_b32 v{vT0}, 4, v{vL}\nv_and_b32 v{vT1}, 15, v{vL}\nv_lshlrev_b32 v{vT2}, 1, v{vT0}\nv_xor_b32 v{vT2}, v{vT1}, v{vT2}")
    a(f"v_lshlrev_b32 v{vT2}, 4, v{vT2}\nv_lshl_add_u32 v{vH[0]}, v{vT0}, 12, v{vT2}\nv_xor_b32 v{vH[1]}, 128, v{vH[0]}\nv_add_u32 v{vH[1]}, {4*4096-1024}, v{vH[1]}")
    a(f"s_lshl_b32 s20, s28, 15\ns_lshl_b32 s25, s60, 8\ns_add_u32 s20, s20, s25\ns_lshl_b32 s26, s28, 11\ns_add_u32 s21, s20, {20*131072}\ns_lshl_b32 s24, s3, 17\ns_add_u32 s24, s24, s20")
    a.srd(48, 4, W2_OFF, 8 * 245760)
    a("s_and_b32 s55, s62, 3\ns_lshr_b32 s31, s63, 2\ns_add_u32 s55, s55, s31\ns_sub_u32 s31, s55, 3\ns_cselect_b32 s55, s55, s31")
    if P.get("norot2"): a("s_mov_b32 s55, 0")
    a(f"v_lshrrev_b32 v{vT2}, 3, v{vL}\nv_and_b32 v{vT3}, 7, v{vL}\nv_lshlrev_b32 v{vT3}, 4, v{vT3}\nv_lshl_add_u32 v6, v{vT2}, 12, v{vT3}")
    a("s_mul_i32 s46, s63, 80\ns_mul_i32 s47, s28, 24\ns_add_u32 s46, s46, s47\ns_lshl_b32 s46, s46, 12\ns_lshl_b32 s47, s62, 7\ns_add_u32 s46, s46, s47\ns_mul_i32 s47, s28, 3072")
    a("s_mul_i32 s54, s63, 245760\ns_mul_i32 s31, s28, 61440\ns_add_u32 s54, s54, s31\ns_add_u32 s53, s54, 61440\ns_mul_i32 s52, s55, 20480\ns_add_u32 s52, s52, s54")
    a(f"v_lshrrev_b32 v{vT2}, 2, v{vL}\nv_and_b32 v{vT3}, 7, v{vT2}\ns_lshl_b32 s27, s28, 1\nv_xor_b32 v{vT3}, s27, v{vT3}\nv_lshlrev_b32 v{vT3}, 5, v{vT3}")
    a(f"v_lshl_add_u32 v{vT3}, v{vT2}, 8, v{vT3}\nv_and_b32 v{vT2}, 3, v{vL}\nv_lshl_add_u32 v{vB}, v{vT2}, 3, v{vT3}")
    for i in range(1, 8): a(f"v_xor_b32 v{vB+i}, {32*i}, v{vB}")
    a(f"v_lshlrev_b32 v{vT1}, 4, v{vT1}\nv_lshrrev_b32 v{vT2}, 5, v{vL}\nv_and_b32 v{vT3}, 1, v{vT0}")
    a(f"s_mov_b32 s38, 49152\nv_mad_u32_u24 v{vO2}, v{vT2}, s38, v{vT1}\nv_lshl_add_u32 v{vO1}, v{vT3}, 8, v{vO2}")
    a(f"s_and_b32 s30, s28, 1\nv_xor_b32 v{vT3}, s30, v{vT3}\nv_mul_u32_u24 v{vT3}, 98304, v{vT3}\nv_add3_u32 v{vO2}, v{vO2}, v{vT3}, s38\nv_subrev_u32 v{vO2}, {49152-512}, v{vO2}")
    a("s_mul_i32 s30, s60, 393216\ns_mul_i32 s31, s61, 3072\ns_add_u32 s30, s30, s31\ns_mul_i32 s31, s28, 768\ns_add_u32 s30, s30, s31")
    for p in range(4): a(f"s_xor_b32 s31, s28, {p}\ns_mul_i32 s31, s31, 98304\ns_add_u32 s{32+p}, s30, s31")
    for q in range(2): a(f"s_lshr_b32 s31, s28, 1\ns_xor_b32 s31, s31, {q}\ns_mul_i32 s31, s31, 196608\ns_add_u32 s{36+q}, s30, s31")
    a(f"s_lshl_b32 s31, s28, 9\nv_add_u32 v{vPr}, s31, v{vT1}\nv_lshl_add_u32 v{vPp}, v{vT2}, 8, v{vPr}")
    a(f"v_lshrrev_b32 v{vT2}, 2, v{vL}\nv_xor_b32 v{vT2}, v{vT2}, v{vT0}\nv_and_b32 v{vT2}, 1, v{vT2}\nv_lshl_add_u32 v{vPw}, v{vT2}, 11, v{vPp}")
    a(f"v_and_b32 v{vT2}, 1, v{vT0}\nv_lshl_add_u32 v10, v{vT2}, 14, v{vPp}\ns_lshl_b32 s25, s60, 4\ns_add_u32 s25, s25, s61\ns_lshl_b32 s25, s25, 12\ns_add_u32 s25, s25, {PSO}")
    a("s_and_b32 s27, s61, 7\ns_lshl_b32 s27, s27, 12\ns_sub_u32 s27, s25, s27")
    a(f"v_lshrrev_b32 v{vT0}, 1, v{vL}\nv_and_b32 v{vT1}, 1, v{vL}\nv_lshl_add_u32 v{vT0}, v{vT0}, 3, v{vT1}\ns_lshl_b32 s31, s28, {FS[0]+1}\ns_add_u32 s31, s31, {F_1}\ns_add_u32 s31, s31, s6\nv_lshl_add_u32 v{vT0}, v{vT0}, {FS[0]}, s31")
    if P.get("r1"):
        R1, z = P["r1"]
        a(f"s_cmp_lg_u32 s6, 0\ns_cbranch_scc1 M_R1\ns_and_b32 s31, s2, {R1-1}\ns_lshl_b32 s31, s31, 2\ns_add_u32 s31, s31, s28\ns_mul_i32 s31, s31, {40 << z}\ns_add_u32 s31, s31, {F_1R}\nv_lshl_add_u32 v{vT0}, v{vL}, {z}, s31\nM_R1:")
    a(f"s_lshl_b32 s31, s28, 5\ns_add_u32 s31, s31, s63\ns_lshl_b32 s31, s31, 6\ns_add_u32 s31, s31, {F_W+320*64}\nv_and_b32 v{vT1}, 3, v{vL}\nv_lshl_add_u32 v{vT1}, v{vT1}, 9, s31")
    a(f"v_cmp_gt_u32 vcc, 40, v{vL}\ns_mov_b32 s68, 0xaaaaaaaa\ns_mov_b32 s69, s68\nv_cndmask_b32 v{vF1}, v{vT1}, v{vT0}, vcc")
    a("s_mov_b32 s70, 0xcccccccc\ns_mov_b32 s71, s70\ns_mov_b32 s72, 0xff00ff00\ns_mov_b32 s73, s72\ns_mov_b32 s74, 0\ns_mov_b32 s75, -1")
    a(f"s_mul_i32 s31, s63, {20<<FS[0]}\ns_add_u32 s31, s31, {F_1L}\nv_lshl_add_u32 v8, v{vL}, {FS[0]}, s31")
    a(f"s_lshl_b32 s31, s61, 2\ns_add_u32 s31, s31, s28\ns_mul_i32 s22, s31, 3072\ns_add_u32 s22, s22, {CSO}\ns_lshl_b32 s23, s31, 6\ns_add_u32 s23, s23, {F_C}")
    a(f"v_mov_b32 v7, s23\nv_cmp_gt_u32 vcc, 20, v{vL}\nv_cndmask_b32 v8, v7, v8, vcc")
    if P.get("wf2"):
        a(f"s_lshl_b32 s31, s62, 3\ns_add_u32 s31, s31, s63\ns_lshl_b32 s31, s31, 2\ns_add_u32 s31, s31, s28\ns_lshl_b32 s31, s31, {P['rep']-2}\ns_add_u32 s31, s31, {F_2}\nbuffer_load_dword v{vT0}, off, s[64:67], s31 sc1")
    for i in range(4): a(f"v_mov_b32 v{vN+i}, -1")
    for i in range(4): a(f"v_mov_b32 v{TMP+i}, 0x3f803f80")
    a("s_nop 1")
def cs_mf(s):
    return [f"v_mfma_f32_16x16x32_bf16 {vr(CS+4*t,4)}, {ar(12*s+4*t,4)}, {vr(TMP,4)}, {vr(CS+4*t,4) if s else 0}" for t in range(3)]
def gen_mid1(a, st, P):
    nin = P.get("nin", 20); nin0 = 0
    a("P_WALL:")
    if P.get("wl"):
        a(f"s_mov_b32 s70, 0xfffff\nW_L0:\ns_movk_i32 s58, 0x7fff\ns_mov_b32 s71, 0\nW_L:\ns_mov_b64 exec, s[70:71]\nbuffer_load_dword v23, v22, s[64:67], 0 offen sc1")
        a(f"s_mul_i32 s39, s3, 12288\ns_add_u32 s39, s39, s57\ns_waitcnt vmcnt(0)\nW_L1:\nv_cmp_eq_u32 vcc, {TAG}, v23\ns_mov_b64 exec, -1\ns_cbranch_vccz W_N\ns_andn2_b32 s70, s70, vcc_lo")
        for c in range(20):
            x = w1f_loads(c, c + 1); y = x[2].split("\n")
            a(f"s_bitcmp1_b32 vcc_lo, {c}\ns_cbranch_scc0 W_S{c}\n{x[0]}\n{x[1]}\n{y[0]}\nW_S{c}:\n" + "\n".join(y[1:]))
        a("s_cmp_eq_u32 s70, 0\ns_cbranch_scc1 P_MID2\nW_N:\ns_sub_u32 s58, s58, 1\ns_cbranch_scc0 W_L\ns_branch P_MID2")
        nin0 = nin
    else: poll(a, 22, 23)
    a("P_WL2:")
    if P.get("tch"):
        t0, tw = P["tch"]
        a(f"s_mul_i32 s31, s3, 12288\ns_mul_i32 s40, s28, {tw}\ns_add_u32 s31, s31, s40\ns_add_u32 s31, s31, {t0}\nv_lshl_add_u32 v{vT0}, v{vL}, 7, s31\ns_mul_i32 s40, s61, 245760")
        for k in range(-(-tw // 8192)):
            a(f"v_subrev_u32 v{vT1}, 245760, v{vT0}\nv_min_u32 v{vT1}, v{vT1}, v{vT0}\nbuffer_load_dword v{240+k}, v{vT1}, s[12:15], s40 offen sc1\nv_add_u32 v{vT0}, 8192, v{vT0}")
    for x in w1f_loads(nin0, nin): a(x)
    a("s_waitcnt vmcnt(0)\nP_MID:")
    nd = sum(P.get("wd", [])) // 3
    for x in w1f_loads(nin, 20 - nd): a(x)
    a("P_MID2:")
    st(8)
    g1_setup(a, P)
    touch(a, "B")
    if True:
        a(f"s_cmp_lt_u32 s2, {192 if P.get('ska') else 160}\ns_cbranch_scc1 M_P2")
        assert P["k1"] == 3
        a("s_and_b32 s31, s2, 0xc3\ns_cmp_lg_u32 s31, 0xc0\ns_cbranch_scc1 M_P1\ns_mov_b32 s40, s39")
        for x in w1f_loads(20 - nd, 20): a(x)
        a("s_mov_b32 s39, s40\ns_waitcnt vmcnt(0)")
        for s in range(20):
            for x in cs_mf(s): a(x)
        a("s_nop 7")
        for t in range(3): a(f"buffer_store_dwordx4 {vr(CS+4*t,4)}, v{vWa}, s[16:19], s22 offen offset:{1024*t} sc1")
        if P.get("csx") == 2: a("s_branch M_P3" if P.get("hb") == 1 and not P.get("hp1") else "s_branch M_P2")
        else:
            a("s_waitcnt vmcnt(0)")
            setflag(a, "s23")
            if P.get("csx"): a("s_branch M_P2")
        a("M_P1:")
        if not P.get("nopf2"):
            a(f"v_lshlrev_b32 v{vT2}, 6, v{vL}\nv_add_u32 v{vT2}, {F_W+320*64}, v{vT2}")
            poll(a, vT2, vT3)
            a(f"v_add_u32 v{vT2}, 4096, v{vT2}")
            poll(a, vT2, vT3)
            a(f"v_lshrrev_b32 v{vT3}, 3, v{vL}\nv_lshlrev_b32 v{vT3}, 12, v{vT3}\nv_lshl_add_u32 v{vT2}, v{vL}, 7, v{vT3}\ns_lshr_b32 s31, s29, 3\ns_lshl_b32 s31, s31, 2\ns_add_u32 s31, s31, s28\ns_mul_i32 s31, s31, 40960")
            for k in P.get("pf2", (0, 2)): a(f"buffer_load_dword v{250+k}, v{vT2}, s[48:51], s31 offen offset:{1024*k} sc1")
        if P.get("pp") == 1:
            a("s_and_b32 s31, s29, 3\ns_cmp_lg_u32 s31, s28\ns_cbranch_scc1 M_P3")
            if P.get("ppm"): poll(a, vF1, vT3, one=f"s_lshr_b32 s31, s29, 2\ns_lshl_b64 exec, {P['ppm']}, s31".replace("exec, 585", "exec, 0x249"))
            for k in range(0 if P.get("ppm") else P.get("npp", 1)): poll(a, vF1, vT3, one=f"s_lshr_b32 s31, s29, 2\ns_lshl_b64 exec, {1<<(3*k)}, s31")
            a("M_P3:\ns_barrier")
        elif P.get("pp") == 2: poll(a, vF1, vT3, one="s_mul_i32 s31, s29, 27\ns_lshr_b32 s31, s31, 6\ns_lshl_b64 exec, 1, s31")
        else: poll(a, vF1, vT3, one="s_mov_b64 exec, 1")
        a("M_P2:")
    for k in range(P.get("cpp", 0)): poll(a, vF1, vT3, one=f"s_lshr_b32 s31, s2, 3\ns_lshl_b64 exec, {1<<(4*k)}, s31")
    if P.get("lim"): poll2(a, vF1, vT3, P["lim"])
    else: poll(a, vF1, vT3)
    if P.get("csx") == 2:
        a("s_and_b32 s31, s2, 0xc3\ns_cmp_lg_u32 s31, 0xc0\ns_cbranch_scc1 M_NC")
        setflag(a, "s23")
        a("M_NC:")
    st(9)
    if not P.get("nobar1"): a("s_barrier")
def h_dma(s):
    return [f"s_add_u32 m0, s26, {8192*s}", "s_nop 0", f"buffer_load_dwordx4 v{vH[0]}, s[8:11], s24 offen sc1 lds",
            f"buffer_load_dwordx4 v{vH[1]}, s[8:11], s24 offen offset:1024 sc1 lds", "s_add_u32 s24, s24, 131072", "s_cmp_eq_u32 s24, s21", "s_cselect_b32 s24, s20, s24"]
def w2f_load(f):
    x = f"buffer_load_dwordx4 {ar(4*f,4)}, v{vWa}, s[48:51], s52 offen offset:{1024*(f&3)} sc1"
    if f & 3 == 3 and f < 59: x += "\ns_add_u32 s52, s52, 4096"
    if f in (19, 39): x += "\ns_cmp_eq_u32 s52, s53\ns_cselect_b32 s52, s54, s52"
    return x
RES = 8192; RED = 24576
PL = 224; TS = 240; PR = FB[0]; PR2 = SUM
def st_mf(fb, first):
    o = []
    for ti in range(2):
        o.append(f"v_mfma_f32_16x16x32_bf16 {vr(SQ+4*ti,4)}, {vr(fb+4*ti,4)}, {vr(fb+4*ti,4)}, {0 if first else vr(SQ+4*ti,4)}")
        o.append(f"v_mfma_f32_16x16x32_bf16 {vr(SUM+4*ti,4)}, {vr(TMP,4)}, {vr(fb+4*ti,4)}, {0 if first else vr(SUM+4*ti,4)}")
    return o
def st_extract(dS, dQ):
    q = SQ; S = SUM
    return [f"v_cndmask_b32 v{q}, v{q}, v{q+1}, s[68:69]", f"v_cndmask_b32 v{q+2}, v{q+2}, v{q+3}, s[68:69]",
            f"v_cndmask_b32 v{q+4}, v{q+4}, v{q+5}, s[68:69]", f"v_cndmask_b32 v{q+6}, v{q+6}, v{q+7}, s[68:69]",
            f"v_cndmask_b32 v{q}, v{q}, v{q+2}, s[70:71]", f"v_cndmask_b32 v{q+4}, v{q+4}, v{q+6}, s[70:71]",
            f"v_cndmask_b32 v{dS}, v{S}, v{S+4}, s[74:75]", "s_nop 0", f"v_permlane32_swap_b32 v{q}, v{q+4}", "s_nop 0",
            f"v_cndmask_b32 v{dQ}, v{q}, v{q+4}, s[72:73]"]
def pl_loads(): return [f"buffer_load_dwordx4 {vr(PL+4*i,4)}, v10, s[16:19], s{(27, 30, 38, 45)[i]} offen sc1" for i in range(4)]
def pl_check(): return [f"v_sad_u32 v2, v{PL+1}, {TAG}, 0"] + [f"v_sad_u32 v2, v{PL+2*i+1}, {TAG}, v2 clamp" for i in range(1, 8)] + ["v_cmp_ne_u32 vcc, 0, v2"]
def g1_main(a, st, P):
    up = P.get("up", 10); bars = P.get("bars", [0, 1, 2, 4, 6, 8, 10, 12, 14, 16, 18])
    q = []
    def emit(x):
        if isinstance(x, str): a(x)
        elif x[0] == "vm": q.append(x[2]); a(x[1])
        else:
            n = len(q) - 1 - max(i for i, c in enumerate(q) if c == x[1]); assert n < 62
            a(f"s_waitcnt vmcnt({n})")
    for s in range(up):
        for x in h_dma(s): a(x)
        q += [s, s]
    a("s_add_u32 s30, s27, 4096\ns_add_u32 s38, s27, 8192\ns_add_u32 s45, s27, 12288")
    def reads(s):
        p = s & 1
        return [f"ds_read_b64_tr_b16 {vr(FB[p]+4*i+2*h,2)}, v{vB+i} offset:{8192*(s&7)+4096*h}" for i in range(8) for h in range(2)]
    issued = up
    def sync(s):
        nb = min([b for b in bars if b > s] + [20])
        assert issued >= nb, (s, issued, nb)
        return [("w", nb - 1), "s_barrier"]
    nw2 = 0
    wd = P.get("wd", []); wdl = w1f_loads(20 - sum(wd) // 3, 20)
    for x in sync(0): emit(x)
    st(10)
    for x in reads(0): a(x)
    a(f"s_cmp_lg_u32 s28, 0\ns_cbranch_scc1 M_NE\ns_cmp_ge_u32 s2, 160\ns_cbranch_scc1 M_NE\ns_lshl_b32 s31, s29, {FS[0]}\ns_add_u32 s31, s31, {F_1L}")
    setflag(a, "s31")
    a("s_cmp_lg_u32 s2, 0\ns_cbranch_scc1 M_NE")
    setflag(a, "0")
    a("M_NE:")
    hclr = [f"buffer_store_dwordx4 {vr(vN,4)}, v{vO1 if k < 4 else vO2}, s[16:19], s{32+k} offen sc1" for k in range(6)]
    if P.get("late2"): hclr = []
    K1 = -LOG2E * 1.5957691216057308
    t = TS; S = PL; Q = PL + 2
    sp = P.get("sp", 12)
    vser = {3: st_extract(t, t + 2) + [f"v_mov_b32 v{t+1}, {TAG}", f"v_mov_b32 v{t+3}, {TAG}"],
            17: [f"v_add_f32 v{S}, v{S}, v{S+4}", f"v_add_f32 v{Q}, v{Q}, v{Q+4}", f"v_add_f32 v{S+8}, v{S+8}, v{S+12}", f"v_add_f32 v{Q+8}, v{Q+8}, v{Q+12}",
                 f"v_add_f32 v{S}, v{S}, v{S+8}", f"v_add_f32 v{Q}, v{Q}, v{Q+8}", f"v_mov_b32 v{S+1}, v{S}", f"v_mov_b32 v{Q+1}, v{Q}", "s_nop 0",
                 f"v_permlane16_swap_b32 v{S}, v{S+1}", f"v_permlane16_swap_b32 v{Q}, v{Q+1}", "s_nop 0", f"v_add_f32 v{S}, v{S}, v{S+1}", f"v_add_f32 v{Q}, v{Q}, v{Q+1}",
                 "s_cmp_lg_u32 s6, 0\ns_cbranch_scc1 G1_LS\nG1_LSC:"],
            18: [f"v_mul_f32 v{S}, 0x3acccccd, v{S}", f"v_mul_f32 v{Q}, 0x3acccccd, v{Q}", f"v_cvt_pk_bf16_f32 v{t+2}, 0, v{S}",
                 f"v_fma_f32 v{Q}, -v{S}, v{S}, v{Q}", f"v_max_f32 v{Q}, 0, v{Q}",
                 f"v_cvt_pk_bf16_f32 v{Q}, 0, v{Q}", f"v_add_f32 v{Q}, 0x3727c5ac, v{Q}", f"v_cvt_pk_bf16_f32 v{Q}, 0, v{Q}",
                 f"v_sqrt_f32 v{Q}, v{Q}", f"v_cvt_pk_bf16_f32 v{Q}, 0, v{Q}", f"v_rcp_f32 v{t}, v{Q}", f"v_mul_f32 v{t+3}, v{Q}, v{Q}",
                 f"v_mul_f32 v{t+1}, v{t}, v{t}", f"v_mul_f32 v{t+1}, v{t+1}, v{t}", f"v_mul_f32 v{t}, {fh(K1)}, v{t}"],
            16: [("w", "pl")] + pl_check() + ["s_cbranch_vccnz G1_Q\nG1_QC:"]}
    for s in range(20):
        p = s & 1
        mf = []
        for i, tt in ([(i, tt) for tt in (2, 0, 1) for i in range(8)] if s == 19 else [(i, tt) for i in range(8) for tt in range(3)]):
            d = vr(ACC + 12 * i + 4 * tt, 4)
            mf.append(f"v_mfma_f32_16x16x32_bf16 {d}, {ar(12*s+4*tt,4)}, {vr(FB[p]+4*i,4)}, {d if s else 0}")
        fill = [[] for _ in range(24)]
        if P.get("cyc") and s in (0, 4, 8, 12, 16): a(f"s_memtime s[{78+2*(s//4)}:{79+2*(s//4)}]")
        a("s_waitcnt lgkmcnt(0)")
        if s == 2: a("s_bitcmp1_b32 s61, 0\ns_cbranch_scc0 G1_S2")
        if s < 3:
            for x in st_mf(FB[p], s == 0): a(x)
        if s == 2: a("G1_S2:")
        if s < 19:
            if s + 1 in bars: fill[0] += sync(s + 1)
            for i, x in enumerate(reads(s + 1)):
                if (s + 1) % 8 == 0 and i % 2 == 0: fill[i].append(f"v_add_u32 v{vB+i//2}, 0x10000, v{vB+i//2}")
                fill[i].append(x)
            for k, x in enumerate(vser.get(s, [])):
                if x != "s_nop 0": fill[1 + k].append(x)
            if issued < 20:
                d = h_dma(issued); issued += 1
                fill[17].append(d[0]); fill[18].append(("vm", d[2], issued - 1)); fill[20] += [("vm", d[3], issued - 1), d[4]]; fill[21] += d[5:]
            for k in (16, 19, 22, 23)[:P.get("w2sch", [0] + [3] * 18)[s]]: fill[k].append(("vm", w2f_load(nw2), -1)); nw2 += 1
            assert nw2 <= 3 * s
            if s < len(wd):
                for k in (22, 23, 21, 15, 13, 11)[:wd[s]]: fill[k].append("WD")
                for f in fill:
                    if "WD" in f: f[f.index("WD")] = ("vm", wdl.pop(0), -1)
            if s == 3: fill[23].append(("vm", f"buffer_store_dwordx4 {vr(t,4)}, v{vPw}, s[16:19], s25 offen sc1", -1))
            if s >= 4 and hclr: fill[23].append(("vm", hclr.pop(0), "clr"))
            if s == 11: fill[23].append(("vm", "buffer_load_dword v7, v8, s[64:67], 0 offen sc1", "fl"))
            if s in (sp, sp + 1):
                for k in range(2): fill[(21, 23)[k]].append(("vm", pl_loads()[2 * (s - sp) + k], "pl"))
            if s == 14: fill[17] += [("w", "fl"), f"v_cmp_ne_u32 vcc, {TAG}, v7\ns_cbranch_vccnz G1_P\nG1_PC:"]; assert not hclr
            if s in (15, 16):
                for i in (18, 20):
                    c = 2 * (s - 15) + (i == 20)
                    fill[i].append(("vm", f"buffer_load_dwordx4 {vr(CS+4*c,4)}, v{vWa}, s[16:19], s22 offen offset:{1024*min(c,2)} sc1", "cs"))
            rs = lambda k: ("vm", f"buffer_load_dwordx4 v6, s[8:11], s46 offen sc1 lds\ns_add_u32 s46, s46, {8*4096}", -1)
            if s == 17: fill[17].append(f"s_add_u32 m0, s47, {RES}"); fill[18].append(rs(0)); fill[20].append(f"s_add_u32 m0, s47, {RES+1024}"); fill[21].append(rs(1))
            if s == 18: fill[17].append(f"s_add_u32 m0, s47, {RES+2048}"); fill[18].append(rs(2)); fill[20].append(f"v_mul_f32 v{t+1}, {fh(K1*0.044715)}, v{t+1}")
            if s == 12 and P.get("force2"):
                fill[23].append(f"s_waitcnt vmcnt(0)\ns_barrier\ns_lshl_b32 s31, s60, 4\ns_add_u32 s31, s31, s61\ns_lshl_b32 s31, s31, 6\ns_add_u32 s31, s31, {F_2}\nv_mov_b32 v2, 0\nv_mov_b32 v3, s59\nbuffer_store_dword v3, v2, s[64:67], s31 offen sc1")
        else:
            c = [ACC + 12 * i + 8 for i in range(8)]
            for i in range(1, 4): fill[i - 1] += [f"v_xor_b32 v{vB+i}, {512*i}, v{vPr}", f"v_xor_b32 v{vB+4+i}, {512*i}, v{vPp}"]
            for k in range(3): fill[3 + k].append(("vm", w2f_load(nw2 + k), -1))
            fill[6] += [("w", "cs"), f"v_fma_f32 v2, v{c[0]}, v{c[1]}, v{c[2]}"]; fill[9].append(f"v_fma_f32 v2, v{c[3]}, v{c[4]}, v2")
            fill[10].append(f"v_fma_f32 v2, v{c[5]}, v{c[6]}, v2"); fill[11] += [f"v_add_f32 v2, v{c[7]}, v2", f"v_fma_f32 v{t+2}, v2, 0, v{t+2}"]
            fill[12].append(f"ds_write_b128 v{vPw}, {vr(t,4)}"); fill[14] += ["s_waitcnt lgkmcnt(0)", "s_barrier"]
            rd = []
            for pp in range(4):
                r = vPr if pp == 0 else vB + pp; r2 = vPp if pp == 0 else vB + 4 + pp
                rd += [f"ds_read_b128 {vr(PR+8*pp,4)}, v{r}", f"ds_read_b128 {vr(PR+8*pp+4,4)}, v{r} offset:256", f"ds_read_b128 {vr(PR2+4*pp,4)}, v{r2}"]
            for k in range(6): fill[15 + k] += rd[2*k:2*k+2]
            sw = [f"v_permlane32_swap_b32 v{CS+8+i}, v{CS+12+i}" for i in range(4)] + [f"v_permlane32_swap_b32 v{ACC+24*pp+8+i}, v{ACC+24*pp+20+i}" for pp in range(4) for i in range(4)]
            for k in (7, 8, 9, 10, 13, 21, 22, 23): fill[k].append(sw.pop(0))
        for x in interleave(mf, fill): emit(x)
    if P.get("cyc"): a("s_memtime s[88:89]")
    st(11)
    for x in sw[:4]: a(x)
    for k in range(nw2 + 3, 60): a(w2f_load(k))
    for x in sw[4:]: a(x)
def g1_slow(a):
    a("G1_P:"); diag(a, 3)
    poll(a, 8, 7)
    a("s_branch G1_PC\nG1_Q:"); diag(a, 4)
    a("s_movk_i32 s58, 0x7fff\nG1_QL:")
    for x in pl_loads(): a(x)
    a("s_waitcnt vmcnt(0)")
    for x in pl_check(): a(x)
    a("s_cbranch_vccz G1_QC\ns_sub_u32 s58, s58, 1\ns_cbranch_scc0 G1_QL\ns_branch G1_QC")
    a(f"G1_LS:\ns_waitcnt vmcnt(0)\ns_barrier\nv_and_b32 v2, 0xffff, v{vB}\nv_and_b32 v3, 0xffff, v{vB+1}\ns_movk_i32 s58, 19")
    for i in range(16): a(f"v_mov_b32 v{SUM+i}, 0")
    a("G1_LL:")
    for i in range(2):
        for h in range(2): a(f"ds_read_b64_tr_b16 {vr(PL+8+4*i+2*h,2)}, v{2+i} offset:{4096*h}")
    a("v_add_u32 v2, 8192, v2\nv_add_u32 v3, 8192, v3\ns_waitcnt lgkmcnt(0)")
    for x in st_mf(PL + 8, False): a(x)
    a("s_nop 7\ns_sub_u32 s58, s58, 1\ns_cbranch_scc0 G1_LL\ns_nop 7")
    for x in st_extract(PL, PL + 2): a(x.replace("s_nop 0", "s_nop 1"))
    a("s_barrier\ns_branch G1_LSC")
def g1_epi(a, st, P):
    E = TMP; O = TMP + 12; Z = TMP + 20
    m = [PR + 4 * i + 2 for i in range(8)]
    a(f"s_waitcnt lgkmcnt(0)\nv_fma_f32 v2, v{m[0]}, v{m[1]}, v{m[2]}\nv_fma_f32 v3, v{m[3]}, v{m[4]}, v{m[5]}\nv_fma_f32 v2, v{m[6]}, v{m[7]}, v2\nv_cmp_u_f32 vcc, v2, v3\ns_cbranch_vccnz G1_REDO\nG1_CONT:")
    def grp(items):
        def each(f):
            for k, it in enumerate(items):
                for j in (0, 2): f(it, E + 4 * k, j)
        each(lambda it, e, j: a(f"v_pk_fma_f32 {vr(it[0]+j,2)}, {vr(it[4]+2,2)}, {vr(it[2]+j,2)}, {vr(it[0]+j,2)} op_sel_hi:[0,1,1] neg_lo:[1,0,0] neg_hi:[1,0,0]"))
        each(lambda it, e, j: a(f"v_pk_mul_f32 {vr(e+j,2)}, {vr(it[0]+j,2)}, {vr(it[0]+j,2)}"))
        each(lambda it, e, j: a(f"v_pk_fma_f32 {vr(e+j,2)}, {vr(e+j,2)}, {vr(it[4],2)}, {vr(it[4],2)} op_sel:[0,1,0] op_sel_hi:[1,1,0]"))
        each(lambda it, e, j: a(f"v_pk_mul_f32 {vr(e+j,2)}, {vr(e+j,2)}, {vr(it[0]+j,2)}"))
        each(lambda it, e, j: a(f"v_exp_f32 v{e+j}, v{e+j}\nv_exp_f32 v{e+j+1}, v{e+j+1}\nv_pk_fma_f32 {vr(it[1]+j,2)}, {vr(it[4]+2,2)}, {vr(it[3]+j,2)}, {vr(it[1]+j,2)} op_sel_hi:[0,1,1] neg_lo:[1,0,0] neg_hi:[1,0,0]"))
        each(lambda it, e, j: a(f"v_pk_fma_f32 {vr(e+j,2)}, {vr(e+j,2)}, {vr(it[4]+2,2)}, {vr(it[4]+2,2)} op_sel:[0,1,1] op_sel_hi:[1,1,1]"))
        each(lambda it, e, j: a(f"v_rcp_f32 v{e+j}, v{e+j}\nv_rcp_f32 v{e+j+1}, v{e+j+1}\nv_pk_mul_f32 {vr(it[0]+j,2)}, {vr(it[0]+j,2)}, {vr(it[1]+j,2)}"))
        each(lambda it, e, j: a(f"v_pk_mul_f32 {vr(it[0]+j,2)}, {vr(it[0]+j,2)}, {vr(e+j,2)}"))
        each(lambda it, e, j: a(f"v_cvt_pk_bf16_f32 v{it[5]+j//2}, v{it[0]+j}, v{it[0]+j+1}"))
    for p in range(4):
        c = ACC + 24 * p; o = O + 4 * (p & 1); z = Z + 4 * (p >> 1)
        grp([(c, c + 4, CS, CS + 4, PR + 8 * p, o), (c + 12, c + 16, CS, CS + 4, PR + 8 * p + 4, o + 2), (c + 8, c + 20, CS + 8, CS + 12, PR2 + 4 * p, z + 2 * (p & 1))])
        a(f"v_permlane32_swap_b32 v{o}, v{o+2}\nv_permlane32_swap_b32 v{o+1}, v{o+3}")
        if p & 1: a(f"v_permlane16_swap_b32 v{z}, v{z+2}\nv_permlane16_swap_b32 v{z+1}, v{z+3}")
        a(f"buffer_store_dwordx4 {vr(o,4)}, v{vO1}, s[16:19], s{32+p} offen sc1")
        if p & 1: a(f"buffer_store_dwordx4 {vr(z,4)}, v{vO2}, s[16:19], s{36+(p>>1)} offen sc1")

def gen_g2(a, st, P):
    vHo = [6, 7, 8]; vWr = [9, 10, 11]; vRd, vTr, vTr4, vO, vO4, vR, vF2 = 12, 13, 14, 15, 16, 17, 18
    AC = [24, 44]; HB = 64
    vB16 = 19
    st(1)
    a(f"s_load_dwordx2 s[6:7], s[0:1], {KA['out']}")
    a(f"s_lshl_b32 s39, s60, 4\ns_add_u32 s39, s39, s61\ns_lshl_b32 s39, s39, {P.get('fs2', 6)}\ns_add_u32 s39, s39, {F_2}")
    rep = P.get("rep", 0)
    if rep:
        a(f"s_lshl_b32 s39, s60, {rep+4}\ns_lshl_b32 s38, s61, {rep-4}\ns_add_u32 s39, s39, s38\ns_add_u32 s39, s39, {F_2}\nv_lshlrev_b32 v20, {rep}, v{vL}\nv_mov_b32 v21, {TAG}")
    def pub():
        a("s_barrier\ns_cmp_lg_u32 s28, 0\ns_cbranch_scc1 G_NF")
        if rep: a("s_mov_b64 exec, 0xffff\nbuffer_store_dword v21, v20, s[64:67], s39 offen sc1\ns_mov_b64 exec, -1")
        else: setflag(a, "s39")
        a("G_NF:")
    if not P.get("late2"): pub()
    a("s_add_u32 s44, s28, s63\ns_and_b32 s44, s44, 3")
    if P.get("norot3"): a("s_mov_b32 s44, s28")
    a(f"v_lshlrev_b32 v{vB16}, 4, v{vL}")
    a(f"s_lshr_b32 s31, s62, 1\ns_lshl_b32 s31, s31, 2\ns_add_u32 s31, s31, s28\ns_lshl_b32 s31, s31, {P.get('fs2', 6)+2}\ns_add_u32 s31, s31, {F_2}\nv_and_b32 v{vT2}, 3, v{vL}\nv_lshl_add_u32 v{vF2}, v{vT2}, {P.get('fs2', 6)}, s31")
    if rep: a(f"s_lshl_b32 s31, s62, 3\ns_add_u32 s31, s31, s63\ns_lshl_b32 s31, s31, 2\ns_add_u32 s31, s31, s28\ns_lshl_b32 s31, s31, {rep-2}\ns_add_u32 s31, s31, {F_2}\nv_lshl_add_u32 v{vF2}, v{vT2}, {rep-4}, s31")
    for g in range(3):
        a(f"s_add_u32 s37, s55, {g}\ns_sub_u32 s38, s37, 3\ns_cselect_b32 s37, s37, s38\ns_lshl_b32 s37, s37, 12\nv_add_u32 v{vHo[g]}, s37, v{vB16}")
    a("s_lshl_b32 s35, s62, 2\ns_mul_i32 s36, s28, 12288")
    for j in range(4):
        a(f"s_add_u32 s37, s44, {j+1}\ns_and_b32 s37, s37, 3\ns_add_u32 s38, s37, s35\ns_mul_i32 s38, s38, 49152\ns_add_u32 s{40+j}, s38, s36")
        if j < 3: a(f"s_mul_i32 s37, s37, 15360\ns_add_u32 s37, s37, {RED+j*5120}\nv_add_u32 v{vWr[j]}, s37, v{vB16}")
    a(f"s_mul_i32 s37, s44, 15360\ns_add_u32 s37, s37, {RED}\nv_add_u32 v{vRd}, s37, v{vB16}")
    a(f"v_lshrrev_b32 v{vT0}, 4, v{vL}\nv_bfe_u32 v{vT1}, v{vL}, 2, 2\nv_lshlrev_b32 v{vO}, 3, v{vT2}\nv_lshl_add_u32 v{vO}, v{vT1}, 7, v{vO}\ns_lshl_b32 s37, s44, 5\ns_add_u32 s37, s37, {RES}\nv_add_u32 v{vO}, s37, v{vO}")
    a(f"v_lshl_add_u32 v{vTr}, v{vT0}, 10, v{vO}\nv_lshl_add_u32 v{vTr4}, v{vT0}, 9, v{vO}")
    a(f"v_and_b32 v{vO}, 1, v{vT1}\nv_lshlrev_b32 v{vO}, 8, v{vO}\nv_lshl_add_u32 v{vO}, v{vT2}, 1, v{vO}\nv_lshrrev_b32 v{vT1}, 1, v{vT1}\nv_add_u32 v{vO}, v{vO}, v{vT1}\nv_mul_u32_u24 v{vT1}, 1280, v{vO}")
    a(f"v_lshl_add_u32 v{vO}, v{vT0}, 4, v{vT1}\nv_lshl_add_u32 v{vO4}, v{vT0}, 3, v{vT1}")
    a("s_lshr_b32 s37, s62, 3\ns_lshl_b32 s37, s37, 9\ns_and_b32 s38, s62, 1\ns_lshl_b32 s38, s38, 2\ns_add_u32 s38, s38, s44\ns_lshl_b32 s38, s38, 5\ns_add_u32 s37, s37, s38")
    a("s_bfe_u32 s38, s62, 0x20001\ns_lshl_b32 s38, s38, 3\ns_add_u32 s37, s37, s38\ns_mul_i32 s37, s37, 1280\ns_mul_i32 s38, s63, 160\ns_add_u32 s45, s37, s38")
    a("s_waitcnt lgkmcnt(0)")
    a.srd(20, 6, 0, 2048 * 1280)
    st(2)
    if P.get("late2"): a("s_waitcnt vmcnt(0)"); pub()
    st(3)
    if P.get("w0"): a("s_waitcnt vmcnt(0)\ns_barrier")
    poll(a, vF2, vT3)
    st(4)
    if not P.get("nobar2"): a("s_barrier")
    hl = [f"buffer_load_dwordx4 {vr(HB+48*j+4*s,4)}, v{vHo[s>>2]}, s[16:19], s{40+j} offen offset:{1024*(s&3)} sc1" for j in range(4) for s in range(12)]
    pre2 = P.get("pre2", 16); niss = pre2
    for x in hl[:pre2]: a(x)
    if not P.get("late2"):
        a(f"v_add_u32 v{vF2}, {F_2L-F_2}, v{vF2}\ns_cmp_lg_u32 s28, 0\ns_cbranch_scc1 G_NL\ns_add_u32 s39, s39, {F_2L-F_2}")
        setflag(a, "s39")
        a("G_NL:")
    chk = lambda j: "" if P.get("late2") else f"v_cmp_u_f32 vcc, v{AC[j&1]}, v{AC[j&1]}\ns_cbranch_vccnz G2_R{j}\nG2_C{j}:"
    st(5)
    X = HB; Hh = HB + 60; HU = HB + 72
    for j in range(4):
        c = AC[j & 1]
        fill = [[] for _ in range(60)]
        if j:
            fill[2].append(chk(j - 1))
            for dt in range(5): fill[4 + 2 * dt].append(f"ds_write_b128 v{vWr[j-1]}, {vr(AC[(j-1)&1]+4*dt,4)} offset:{1024*dt}")
        if j == 3:
            fill[16] += ["s_waitcnt lgkmcnt(0)", "s_barrier"]
            rd = []
            for dt in range(5):
                rd.append(f"ds_read_b64_tr_b16 {vr(Hh+2*dt,2)}, v{vTr} offset:{(32*(dt>>1)+4*(dt&1))*128}" if dt < 4 else f"ds_read_b64_tr_b16 {vr(Hh+2*dt,2)}, v{vTr4} offset:{64*128}")
                for k in range(3): rd.append(f"ds_read_b128 {vr(X+12*dt+4*k,4)}, v{vRd} offset:{5120*k+1024*dt}")
            for i in range(10): fill[16 + i] += rd[2*i:2*i+2]
            vs = []
            for dt in range(5):
                x = X + 12 * dt; u = HU + 4 * dt
                o = []
                for h in range(2): o += [f"v_lshlrev_b32 v{u+2*h}, 16, v{Hh+2*dt+h}", f"v_and_b32 v{u+2*h+1}, 0xffff0000, v{Hh+2*dt+h}"]
                for k in range(4): o.append(f"v_add_f32 v{x+k}, v{x+k}, v{x+4+k}")
                for k in range(4): o.append(f"v_add_f32 v{u+k}, v{u+k}, v{x+8+k}")
                for k in range(4): o.append(f"v_add_f32 v{u+k}, v{u+k}, v{x+k}")
                o[0] = f"s_waitcnt lgkmcnt({min(12, 16-4*dt)})\n" + o[0]
                vs += o
            for i in range(26, 60):
                for _ in range(2):
                    if vs: fill[i].append(vs.pop(0))
        mf = []
        for s in range(12):
            for dt in range(5):
                d = vr(c + 4 * dt, 4)
                if dt == 1 + P.get("hp", 0) and niss < 48: fill[5 * s + dt - 1].append(hl[niss]); niss += 1
                mf.append((f"s_waitcnt vmcnt({niss-1-12*j-s})\n" if dt == 0 else "") + f"v_mfma_f32_16x16x32_bf16 {d}, {ar(20*s+4*dt,4)}, {vr(HB+48*j+4*s,4)}, {d if s else 0}")
        for k, x in enumerate(interleave(mf, fill)):
            a(x)
            if j == 0 and k == 0: st(6)
    for x in vs: a(x)
    a(chk(3))
    st(7)
    O = X
    for dt in range(5):
        c = AC[1] + 4 * dt; u = HU + 4 * dt
        for h in range(2): a(f"v_pk_add_f32 {vr(u+2*h,2)}, {vr(u+2*h,2)}, {vr(c+2*h,2)}")
        for h in range(2): a(f"v_cvt_pk_bf16_f32 v{O+2*dt+h}, v{u+2*h}, v{u+2*h+1}")
        if dt in (1, 3): a(f"buffer_store_dwordx4 {vr(O+2*dt-2,4)}, v{vO}, s[20:23], s45 offen offset:{64*(dt>>1)}{P.get('osc', '')}")
        if dt == 4: a(f"buffer_store_dwordx2 {vr(O+8,2)}, v{vO4}, s[20:23], s45 offen offset:128{P.get('osc', '')}")
    def slow():
        def cnt(k):
            if P.get("cnt"): a(f"s_load_dwordx2 s[56:57], s[0:1], {KA['dbg']}\nv_mov_b32 v2, 0\nv_mov_b32 v3, 1\ns_waitcnt lgkmcnt(0)\ns_mov_b64 exec, 1\nglobal_atomic_add v2, v3, s[56:57] offset:{4*k}\ns_mov_b64 exec, -1")
        a(f"G1_REDO:\ns_cmp_lg_u32 s6, 0\ns_cbranch_scc1 G1_CONT\ns_mov_b32 s6, {F_1L-F_1}")
        cnt(0); diag(a, 1)
        a("s_waitcnt vmcnt(0)\ns_barrier")
        w1f_setup(a, 22)
        a("s_branch P_WALL")
        g1_slow(a)
        for j in range(0 if P.get("late2") else 4):
            a(f"G2_R{j}:")
            cnt(1 + j)
            poll(a, vF2, vT3)
            for x in hl[12*j:12*j+12]: a(x)
            a("s_waitcnt vmcnt(0)")
            for s in range(12):
                for dt in range(5):
                    d = vr(AC[j & 1] + 4 * dt, 4)
                    a(f"v_mfma_f32_16x16x32_bf16 {d}, {ar(20*s+4*dt,4)}, {vr(HB+48*j+4*s,4)}, {d if s else 0}")
            a(f"s_nop 7\ns_branch G2_C{j}")
    return slow

def gen_pk(name, stamp=0, P={}):
    P = {**DEF, **P}
    if "wsch" in P: P["nin"] = sum(P["wsch"]) // 3
    a = Asm(); MT[0] = P.get("mt", 0); DG[0] = P.get("dg", 0); FS[0] = P.get("fs", 6); PSC[0] = P.get("psc", "sc1"); assert P.get("late2")
    sA = St(a, stamp == 1); sB = St(a, stamp == 2); sC = St(a, stamp > 0)
    a.l.append(kernel_head(name))
    a("s_cmp_ge_u32 s2, 256\ns_cbranch_scc1 P_END")
    if P.get("hf"): a(f"s_add_u32 s2, s2, {P['hf']}\ns_and_b32 s2, s2, 255")
    sC(0)
    a(f"s_getpc_b64 s[68:69]\nP_PC:\ns_sub_u32 s68, s68, P_PC-{name}\ns_subb_u32 s69, s69, 0\ns_mov_b32 s70, P_END-{name}\ns_mov_b32 s71, 0x20000")
    a("s_lshr_b32 s31, s2, 3\ns_lshl_b32 s31, s31, 11\nv_lshlrev_b32 v2, 3, v0\nbuffer_load_dword v251, v2, s[68:71], s31 offen")
    a(f"s_load_dwordx16 s[8:23], s[0:1], 0\ns_load_dwordx2 s[4:5], s[0:1], {KA['ws']}\ns_load_dwordx4 s[40:43], s[0:1], {KA['wg']}")
    a("v_lshrrev_b32 v2, 6, v0\nv_and_b32 v1, 63, v0\ns_and_b32 s30, s2, 7\nv_readfirstlane_b32 s28, v2\ns_lshr_b32 s31, s2, 3")
    k1 = P.get("k1", 2); k2 = P.get("k2", 3)
    def mp(dlo, dhi, k, nlo):
        b = 3 - (nlo - k)
        a(f"s_lshr_b32 s32, s30, {b}\ns_lshl_b32 s32, s32, {k}\ns_and_b32 s33, s31, {(1<<k)-1}\ns_add_u32 s{dlo}, s32, s33")
        a(f"s_and_b32 s32, s30, {(1<<b)-1}\ns_lshl_b32 s32, s32, {5-k}\ns_lshr_b32 s33, s31, {k}\ns_add_u32 s{dhi}, s32, s33")
    mp(61, 60, k1, 4); mp(63, 62, k2, 3)
    a(f"s_lshl_b32 s32, s61, {1 if k1 <= 2 else 0}\ns_lshl_b32 s33, s60, {0 if k1 <= 2 else 1}\ns_add_u32 s32, s32, s33\ns_and_b32 s32, s32, 7\ns_mul_i32 s32, s32, 5\ns_lshr_b32 s3, s32, 1")
    if P.get("rotnb"): a("s_and_b32 s32, s61, 7\ns_mul_i32 s32, s32, 5\ns_lshr_b32 s3, s32, 1")
    a("s_mov_b32 s6, 0\ns_cmp_ge_u32 s2, 160\ns_cbranch_scc1 P_HELP")
    a("s_mul_i32 s29, s30, 20\ns_add_u32 s29, s29, s31")
    gen_conv(a, sA, P, St(a, stamp == 3))
    a("P_HELP:\ns_sub_u32 s29, s2, 160")
    gen_help(a, sA, St(a, stamp == 3), P)
    gen_mid1(a, sC, P)
    g1_main(a, sC, P)
    g1_epi(a, sC, P)
    slow = gen_g2(a, sB, P)
    if "spin" in P:
        i, j, wg = P["spin"]
        a(f"s_waitcnt vmcnt(0) lgkmcnt(0)\ns_memrealtime s[100:101]\ns_cmp_lg_u32 s2, {wg}\ns_cbranch_scc1 P_END\ns_waitcnt lgkmcnt(0)")
        a(f"s_sub_u32 s30, s{76+2*j}, s{76+2*i}\ns_lshl_b32 s30, s30, 2\ns_min_u32 s30, s30, 30000\nP_SPIN:\ns_memrealtime s[32:33]\ns_waitcnt lgkmcnt(0)\ns_sub_u32 s32, s32, s100\ns_cmp_lt_u32 s32, s30\ns_cbranch_scc1 P_SPIN")
    else: sC.flush()
    a("P_END:\ns_endpgm")
    slow()
    a("s_endpgm")
    return a.text(), kernel_desc(name, 256, sgpr=102 if stamp else 80, agpr=256), f"; @launch grid=(256,1,1) block=(256,1,1) lds=163840"
DEF = dict(ska=1, w2f=1, hf=160, ro=3, w2c=1, f2=1, hpw=2, f1=2, fw=1, wl=1, nt=2, ppm=0x249, chk=[(2,25,3,33,4),(3,30,4,33,5)], r1=(8,7), rep=9, csx=2, kf=2, sco=1, mw=5, k1=3, rw=4, wsch=[0,0,0,0,12,12,12,3], rotnb=1, gpos=[3,3,4,5,6,7,8,9], stj=40, pre2=12, nobar2=1, fs2=7, nobar1=1, up=8, dbl=0, w2s=1, nopf2=1, late2=1, pp=1, npp=4, fs=7, lim=4, w2sch=[0,2,2,2,2,2,2,2,3,3,3,3,3,4,4,4,4,4,4])
KN = "sequential_preLN__ssm_conv_s4d__geglu_ffn__prompt"
NOPAD = 0
if __name__ == "__main__":
    from build import assemble as asm0, add_pads
    assemble = lambda parts: add_pads(asm0(parts), KN + "_kernel", NOPAD)
    import sys
    for s in (0, 1, 2, 3): open(f"pk_s{s}.s", "w").write(assemble([gen_pk(KN + "_kernel", s)]))
    V = eval(open('V.txt').read())
    for n, pp in V.items():
        NOPAD = pp.get("nopad", 0)
        for s in (0, 1, 2, 3, 4): open(f"pk_{n}_{s}.s", "w").write(assemble([gen_pk(KN + "_kernel", s, pp)]))
    if len(sys.argv) > 1:
        for k, (i, j, wg) in enumerate(eval(sys.argv[1])):
            open(f"pk_spin{k}.s", "w").write(assemble([gen_pk(KN + "_kernel", int(sys.argv[2]), dict(spin=(i, j, wg)))]))
```
